```python
import torch

def _softmax(x, axis=-1):
    return torch.softmax(x, dim=axis)
def _gelu(x):
    return torch.nn.functional.gelu(x, approximate="tanh")
def _silu(x):
    return torch.nn.functional.silu(x)
def _sigmoid(x):
    return torch.sigmoid(x)
def _layernorm(x, axis=-1, eps=1e-5):
    m = x.mean(dim=axis, keepdim=True)
    v = x.var(dim=axis, keepdim=True, unbiased=False)
    return (x - m) / torch.sqrt(v + eps)
def _scatter_add(tgt, idx, src, axis=0):
    return tgt.clone().index_add_(axis, idx, src)
def _segment_sum(src, seg, n):
    out = torch.zeros((n,) + src.shape[1:], dtype=src.dtype)
    return out.index_add_(0, seg, src)
def _pad(x, pw):
    flat = tuple(v for pair in reversed(pw) for v in pair)
    return torch.nn.functional.pad(x, flat)

kernel_name = 'gated_mix__sliding_block_cached__gqa_block_cached__decode'

def setup_inputs():

    _w = (lambda a: (lambda t: t.to(torch.bfloat16) if t.is_floating_point() else t)(torch.as_tensor(a)))
    def _A_setup():
        B, Sq, D = 2, 1, 1024
        Hq, Hkv, Sk, Dh = 32, 4, 32768, 128
        assert Hq % Hkv == 0, (Hq, Hkv)
        return {
            "x": _w((lambda *s: torch.randn(*s, dtype=torch.bfloat16) * 0.05)(B, Sq, D)),
            "k_cache": _w((lambda *s: torch.randn(*s, dtype=torch.bfloat16) * 6.4)(B, Hkv, Sk, Dh)),
            "v_cache": _w((lambda *s: torch.randn(*s, dtype=torch.bfloat16) * 0.05)(B, Hkv, Sk, Dh)),
            "wq": _w((lambda *s: torch.randn(*s, dtype=torch.bfloat16) * 6.4)(D, Hq * Dh) * (D ** -0.5)),
            "wo": _w((lambda *s: torch.randn(*s, dtype=torch.bfloat16) * 0.05)(Hq * Dh, D) * ((Hq * Dh) ** -0.5)),
        }
    _A_in = _A_setup()

    def _B_setup():
        B, Sq, D = 2, 1, 1024
        Hq, Hkv, Sk, Dh = 32, 4, 32768, 128
        assert Hq % Hkv == 0, (Hq, Hkv)
        return {
            "x": _w((lambda *s: torch.randn(*s, dtype=torch.bfloat16) * 0.05)(B, Sq, D)),
            "k_cache": _w((lambda *s: torch.randn(*s, dtype=torch.bfloat16) * 6.4)(B, Hkv, Sk, Dh)),
            "v_cache": _w((lambda *s: torch.randn(*s, dtype=torch.bfloat16) * 0.05)(B, Hkv, Sk, Dh)),
            "wq": _w((lambda *s: torch.randn(*s, dtype=torch.bfloat16) * 6.4)(D, Hq * Dh) * (D ** -0.5)),
            "wo": _w((lambda *s: torch.randn(*s, dtype=torch.bfloat16) * 0.05)(Hq * Dh, D) * ((Hq * Dh) ** -0.5)),
        }
    _B_in = _B_setup()

    return {
        "A_x": _A_in["x"],
        "A_k_cache": _A_in["k_cache"],
        "A_v_cache": _A_in["v_cache"],
        "A_wq": _A_in["wq"],
        "A_wo": _A_in["wo"],
        "B_x": _B_in["x"],
        "B_k_cache": _B_in["k_cache"],
        "B_v_cache": _B_in["v_cache"],
        "B_wq": _B_in["wq"],
        "B_wo": _B_in["wo"],
        "gate_w": _w((lambda *s: torch.randn(*s, dtype=torch.bfloat16) * 0.05)(1024) * 16.0),
    }

def reference(A_x, A_k_cache, A_v_cache, A_wq, A_wo, B_x, B_k_cache, B_v_cache, B_wq, B_wo, gate_w):
    def _A_ref(x, k_cache, v_cache, wq, wo):
        B, Sq, D = x.shape
        Hq, Dh = 32, 128
        Hkv, Sk = k_cache.shape[1], k_cache.shape[2]
        W = min(4096, max(256, Sk // 4))
        rep = Hq // Hkv
        q = (lambda x, *d: x.permute(*d))((x @ wq).reshape(B, Sq, Hq, Dh), 0, 2, 1, 3)
        k = (lambda x, n, axis: torch.repeat_interleave(x, n, dim=axis))(k_cache[:, :, Sk - W:, :], rep, axis=1)
        v = (lambda x, n, axis: torch.repeat_interleave(x, n, dim=axis))(v_cache[:, :, Sk - W:, :], rep, axis=1)
        scores = torch.einsum("bhqd,bhkd->bhqk", q, k) * (Dh ** -0.5)
        p = _softmax(scores, axis=-1)
        o = torch.einsum("bhqk,bhkd->bhqd", p, v)
        return (lambda x, *d: x.permute(*d))(o, 0, 2, 1, 3).reshape(B, Sq, Hq * Dh) @ wo

    def _B_ref(x, k_cache, v_cache, wq, wo):
        B, Sq, D = x.shape
        Hq, Dh = 32, 128
        Hkv = k_cache.shape[1]
        rep = Hq // Hkv
        q = (lambda x, *d: x.permute(*d))((x @ wq).reshape(B, Sq, Hq, Dh), 0, 2, 1, 3)
        k = (lambda x, n, axis: torch.repeat_interleave(x, n, dim=axis))(k_cache, rep, axis=1)
        v = (lambda x, n, axis: torch.repeat_interleave(x, n, dim=axis))(v_cache, rep, axis=1)
        scores = torch.einsum("bhqd,bhkd->bhqk", q, k) * (Dh ** -0.5)
        p = _softmax(scores, axis=-1)
        o = torch.einsum("bhqk,bhkd->bhqd", p, v)
        return (lambda x, *d: x.permute(*d))(o, 0, 2, 1, 3).reshape(B, Sq, Hq * Dh) @ wo

    x = A_x
    g = _sigmoid((x * gate_w).sum(-1, keepdims=True))
    a = _A_ref(x, A_k_cache, A_v_cache, A_wq, A_wo)
    b = _B_ref(x, B_k_cache, B_v_cache, B_wq, B_wo)
    return g * a + (1 - g) * b
```

```python
import sys, struct, math
KNAME = "gated_mix__sliding_block_cached__gqa_block_cached__decode_kernel"
def f2u(x): return struct.unpack("<I", struct.pack("<f", x))[0]

QG, PML, H1, H2, PO, PF, STAMP = 0, 0x10000, 0x20000, 0x40000, 0x100000, 0x600000, 0x800000
HREP = 0x1100
WS_SIZE = 0x1000000
CM, CL, OB, FR, FLG, QOP, CO = 0, 512, 1024, 1280, 1792, 2048, 6656
F_CNT, F_QC, F_NON, F_AC = FLG, FLG + 4, FLG + 8, FLG + 12
CO_BR, CO_W, CO_H = 33792, 4224, 528
LDS_SIZE = 74240
KB, VB, KA, VA, W1, W2, WS, XS, GT, OUT, DBG = 4, 8, 12, 16, 20, 24, 28, 32, 36, 40, 44
S_SELLO, S_SELHI, S_C, S_NONCE, S_GRP, S_IDX, S_SPLIT, S_BB, S_AB = 76, 77, 78, 79, 80, 81, 82, 83, 84
S_T0, S_T1, S_T2, S_T3, S_CNT, S_J, S_W = 85, 86, 87, 88, 89, 90, 91
S_POB, S_POA, S_MLB, S_MLA = 92, 93, 94, 95
S_OK, S_QA, S_QB = 99, 100, 101
V_K0, V_K1, V_L0, V_L1 = 1, 2, 3, 4
V_COW, V_MLW, V_QR, V_COR, V_MLR, V_FLG, V_QW, V_X, V_WA, V_GA, V_GB = 5, 6, 7, 8, 9, 10, 11, 12, 13, 14, 15
V_PO = V_X
V_HR = V_QW
S_H1 = 97
WSET = [16, 20]
T = list(range(24, 32))
OACC, QR, SR, PR, V_M, V_LS, V_U0, V_U1 = 32, 64, 80, 88, 92, 93, 94, 95
RING = [96 + 32 * i for i in range(5)]
SPIN_MAX = 20000

class G:
    def __init__(self, stamps=False, opts=None):
        self.L = []; self.stamps = stamps; self.lab = 0
        self.o = opts or {}
        self.q = []
        self.pace = 0; self.resmul = None
    def opt(self, k, d): return int(self.o.get(k, d))
    def e(self, s): self.L.append("    " + s)
    def label(self, s): self.L.append(s + ":")
    def newlab(self, p):
        self.lab += 1; return f"L_{p}{self.lab}"
    def srd(self, d, b, n):
        self.e(f"s_mov_b32 s{d}, s{b}"); self.e(f"s_mov_b32 s{d+1}, s{b+1}")
        self.e(f"s_mov_b32 s{d+2}, {hex(n)}"); self.e(f"s_mov_b32 s{d+3}, 0x20000")
    def stamp(self, i):
        if self.stamps: self.e(f"s_memrealtime s[{48+2*i}:{49+2*i}]")
    def stamp_flush(self):
        if not self.stamps: return
        e = self.e
        e("s_waitcnt lgkmcnt(0)")
        e("s_lshl_b32 s92, s2, 3"); e("s_add_u32 s92, s92, s3"); e("s_lshl_b32 s92, s92, 7"); e(f"s_add_u32 s92, s92, {hex(STAMP)}")
        e("s_mov_b64 exec, 1")
        for i in range(12):
            e(f"v_mov_b32 v16, s{48+2*i}"); e(f"v_mov_b32 v17, s{49+2*i}")
            e(f"buffer_store_dwordx2 v[16:17], off, s[{WS}:{WS+3}], s92 offset:{i*8}")
            e("s_nop 0")
        e("s_mov_b64 exec, -1")
    def vm(self, s, tag, paced=True):
        if paced and self.pace and len(self.q) >= self.pace:
            self.e(f"s_waitcnt vmcnt({self.pace-1})")
        self.e(s); self.q.append(tag)
    def wait(self, tag, keep=0):
        idx = [i for i, t in enumerate(self.q) if t == tag]
        if not idx: return
        last = idx[len(idx) - 1 - keep]
        n = len(self.q) - 1 - last
        assert n <= 63
        self.e(f"s_waitcnt vmcnt({n})")
        self.q = self.q[last + 1:]
    def k_unit(self, r, srd, soff, tag):
        for j in range(8):
            t, jj = j >> 2, j & 3
            self.vm(f"buffer_load_dwordx4 v[{r+j*4}:{r+j*4+3}], v{V_K1 if t else V_K0}, s[{srd}:{srd+3}], s{soff} offen offset:{jj*64} nt", tag)
    def v_unit(self, r, srd, soff, tag):
        if self.o.get("map", "il") == "col8":
            for j in range(8):
                if j: self.e(f"s_add_u32 s{S_T1}, s{soff}, {j*8192}")
                self.vm(f"buffer_load_dwordx4 v[{r+j*4}:{r+j*4+3}], v{V_L0}, s[{srd}:{srd+3}], s{S_T1 if j else soff} offen nt", tag)
            return
        for j in range(8):
            self.vm(f"buffer_load_dwordx4 v[{r+j*4}:{r+j*4+3}], v{V_L1 if j >= 4 else V_L0}, s[{srd}:{srd+3}], s{soff} offen offset:{(j&3)*1024} nt", tag)
    def issue_next(self):
        if not self.seq or not self.free: return False
        u = self.seq.pop(0); r = self.free.pop(0); self.slot[u] = r
        if u[0] == "W":
            self.wo_unit(r, W1 if u == "WA" else W2, u)
        elif u[1] == "A":
            if u[0] == "K": self.k_unit(r, KA, S_AB, u)
            else: self.v_unit(r, VA, S_AB, u)
        else:
            t = int(u[1])
            self.e(f"s_add_u32 s{S_T0}, s{S_BB}, {hex(t * 0x200000)}")
            if u[0] == "K": self.k_unit(r, KB, S_T0, u)
            else: self.v_unit(r, VB, S_T0, u)
        return True
    def release(self, u):
        self.free.append(self.slot[u])
    def wo_unit(self, r, srd, tag):
        for ee in range(8):
            off = ((ee & 3) * 8 + (ee >> 2)) * 2048
            self.e(f"s_add_u32 s{S_T0}, s{S_W}, {off & ~4095}")
            self.vm(f"buffer_load_dwordx4 v[{r+ee*4}:{r+ee*4+3}], v{V_WA}, s[{srd}:{srd+3}], s{S_T0} offen offset:{off & 4095} nt", tag)
    def perm1(self, dst, src, dd, p):
        sel = S_SELHI if dd & 1 else S_SELLO
        self.e(f"v_perm_b32 v{dst+p}, v{src+(2*p+1)*4+(dd>>1)}, v{src+(2*p)*4+(dd>>1)}, s{sel}")
    def perms(self, dst, src, dd):
        for p in range(4): self.perm1(dst, src, dd, p)
    def mfma(self, d, a, b, c):
        cs = "0" if c is None else f"v[{c}:{c+3}]"
        self.e(f"v_mfma_f32_16x16x32_bf16 v[{d}:{d+3}], v[{a}:{a+3}], v[{b}:{b+3}], {cs}")
    def perm_mfma8(self, src, other, first, w_is_a, acc=OACC):
        def mm(dd):
            w = WSET[dd & 1]; d = acc + dd * 4
            if w_is_a: self.mfma(d, w, other, None if first else d)
            else: self.mfma(d, other, w, None if first else d)
        self.perms(WSET[0], src, 0)
        for dd in range(1, 8):
            self.perms(WSET[dd & 1], src, dd)
            mm(dd - 1)
        self.e("s_nop 0")
        mm(7)
    def pv_last(self, tag, src, dst, first):
        self.wait(tag, keep=2)
        for p in range(3):
            for dd in range(8): self.perm1(dst + dd * 4, src, dd, p)
        self.wait(tag)
        self.stamp(6)
        for dd in range(8):
            self.perm1(dst + dd * 4, src, dd, 3)
            if dd >= 2: self.mfma(OACC + (dd-2) * 4, dst + (dd-2) * 4, PR, None if first else OACC + (dd-2) * 4)
        self.e("s_nop 0")
        for dd in (6, 7): self.mfma(OACC + dd * 4, dst + dd * 4, PR, None if first else OACC + dd * 4)
    def qk(self, r):
        for jj in range(4):
            self.mfma(SR, r + jj * 4, QR + jj * 4, None if jj == 0 else SR)
            self.mfma(SR + 4, r + 16 + jj * 4, QR + jj * 4, None if jj == 0 else SR + 4)
    def xlane(self, op, t, u, kinds):
        for k in kinds:
            self.e(f"v_mov_b32 v{u}, v{t}"); self.e("s_nop 1")
            self.e(f"v_permlane{k}_swap_b32 v{t}, v{u}")
            self.e(f"{op} v{t}, v{t}, v{u}")
    def dpp(self, op, t, rors):
        for r in rors:
            self.e("s_nop 1")
            self.e(f"{op}_dpp v{t}, v{t}, v{t} row_ror:{r} row_mask:0xf bank_mask:0xf")
    def tilemax(self, first):
        e = self.e; t, u = T[0], T[1]; S = SR
        e(f"v_max3_f32 v{t}, v{S}, v{S+1}, v{S+2}"); e(f"v_max3_f32 v{t}, v{t}, v{S+3}, v{S+4}")
        e(f"v_max3_f32 v{t}, v{t}, v{S+5}, v{S+6}")
        if first: e(f"v_max_f32 v{t}, v{t}, v{S+7}")
        else: e(f"v_max3_f32 v{t}, v{t}, v{S+7}, v{V_M}")
        self.xlane("v_max_f32", t, u, (16, 32))
    def softmax_rest(self, first, V_M=V_M, V_LS=V_LS):
        e = self.e; t, u, mc, al = T[0], T[1], T[2], T[4]; S = SR
        e(f"v_mul_f32 v{mc}, s{S_C}, v{t}")
        if not first:
            e(f"v_fma_f32 v{al}, v{V_M}, s{S_C}, -v{mc}")
            e(f"v_exp_f32 v{al}, v{al}")
        e(f"v_mov_b32 v{V_M}, v{t}")
        for i in range(8): e(f"v_fma_f32 v{S+i}, v{S+i}, s{S_C}, -v{mc}")
        for i in range(8): e(f"v_exp_f32 v{S+i}, v{S+i}")
        if not first:
            for i in range(16):
                e(f"v_pk_mul_f32 v[{OACC+2*i}:{OACC+2*i+1}], v[{OACC+2*i}:{OACC+2*i+1}], v[{al}:{al+1}] op_sel_hi:[1,0]")
        else:
            e("s_nop 0")
        e(f"v_add_f32 v{t}, v{S}, v{S+1}"); e(f"v_add_f32 v{u}, v{S+2}, v{S+3}")
        e(f"v_add_f32 v{t}, v{t}, v{S+4}"); e(f"v_add_f32 v{u}, v{u}, v{S+5}")
        e(f"v_add_f32 v{t}, v{t}, v{S+6}"); e(f"v_add_f32 v{u}, v{u}, v{S+7}")
        for p in range(4): e(f"v_cvt_pk_bf16_f32 v{PR+p}, v{S+2*p}, v{S+2*p+1}")
        e(f"v_add_f32 v{t}, v{t}, v{u}")
        if first: e(f"v_mov_b32 v{V_LS}, v{t}")
        else: e(f"v_fma_f32 v{V_LS}, v{V_LS}, v{al}, v{t}")
    def softmax_common(self, first, br, tmp):
        e = self.e
        self.tilemax(first)
        e("s_mov_b64 exec, 0xff")
        e(f"ds_write_b32 v{V_MLW}, v{T[0]} offset:{CM + br*256}")
        e("s_mov_b64 exec, -1")
        e("s_waitcnt lgkmcnt(0)")
        if not (br == 0 and self.opt("noabar", 0)): e("s_barrier")
        e(f"ds_read_b128 v[{tmp}:{tmp+3}], v{V_U0} offset:{CM + br*256}")
        e(f"ds_read_b128 v[{tmp+4}:{tmp+7}], v{V_U0} offset:{CM + br*256 + 16}")
        e("s_waitcnt lgkmcnt(0)")
        t = T[0]
        e(f"v_max3_f32 v{t}, v{tmp}, v{tmp+1}, v{tmp+2}"); e(f"v_max3_f32 v{t}, v{t}, v{tmp+3}, v{tmp+4}")
        e(f"v_max3_f32 v{t}, v{t}, v{tmp+5}, v{tmp+6}"); e(f"v_max_f32 v{t}, v{t}, v{tmp+7}")
        self.softmax_rest(first)
        self.xlane("v_add_f32", V_LS, T[1], (16, 32))
        e("s_mov_b64 exec, 0xff")
        e(f"ds_write_b32 v{V_MLW}, v{V_LS} offset:{CL + br*256}")
        e("s_mov_b64 exec, -1")
    def write_o(self, br, OACC=OACC):
        e = self.e
        e("s_mov_b32 exec_lo, 0x00ff00ff"); e("s_mov_b32 exec_hi, 0x00ff00ff")
        for dd in range(8):
            e(f"ds_write_b128 v{V_COW}, v[{OACC+dd*4}:{OACC+dd*4+3}] offset:{br*CO_BR + dd*16}")
        e("s_mov_b64 exec, -1")
    def read_q(self, br):
        for jj in range(4):
            self.e(f"ds_read_b128 v[{QR+jj*4}:{QR+jj*4+3}], v{V_QR} offset:{br*2176 + jj*64}")
    def x_prep(self, R):
        e = self.e
        m, l = R, R + 8
        e(f"ds_read_b128 v[{m}:{m+3}], v{V_MLR} offset:{CM + 256}"); e(f"ds_read_b128 v[{m+4}:{m+7}], v{V_MLR} offset:{CM + 256 + 16}")
        e(f"ds_read_b128 v[{l}:{l+3}], v{V_MLR} offset:{CL + 256}"); e(f"ds_read_b128 v[{l+4}:{l+7}], v{V_MLR} offset:{CL + 256 + 16}")
        e(f"v_mov_b32 v{R+19}, s{S_NONCE}")
        e(f"v_and_b32 v{R+16}, 1, v0"); e(f"v_cmp_eq_u32 vcc, 1, v{R+16}")
        e("s_waitcnt lgkmcnt(2)")
        e(f"v_max3_f32 v{m}, v{m}, v{m+1}, v{m+2}"); e(f"v_max3_f32 v{m}, v{m}, v{m+3}, v{m+4}")
        e(f"v_max3_f32 v{m}, v{m}, v{m+5}, v{m+6}"); e(f"v_max_f32 v{m}, v{m}, v{m+7}")
        e("s_waitcnt lgkmcnt(0)")
        for a_, b_ in ((0, 1), (2, 3), (4, 5), (6, 7), (0, 2), (4, 6), (0, 4)): e(f"v_add_f32 v{l+a_}, v{l+a_}, v{l+b_}")
        e(f"v_cndmask_b32 v{R+18}, v{m}, v{l}, vcc")
    def o_publish(self, R):
        e = self.e
        for w in range(8):
            e(f"ds_read_b64 v[{R+2*w}:{R+2*w+1}], v{V_COR} offset:{CO_BR + w*CO_W}")
        P = R + 16
        pk = lambda d, x, y: e(f"v_pk_add_f32 v[{d}:{d+1}], v[{x}:{x+1}], v[{y}:{y+1}]")
        e("s_waitcnt lgkmcnt(4)")
        pk(R, R, R + 2); pk(R + 4, R + 4, R + 6)
        e("s_waitcnt lgkmcnt(0)")
        pk(R + 8, R + 8, R + 10); pk(R + 12, R + 12, R + 14)
        pk(R, R, R + 4); pk(R + 8, R + 8, R + 12)
        pk(P, R, R + 8)
        self.vm(f"buffer_store_dwordx4 v[{P}:{P+3}], v{V_PO}, s[{WS}:{WS+3}], s{S_POB} offen sc1", "st", paced=False)
    def combine_a(self, R, hoff=0):
        e = self.e
        m, l, o = R, R + 4, R + 8
        P, M, mc = R + 20, R + 16, T[2]
        na = 4
        e(f"ds_read_b128 v[{m}:{m+3}], v{V_MLR} offset:{CM + hoff*32}"); e(f"ds_read_b128 v[{l}:{l+3}], v{V_MLR} offset:{CL + hoff*32}")
        for w in range(na): e(f"ds_read_b64 v[{o+2*w}:{o+2*w+1}], v{V_COR} offset:{w*CO_W + hoff*CO_H}")
        e(f"v_mov_b32 v{P+3}, s{S_NONCE}")
        e(f"v_and_b32 v{M+1}, 1, v0"); e(f"v_cmp_eq_u32 vcc, 1, v{M+1}")
        e(f"s_waitcnt lgkmcnt({na+1})")
        e(f"v_max3_f32 v{M}, v{m}, v{m+1}, v{m+2}"); e(f"v_max_f32 v{M}, v{M}, v{m+3}")
        e(f"v_mul_f32 v{mc}, s{S_C}, v{M}")
        for w in range(na): e(f"v_fma_f32 v{m+w}, v{m+w}, s{S_C}, -v{mc}")
        for w in range(na): e(f"v_exp_f32 v{m+w}, v{m+w}")
        e("s_waitcnt lgkmcnt(0)")
        e(f"v_mul_f32 v{P}, v{m}, v{o}"); e(f"v_mul_f32 v{P+1}, v{m}, v{o+1}"); e(f"v_mul_f32 v{M+2}, v{m}, v{l}")
        for w in range(1, na):
            e(f"v_fmac_f32 v{P}, v{m+w}, v{o+2*w}"); e(f"v_fmac_f32 v{P+1}, v{m+w}, v{o+2*w+1}"); e(f"v_fmac_f32 v{M+2}, v{m+w}, v{l+w}")
        e(f"v_cndmask_b32 v{P+2}, v{M}, v{M+2}, vcc")
        if hoff: e(f"s_add_u32 s{S_T1}, s{S_POA}, {hoff*32768}")
        self.vm(f"buffer_store_dwordx4 v[{P}:{P+3}], v{V_PO}, s[{WS}:{WS+3}], s{S_T1 if hoff else S_POA} offen sc1{' nt' if self.opt('ant', 0) else ''}", "st", paced=False)
    def pub_addrs(self, with_a):
        e = self.e
        for br, sp, po, ml in ((1, S_SPLIT, S_POB, S_MLB), (0, S_SPLIT, S_POA, S_MLA)):
            if br == 0 and not with_a: continue
            e(f"s_lshl_b32 s{po}, s{S_GRP}, 3"); e(f"s_add_u32 s{po}, s{po}, s3"); e(f"s_lshl_b32 s{po}, s{po}, 15")
            e(f"s_lshl_b32 s{S_T1}, s{sp}, 7"); e(f"s_add_u32 s{po}, s{po}, s{S_T1}"); e(f"s_add_u32 s{po}, s{po}, {hex(PO + br*8*32*8192)}")
    def check(self, tags):
        e = self.e; acc = T[7]
        e(f"v_xor_b32 v{acc}, s{S_NONCE}, v{tags[0]}")
        for t in tags[1:]:
            e(f"v_xor_b32 v{T[6]}, s{S_NONCE}, v{t}"); e(f"v_or_b32 v{acc}, v{acc}, v{T[6]}")
        e(f"v_cmp_ne_u32 vcc, 0, v{acc}")
    def poll(self, loads, tags, sleep=1, pre_issued=False):
        e = self.e
        lp, ok, chk = self.newlab("poll"), self.newlab("ok"), self.newlab("chk")
        e(f"s_mov_b32 s{S_CNT}, 0")
        if pre_issued: e(f"s_branch {chk}")
        self.label(lp)
        for s in loads: e(s)
        e("s_waitcnt vmcnt(0)")
        self.label(chk)
        self.check(tags)
        e(f"s_add_u32 s{S_CNT}, s{S_CNT}, 1")
        e(f"s_cbranch_vccz {ok}")
        e(f"s_cmp_gt_u32 s{S_CNT}, {SPIN_MAX}")
        e(f"s_cbranch_scc1 {ok}")
        if sleep: e(f"s_sleep {sleep}")
        e(f"s_branch {lp}")
        self.label(ok)
    def poll_pipe(self, mk, nreg, sets, first_issued=0):
        e = self.e
        nl = len(mk(sets[0])); ns = len(sets)
        lp, done = self.newlab("pp"), self.newlab("ppdone")
        oks = [self.newlab("ppok") for _ in sets]
        def cp(b):
            if self.resmul is None:
                e(f"v_add_f32 v{self.res}, v{b}, v{b+4}"); e(f"v_add_f32 v{self.res+1}, v{b+2}, v{b+6}")
            else:
                for i, w in enumerate(self.resmul):
                    op = "v_mul_f32" if i == 0 else "v_fmac_f32"
                    e(f"{op} v{self.res}, v{b+4*i}, v{w}"); e(f"{op} v{self.res+1}, v{b+4*i+2}, v{w}")
        e(f"s_mov_b32 s{S_CNT}, 0")
        for i in range(first_issued, ns):
            for s in mk(sets[i]): e(s)
            if i < ns - 1: e(f"s_sleep {self.opt('ppsleep', 2)}")
        self.label(lp)
        for i in range(ns):
            e(f"s_waitcnt vmcnt({(nl + self.opt('ppinv', 0)) * (ns - 1)})")
            self.check([sets[i] + 1 + 2 * k for k in range(nreg // 2)])
            e(f"s_cbranch_vccz {oks[i]}")
            if self.opt("ppinv", 0): e("buffer_inv sc1")
            if self.opt("ppgap", 0): e(f"s_sleep {self.opt('ppgap', 0)}")
            for s in mk(sets[i]): e(s)
        e(f"s_add_u32 s{S_CNT}, s{S_CNT}, 1")
        e(f"s_cmp_gt_u32 s{S_CNT}, {SPIN_MAX}")
        e(f"s_cbranch_scc0 {lp}")
        for i in range(ns - 1, 0, -1):
            self.label(oks[i])
            cp(sets[i])
            e(f"s_branch {done}")
        self.label(oks[0])
        cp(sets[0])
        self.label(done)
    def poll_missing(self, loads, tags, sleep, first=True):
        e = self.e
        n = len(loads)
        lp, done = self.newlab("pm"), self.newlab("pmdone")
        MK = [60, 62, 64, 66] if not self.stamps else [40, 42, 36, 38]
        MK = self.mk
        e(f"s_mov_b32 s{S_CNT}, 0")
        if first:
            for s_ in loads: e(s_)
        self.label(lp)
        e("s_waitcnt vmcnt(0)")
        for i in range(n):
            tg = tags[i]
            if len(tg) == 1:
                e(f"v_cmp_ne_u32 s[{MK[i]}:{MK[i]+1}], s{S_NONCE}, v{tg[0]}")
            else:
                e(f"v_xor_b32 v{T[6]}, s{S_NONCE}, v{tg[0]}"); e(f"v_xor_b32 v{T[7]}, s{S_NONCE}, v{tg[1]}"); e(f"v_or_b32 v{T[6]}, v{T[6]}, v{T[7]}")
                e(f"v_cmp_ne_u32 s[{MK[i]}:{MK[i]+1}], 0, v{T[6]}")
        if n == 1: e(f"s_or_b64 vcc, s[{MK[0]}:{MK[0]+1}], s[{MK[0]}:{MK[0]+1}]")
        else:
            e(f"s_or_b64 vcc, s[{MK[0]}:{MK[0]+1}], s[{MK[1]}:{MK[1]+1}]")
            for i in range(2, n): e(f"s_or_b64 vcc, vcc, s[{MK[i]}:{MK[i]+1}]")
        e(f"s_cbranch_scc0 {done}")
        e(f"s_add_u32 s{S_CNT}, s{S_CNT}, 1")
        e(f"s_cmp_gt_u32 s{S_CNT}, {SPIN_MAX}"); e(f"s_cbranch_scc1 {done}")
        if sleep: e(f"s_sleep {sleep}")
        for i in range(n):
            sk = self.newlab("pms")
            e(f"s_mov_b64 exec, s[{MK[i]}:{MK[i]+1}]")
            e(f"s_cbranch_execz {sk}")
            e(loads[i])
            self.label(sk)
        e("s_mov_b64 exec, -1")
        e(f"s_branch {lp}")
        self.label(done)
    def lds_spin(self, off, target=None, dst=S_T3):
        if self.opt("noq", 0): return
        e = self.e
        lp, ok = self.newlab("ls"), self.newlab("lsok")
        e(f"s_mov_b32 s{S_CNT}, 0")
        self.label(lp)
        e(f"ds_read_b32 v{T[7]}, v{V_FLG} offset:{off - FLG}")
        e("s_waitcnt lgkmcnt(0)")
        e(f"v_readfirstlane_b32 s{dst}, v{T[7]}")
        e(f"s_add_u32 s{S_CNT}, s{S_CNT}, 1")
        if target is None: e(f"s_cmp_lg_u32 s{dst}, 0")
        else: e(f"s_cmp_eq_u32 s{dst}, {target}")
        e(f"s_cbranch_scc1 {ok}")
        e(f"s_cmp_gt_u32 s{S_CNT}, {SPIN_MAX*50}")
        e(f"s_cbranch_scc1 {ok}")
        e("s_sleep 1")
        e(f"s_branch {lp}")
        self.label(ok)
    def get_nonce(self):
        e = self.e
        lp, ok = self.newlab("nn"), self.newlab("nnok")
        e(f"s_mov_b32 s{S_CNT}, 0")
        self.label(lp)
        e(f"v_readfirstlane_b32 s{S_NONCE}, v{V_U1}")
        e(f"s_add_u32 s{S_CNT}, s{S_CNT}, 1")
        e(f"s_cmp_lg_u32 s{S_NONCE}, 0")
        e(f"s_cbranch_scc1 {ok}")
        e(f"s_cmp_gt_u32 s{S_CNT}, {SPIN_MAX}")
        e(f"s_cbranch_scc1 {ok}")
        e(f"buffer_load_dword v{V_U1}, off, s[{DBG}:{DBG+3}], 0 sc1")
        e("s_waitcnt vmcnt(0)")
        e(f"s_branch {lp}")
        self.label(ok)
    def qpoll_loads(self):
        return [f"buffer_load_dwordx4 v[{OACC}:{OACC+3}], v{V_L0}, s[{WS}:{WS+3}], s{S_QB} offen sc1",
                f"buffer_load_dwordx4 v[{OACC+4}:{OACC+7}], v{V_L0}, s[{WS}:{WS+3}], s{S_QA} offen sc1"]
    def qcommit(self):
        e = self.e
        e(f"v_mov_b32 v{OACC+1}, v{OACC+2}"); e(f"v_mov_b32 v{OACC+5}, v{OACC+6}")
        e(f"v_mov_b32 v{T[0]}, s{S_NONCE}"); e(f"v_mov_b32 v{T[1]}, 1")
        e(f"ds_write_b64 v{V_QW}, v[{OACC}:{OACC+1}] offset:2176")
        e(f"ds_write_b64 v{V_QW}, v[{OACC+4}:{OACC+5}]")
        e("s_mov_b64 exec, 1")
        e(f"ds_write_b32 v{V_FLG}, v{T[0]} offset:{F_NON - FLG}")
        e(f"ds_add_u32 v{V_FLG}, v{T[1]} offset:{F_QC - FLG}")
        e("s_mov_b64 exec, -1")
        e(f"s_mov_b32 s{S_OK}, 1")
        self.stamp(4)
    def qcheck(self):
        e = self.e
        skip = self.newlab("qskip")
        e(f"s_cmp_eq_u32 s{S_OK}, 1"); e(f"s_cbranch_scc1 {skip}")
        self.check([OACC + 1, OACC + 3, OACC + 5, OACC + 7])
        e(f"s_cbranch_vccnz {skip}")
        self.qcommit()
        self.label(skip)
    def young_prefetch(self, nonce_ready):
        e = self.e
        e(f"s_lshl_b32 s{S_QA}, s{S_GRP}, 12"); e(f"s_and_b32 s{S_T1}, s3, 3"); e(f"s_lshl_b32 s{S_T2}, s{S_T1}, 10"); e(f"s_add_u32 s{S_QA}, s{S_QA}, s{S_T2}")
        if QG: e(f"s_add_u32 s{S_QA}, s{S_QA}, {QG}")
        e(f"s_add_u32 s{S_QB}, s{S_QA}, 32768")
        e(f"s_mul_i32 s{S_T1}, s{S_T1}, 544"); e(f"v_add_u32 v{V_QW}, s{S_T1}, v{V_QW}")
        e(f"s_mov_b32 s{S_OK}, 0")
        first = self.opt("qfirst", 1)
        k = 0
        pend = False
        while True:
            if k >= first:
                if not nonce_ready and k == first:
                    self.vm(f"buffer_load_dword v{V_U1}, off, s[{DBG}:{DBG+3}], 0 sc1", "nn", paced=False)
                for s_ in self.qpoll_loads(): self.vm(s_, f"qp{k}", paced=False)
                pend = True
            ok = self.issue_next()
            if pend:
                self.wait(f"qp{k}")
                if not nonce_ready:
                    self.get_nonce(); nonce_ready = True
                self.qcheck()
                pend = False
            k += 1
            if not ok or not self.free: break
        done = self.newlab("qd")
        e(f"s_cmp_eq_u32 s{S_OK}, 1"); e(f"s_cbranch_scc1 {done}")
        self.poll(self.qpoll_loads(), [OACC + 1, OACC + 3, OACC + 5, OACC + 7], sleep=1)
        self.qcommit()
        self.label(done)
    def wait_q(self):
        e = self.e
        self.lds_spin(F_QC, 4)
        if self.opt("noq", 0): return
        e(f"ds_read_b32 v{T[7]}, v{V_FLG} offset:{F_NON - FLG}")
        e("s_waitcnt lgkmcnt(0)")
        e(f"v_readfirstlane_b32 s{S_NONCE}, v{T[7]}")

    def build(self):
        e = self.e; L = self.L
        L.append(f"; @launch grid=(256,1,1) block=(512,1,1) lds={LDS_SIZE}")
        L.append('.amdgcn_target "amdgcn-amd-amdhsa--gfx950"')
        L.append(".text"); L.append(f".globl {KNAME}"); L.append(".p2align 8"); L.append(f".type {KNAME},@function"); L.append(f"{KNAME}:")
        e("s_cmp_ge_u32 s2, 256"); e("s_cbranch_scc1 L_end")
        e("s_load_dwordx16 s[48:63], s[0:1], 0")
        e("s_load_dwordx8 s[64:71], s[0:1], 64")
        e("s_load_dwordx4 s[72:75], s[0:1], 96")
        e("s_memrealtime s[96:97]")
        e("v_lshrrev_b32 v1, 6, v0")
        e("v_and_b32 v0, 63, v0")
        e("v_readfirstlane_b32 s3, v1")
        e(f"v_mov_b32 v{V_FLG}, {FLG}")
        e("v_mov_b32 v28, 0"); e("v_mov_b32 v29, 0"); e("v_mov_b32 v30, 0"); e("v_mov_b32 v31, 0")
        e("s_cmp_lg_u32 s3, 0"); e("s_cbranch_scc1 L_noinit")
        e(f"ds_write_b128 v{V_FLG}, v[28:31]")
        self.label("L_noinit")
        e("v_and_b32 v24, 15, v0"); e("v_lshrrev_b32 v25, 4, v0")
        col8 = self.o.get("map", "il") == "col8"
        e("v_and_b32 v26, 3, v24"); e(f"v_lshlrev_b32 v26, {13 if col8 else 10}, v26")
        e("v_lshrrev_b32 v27, 2, v24"); e("v_lshl_add_u32 v26, v27, 8, v26")
        e(f"v_lshl_add_u32 v{V_K0}, v25, 4, v26")
        e(f"v_add_u32 v{V_K1}, {32768 if col8 else 4096}, v{V_K0}")
        e(f"v_lshlrev_b32 v{V_L0}, 4, v0"); e(f"v_add_u32 v{V_L1}, 4096, v{V_L0}")
        e(f"s_lshr_b32 s{S_GRP}, s2, 5"); e(f"s_and_b32 s{S_IDX}, s2, 15"); e(f"s_and_b32 s{S_SPLIT}, s2, 31")
        e(f"s_lshl_b32 s{S_J}, s{S_GRP}, 4"); e(f"s_add_u32 s{S_J}, s{S_J}, s{S_IDX}")
        e(f"s_lshl_b32 s{S_T0}, s{S_GRP}, 23")
        if col8:
            e(f"s_lshl_b32 s{S_BB}, s{S_SPLIT}, 16"); e(f"s_lshl_b32 s{S_T1}, s3, 10"); e(f"s_add_u32 s{S_BB}, s{S_BB}, s{S_T1}"); e(f"s_add_u32 s{S_BB}, s{S_BB}, s{S_T0}")
            e(f"s_lshr_b32 s{S_AB}, s{S_SPLIT}, 1"); e(f"s_lshl_b32 s{S_AB}, s{S_AB}, 16"); e(f"s_add_u32 s{S_AB}, s{S_AB}, s{S_T1}")
            e(f"s_and_b32 s{S_T1}, s{S_SPLIT}, 1"); e(f"s_lshl_b32 s{S_T1}, s{S_T1}, 12"); e(f"s_add_u32 s{S_AB}, s{S_AB}, s{S_T1}"); e(f"s_add_u32 s{S_AB}, s{S_AB}, s{S_T0}")
        else:
            e(f"s_lshl_b32 s{S_BB}, s{S_SPLIT}, 3"); e(f"s_add_u32 s{S_BB}, s{S_BB}, s3"); e(f"s_lshl_b32 s{S_BB}, s{S_BB}, 13"); e(f"s_add_u32 s{S_BB}, s{S_BB}, s{S_T0}")
            e(f"s_lshl_b32 s{S_AB}, s{S_SPLIT}, 2"); e(f"s_add_u32 s{S_AB}, s{S_AB}, s3"); e(f"s_lshl_b32 s{S_AB}, s{S_AB}, 13"); e(f"s_add_u32 s{S_AB}, s{S_AB}, s{S_T0}")
        e(f"s_add_u32 s{S_AB}, s{S_AB}, 0x700000")
        e("s_bitcmp1_b32 s2, 4"); e("s_cbranch_scc1 L_roleO")
        self.q = []
        self.roleQ()
        self.label("L_roleO")
        self.q = []
        self.roleO()
        self.label("L_end"); e("s_endpgm"); self.label("L_code_end")
        L.append('.section .rodata,"a"'); L.append(".p2align 6"); L.append(f".amdhsa_kernel {KNAME}")
        for s in ["next_free_vgpr 256", "next_free_sgpr 102", "accum_offset 256", "group_segment_fixed_size 0", "kernarg_size 112",
                  "user_sgpr_count 2", "user_sgpr_kernarg_segment_ptr 1", "system_sgpr_workgroup_id_x 1"]:
            L.append("  .amdhsa_" + s)
        L.append(".end_amdhsa_kernel")
        txt = "\n".join(L) + "\n"
        import re
        if self.opt("ld01", 0): txt = re.sub(r"(buffer_load[^\n]*) sc1", r"\1 sc0 sc1", txt)
        if self.opt("st01", 0): txt = re.sub(r"(buffer_store[^\n]*) sc1", r"\1 sc0 sc1", txt)
        return txt

    def common_setup(self):
        e = self.e
        e(f"s_mov_b32 s{S_SELLO}, 0x05040100"); e(f"s_mov_b32 s{S_SELHI}, 0x07060302")
        e(f"s_mov_b32 s{S_C}, {hex(f2u(math.log2(math.e) / math.sqrt(128.0)))}")
        e(f"s_mul_i32 s{S_T0}, s3, {CO_W}"); e(f"s_add_u32 s{S_T0}, s{S_T0}, {CO}")
        e(f"v_mul_u32_u24 v{V_COW}, {CO_H}, v24"); e(f"v_lshl_add_u32 v{V_COW}, v25, 7, v{V_COW}"); e(f"v_add_u32 v{V_COW}, s{S_T0}, v{V_COW}")
        e(f"s_lshl_b32 s{S_T0}, s3, 2"); e(f"v_lshlrev_b32 v{V_MLW}, 5, v24"); e(f"v_add_u32 v{V_MLW}, s{S_T0}, v{V_MLW}")
        e("v_and_b32 v26, 7, v24"); e(f"v_lshlrev_b32 v{V_U0}, 5, v26")
        e(f"v_mul_u32_u24 v{V_QR}, 272, v26"); e(f"v_lshl_add_u32 v{V_QR}, v25, 4, v{V_QR}"); e(f"v_add_u32 v{V_QR}, {QOP}, v{V_QR}")
        e(f"s_mul_i32 s{S_T0}, s3, {CO_H}"); e(f"s_add_u32 s{S_T0}, s{S_T0}, {CO}"); e(f"v_lshlrev_b32 v{V_COR}, 3, v0"); e(f"v_add_u32 v{V_COR}, s{S_T0}, v{V_COR}")
        e(f"s_lshl_b32 s{S_T0}, s3, 5"); e(f"v_mov_b32 v{V_MLR}, s{S_T0}")
        e("v_lshrrev_b32 v26, 5, v0"); e(f"v_mul_u32_u24 v{V_QW}, 272, v26"); e("v_and_b32 v26, 31, v0"); e(f"v_lshl_add_u32 v{V_QW}, v26, 3, v{V_QW}"); e(f"v_add_u32 v{V_QW}, {QOP}, v{V_QW}")

    def tiles(self, old, pre_tail):
        e = self.e
        self.read_q(1)
        pt = self.opt("pretouch", 0)
        if pt == 1:
            e(f"s_lshl_b32 s{S_T1}, s3, 20"); e(f"s_lshl_b32 s{S_T2}, s2, 7"); e(f"s_add_u32 s{S_T1}, s{S_T1}, s{S_T2}"); e(f"s_add_u32 s{S_T1}, s{S_T1}, 0x80000")
            self.vm(f"buffer_load_dword v{V_U1}, off, s[{WS}:{WS+3}], s{S_T1} nt", "pt", paced=False)
        if pt == 2:
            e(f"s_lshl_b32 s{S_T1}, s3, 20"); e(f"s_lshl_b32 s{S_T2}, s2, 6"); e(f"s_add_u32 s{S_T1}, s{S_T1}, s{S_T2}")
            e(f"v_lshlrev_b32 v{T[0]}, 14, v0")
            self.vm(f"buffer_load_dword v{V_U1}, v{T[0]}, s[{WS}:{WS+3}], s{S_T1} offen nt", "pt", paced=False)
        e(f"v_lshrrev_b32 v{T[0]}, 3, v0"); e(f"v_lshlrev_b32 v{V_PO}, 12, v{T[0]}"); e(f"v_and_b32 v{T[0]}, 7, v0"); e(f"v_lshl_add_u32 v{V_PO}, v{T[0]}, 4, v{V_PO}")
        e("s_waitcnt lgkmcnt(0)")
        for t in range(3):
            uk, uv = f"K{t}", f"V{t}"
            self.wait(uk)
            self.qk(self.slot[uk]); self.release(uk)
            if not self.issue_next(): e("s_nop 7")
            self.tilemax(t == 0); self.softmax_rest(t == 0)
            self.wait(uv)
            self.perm_mfma8(self.slot[uv], PR, t == 0, True); self.release(uv)
            self.issue_next()
        if old:
            self.read_q(0)
            self.wait("KA")
            e("s_waitcnt lgkmcnt(0)")
            self.qk(self.slot["KA"])
            acc = self.slot["KA"]
            self.read_q(1)
            e("s_nop 3")
            self.tilemax(True); self.softmax_rest(True, T[5], T[6])
            self.xlane("v_add_f32", T[6], T[1], (16, 32))
            e("s_mov_b64 exec, 0xff")
            e(f"ds_write_b32 v{V_MLW}, v{T[5]} offset:{CM}")
            e(f"ds_write_b32 v{V_MLW}, v{T[6]} offset:{CL}")
            e("s_mov_b64 exec, -1")
            self.wait("VA")
            self.perm_mfma8(self.slot["VA"], PR, True, True, acc); self.release("VA")
            if not self.issue_next(): e("s_nop 3")
            self.write_o(0, acc); self.release("KA")
            if self.opt("aearly", 0):
                e(f"v_mov_b32 v{T[1]}, 1")
                e("s_mov_b64 exec, 1"); e(f"ds_add_u32 v{V_FLG}, v{T[1]} offset:{F_AC - FLG}"); e("s_mov_b64 exec, -1")
                self.lds_spin(F_AC, 4)
                self.combine_a(acc); e("s_nop 1"); self.combine_a(acc, 4); e("s_nop 1")
            e("s_waitcnt lgkmcnt(0)")
            self.issue_next()
        self.wait("K3")
        self.qk(self.slot["K3"]); self.release("K3")
        if not self.issue_next(): e("s_nop 7")
        assert not self.seq, self.seq
        assert len(self.free) >= 2, self.free
        R, R2 = self.free[0], self.free[1]
        if old and self.opt("cpf", 0) == 1: self.code_prefetch(R2 + 28)
        self.softmax_common(False, 1, R)
        if old and self.opt("cpf", 0) == 2: self.code_prefetch(R2 + 28)
        e("s_waitcnt lgkmcnt(0)")
        e("s_barrier")
        self.stamp(2)
        self.x_prep(R)
        if not self.opt("aearly", 0): self.combine_a(R2)
        pre_tail()
        self.pv_last("V3", self.slot["V3"], R2, False); self.release("V3")
        self.write_o(1)
        e("s_waitcnt lgkmcnt(0)")
        e("s_barrier")
        self.stamp(7)
        self.o_publish(R)
        self.stamp(8)

    def code_prefetch(self, dst):
        e = self.e
        n = self.opt("cpn", 1)
        lab = self.newlab("pc")
        e("s_getpc_b64 s[70:71]" if not self.stamps else "s_getpc_b64 s[74:75]")
        pc = 70 if not self.stamps else 74
        self.label(lab)
        e(f"s_sub_u32 s{pc}, s{pc}, {lab}-{KNAME}"); e(f"s_subb_u32 s{pc+1}, s{pc+1}, 0")
        e(f"s_bfe_u32 s{S_T1}, s2, 0x30003"); e(f"s_lshl_b32 s{S_T1}, s{S_T1}, 2"); e(f"s_add_u32 s{S_T1}, s{S_T1}, s3"); e(f"s_mul_i32 s{S_T1}, s{S_T1}, {1024*n}")
        e(f"v_add_u32 v{T[5]}, s{S_T1}, v{V_L0}")
        e(f"v_min_u32 v{T[5]}, L_code_end-{KNAME}-{16 + 1024*(n-1)}, v{T[5]}")
        for i in range(n):
            self.vm(f"global_load_dword v{V_U1}, v{T[5]}, s[{pc}:{pc+1}] offset:{1024*i}", "cp", paced=False)
    def mkseq(self, old, isO):
        q = ["K0", "V0", "K1", "V1", "K2", "V2"] + (["KA", "VA"] if old else []) + ["K3", "V3"] + (["WA", "WB"] if isO else [])
        if isO and not old and self.opt("woearly", 1):
            q = ["K0", "V0", "K1", "V1", "K2", "V2", "WA", "WB", "K3", "V3"]
        return q

    def body(self, isO, tail, pre_tail, young_first):
        e = self.e
        p = "o" if isO else "q"
        self.isO = isO
        base_q, base_free = list(self.q), list(self.free)
        e("s_cmp_ge_u32 s3, 4"); e(f"s_cbranch_scc1 L_{p}_young")
        for old in (True, False):
            self.q, self.free, self.slot = list(base_q), list(base_free), dict(self.slot0)
            self.seq = self.mkseq(old, isO); self.old = old
            if not old: self.label(f"L_{p}_young")
            self.pace = self.opt("ppre", 0)
            if old or self.opt("noq", 0):
                while self.issue_next(): pass
            else:
                young_first()
                self.young_prefetch(not isO)
            if isO and not self.opt("gatefirst", 1):
                self.wait("g"); self.gate()
            self.wait_q()
            self.stamp(5)
            self.pace = self.opt("pmain", 0)
            self.tiles(old, pre_tail)
            tail()

    def roleQ(self):
        e = self.e
        e("v_and_b32 v26, 1, v24"); e(f"v_lshlrev_b32 v{V_X}, 11, v26"); e(f"v_lshl_add_u32 v{V_X}, v25, 5, v{V_X}")
        e("v_bfe_u32 v26, v24, 2, 1"); e(f"v_lshl_add_u32 v{V_X}, v26, 4, v{V_X}")
        e("v_lshrrev_b32 v26, 3, v0"); e(f"v_lshlrev_b32 v{V_WA}, 16, v26"); e("v_and_b32 v26, 7, v0"); e(f"v_lshl_add_u32 v{V_WA}, v26, 4, v{V_WA}")
        e(f"s_and_b32 s{S_W}, s{S_J}, 63"); e(f"s_lshl_b32 s{S_W}, s{S_W}, 7"); e(f"s_lshl_b32 s{S_T1}, s3, 20"); e(f"s_add_u32 s{S_W}, s{S_W}, s{S_T1}")
        e(f"s_lshl_b32 s{S_T1}, s3, 8")
        e("s_waitcnt lgkmcnt(0)")
        e("s_cmp_ge_u32 s2, 128")
        e(f"s_cselect_b32 s{W1}, s64, s54"); e(f"s_cselect_b32 s{W1+1}, s65, s55"); e(f"s_mov_b32 s{W1+2}, 0x800000"); e(f"s_mov_b32 s{W1+3}, 0x20000")
        self.srd(XS, 48, 4096); self.srd(DBG, 72, 256)
        e("s_or_b32 s98, s2, s3"); e("s_cmp_lg_u32 s98, 0"); e("s_cbranch_scc1 L_q_non")
        e("s_or_b32 s98, s96, 1"); e("v_mov_b32 v26, s98")
        e("s_mov_b64 exec, 1")
        e(f"buffer_store_dword v26, off, s[{DBG}:{DBG+3}], 0 sc1")
        e("s_mov_b64 exec, -1")
        self.label("L_q_non")
        self.pace = self.opt("pw", 0)
        self.vm(f"buffer_load_dwordx4 v[{QR}:{QR+3}], v{V_X}, s[{XS}:{XS+3}], s{S_T1} offen", "x")
        self.vm(f"buffer_load_dwordx4 v[{QR+4}:{QR+7}], v{V_X}, s[{XS}:{XS+3}], s{S_T1} offen offset:128", "x")
        for u in range(2):
            for ee in range(8):
                r = RING[u] + ee * 4
                e(f"s_add_u32 s{S_T0}, s{S_W}, {(u*64+ee)*8192}")
                self.vm(f"buffer_load_dwordx4 v[{r}:{r+3}], v{V_WA}, s[{W1}:{W1+3}], s{S_T0} offen nt", u)
        self.vm(f"buffer_load_dword v{V_U1}, off, s[{DBG}:{DBG+3}], 0 sc1", "nn", paced=False)
        self.srd(KB, 60, 0x4000000); self.srd(VB, 62, 0x4000000); self.srd(WS, 74, WS_SIZE); self.srd(OUT, 70, 4096)
        self.common_setup()
        self.pub_addrs(True)
        self.srd(KA, 50, 0x4000000); self.srd(VA, 52, 0x4000000)
        if self.stamps: e("s_mov_b64 s[48:49], s[96:97]")
        e("s_barrier")
        self.wait(0)
        self.perm_mfma8(RING[0], QR, True, False)
        e("v_bfe_u32 v26, v0, 3, 1"); e("v_lshlrev_b32 v27, 9, v26"); e("v_and_b32 v26, 7, v0"); e("v_lshl_add_u32 v27, v26, 6, v27")
        e(f"s_lshl_b32 s{S_T0}, s3, 10"); e(f"s_add_u32 s{S_T0}, s{S_T0}, {CO + CO_BR}"); e(f"v_add_u32 v27, s{S_T0}, v27")
        e("v_mov_b32 v28, 1")
        self.wait(1)
        self.perm_mfma8(RING[1], QR + 4, False, False)
        e("s_mov_b32 exec_lo, 0xff0000ff"); e("s_mov_b32 exec_hi, 0")
        e("s_nop 1")
        for dd in range(8):
            if dd == 6: e("s_nop 0")
            e(f"ds_write_b64 v27, v[{OACC+dd*4}:{OACC+dd*4+1}] offset:{dd*8}")
        e("s_mov_b64 exec, 1")
        e(f"ds_add_u32 v{V_FLG}, v28 offset:{F_CNT - FLG}")
        e("s_mov_b64 exec, -1")
        def w0_first():
            e("s_setprio 3")
            e("v_lshrrev_b32 v26, 5, v0"); e("v_lshlrev_b32 v27, 12, v26"); e("v_lshlrev_b32 v28, 14, v26")
            e("v_and_b32 v26, 31, v0"); e("v_lshl_add_u32 v27, v26, 4, v27"); e(f"v_add_u32 v27, {CO + CO_BR}, v27"); e("v_lshl_add_u32 v28, v26, 3, v28")
            e(f"s_lshr_b32 s{S_T0}, s{S_J}, 6"); e(f"s_lshl_b32 s{S_T0}, s{S_T0}, 15"); e(f"s_and_b32 s{S_T1}, s{S_J}, 63"); e(f"s_lshl_b32 s{S_T1}, s{S_T1}, 8")
            e(f"s_add_u32 s{S_T2}, s{S_T0}, s{S_T1}")
            if QG: e(f"s_add_u32 s{S_T2}, s{S_T2}, {QG}")
            self.wait("nn")
            self.get_nonce()
            self.lds_spin(F_CNT, 8)
            for p in range(8):
                e(f"ds_read_b128 v[{OACC+p*4}:{OACC+p*4+3}], v27 offset:{p*512}")
            e("s_waitcnt lgkmcnt(0)")
            for p in (4, 2, 1):
                for q in range(p):
                    for i in (0, 2):
                        e(f"v_pk_add_f32 v[{OACC+q*4+i}:{OACC+q*4+i+1}], v[{OACC+q*4+i}:{OACC+q*4+i+1}], v[{OACC+(q+p)*4+i}:{OACC+(q+p)*4+i+1}]")
            e(f"v_mov_b32 v{OACC+5}, s{S_NONCE}")
            e("s_nop 0")
            e(f"v_permlane32_swap_b32 v{OACC}, v{OACC+1}"); e(f"v_permlane32_swap_b32 v{OACC+2}, v{OACC+3}")
            e(f"v_add_f32 v{OACC}, v{OACC}, v{OACC+1}"); e(f"v_add_f32 v{OACC+2}, v{OACC+2}, v{OACC+3}")
            e(f"v_cvt_pk_bf16_f32 v{OACC+4}, v{OACC}, v{OACC+2}")
            e(f"s_and_b32 s{S_T0}, s3, 3"); e(f"s_lshl_b32 s{S_T0}, s{S_T0}, 4"); e(f"s_lshl_b64 exec, 0xffff, s{S_T0}")
            self.vm(f"buffer_store_dwordx2 v[{OACC+4}:{OACC+5}], v28, s[{WS}:{WS+3}], s{S_T2} offen sc1", "st", paced=False)
            e("s_mov_b64 exec, -1")
            e("s_setprio 0")
            self.stamp(3)
        def pre_tail():
            e(f"s_lshl_b32 s72, s{S_J}, 14"); e(f"s_lshl_b32 s{S_T2}, s3, 11"); e(f"s_add_u32 s72, s72, s{S_T2}"); e(f"s_add_u32 s72, s72, {hex(PF)}")
            e(f"v_and_b32 v{QR}, 7, v0"); e(f"v_lshlrev_b32 v{QR+1}, 3, v{QR}"); e(f"v_bfe_u32 v{QR+2}, v0, 4, 1"); e(f"v_lshl_add_u32 v{QR+2}, v{QR+2}, 2, v{QR+1}")
            e(f"s_lshl_b32 s73, s3, 6"); e(f"s_add_u32 s73, s73, {FR}"); e(f"v_add_u32 v{QR+2}, s73, v{QR+2}")
            e(f"s_lshr_b32 s73, s{S_J}, 3"); e(f"s_lshl_b32 s73, s73, 8")
            e(f"s_and_b32 s{S_T2}, s{S_J}, 1"); e(f"s_lshl_b32 s{S_T2}, s{S_T2}, 7"); e(f"s_add_u32 s73, s73, s{S_T2}")
            e(f"s_bfe_u32 s{S_T2}, s{S_J}, 0x20001"); e(f"s_lshl_b32 s{S_T2}, s{S_T2}, 2"); e(f"s_add_u32 s73, s73, s{S_T2}")
            e(f"v_lshlrev_b32 v{QR+3}, 4, v{QR}")
        def tail():
            done = self.newlab('qdone'); self.resmul = None
            if self.opt("notail", 0):
                self.stamp(9); self.stamp(10); self.stamp_flush(); e("s_endpgm"); return
            R = self.free[0]
            self.mk = [4, 6, 8, 10]
            lds_ = [f"buffer_load_dwordx4 v[{R+4*i}:{R+4*i+3}], v{V_L0}, s[{WS}:{WS+3}], s72 offen offset:{i*1024} sc1" for i in range(2)]
            e(f"v_mov_b32 v{R+1}, s{S_NONCE}"); e(f"v_mov_b32 v{R+3}, s{S_NONCE}")
            e("s_mov_b64 exec, 0xff"); e(f"v_mov_b32 v{R+1}, 0"); e("s_mov_b64 exec, -1")
            self.poll_missing(lds_[:1], [[R + 1, R + 3]], self.opt("presleep", 4), first=False)
            self.stamp(1)
            self.poll_missing(lds_, [[R + 1, R + 3], [R + 5, R + 7]], self.opt("pfsleep", 0))
            e(f"v_add_f32 v{OACC}, v{R}, v{R+4}"); e(f"v_add_f32 v{OACC+1}, v{R+2}, v{R+6}")
            self.stamp(9)
            x, y = OACC, OACC + 1
            e("s_nop 0")
            e(f"v_add_f32_dpp v{x}, v{x}, v{x} row_ror:8 row_mask:0xf bank_mask:0xf")
            e(f"v_add_f32_dpp v{y}, v{y}, v{y} row_ror:8 row_mask:0xf bank_mask:0xf")
            e("s_nop 1")
            e(f"v_permlane16_swap_b32 v{x}, v{y}")
            e(f"v_add_f32 v{x}, v{x}, v{y}")
            self.xlane("v_add_f32", x, y, (32,))
            e("s_mov_b64 exec, 0x00ff00ff")
            e(f"ds_write_b32 v{QR+2}, v{x}")
            e("s_mov_b64 exec, -1")
            e("s_waitcnt lgkmcnt(0)")
            e("s_barrier")
            e("s_cmp_lg_u32 s3, 0"); e(f"s_cbranch_scc1 {done}")
            R = OACC + 8
            for w in range(8):
                e(f"ds_read_b64 v[{R+2*w}:{R+2*w+1}], v{QR+1} offset:{FR + w*64}")
            e("s_waitcnt lgkmcnt(0)")
            for p in (4, 2, 1):
                for q in range(p):
                    e(f"v_pk_add_f32 v[{R+q*2}:{R+q*2+1}], v[{R+q*2}:{R+q*2+1}], v[{R+(q+p)*2}:{R+(q+p)*2+1}]")
            e(f"v_cvt_pk_bf16_f32 v{R}, v{R}, v{R+1}")
            e("s_mov_b64 exec, 0xff")
            e(f"buffer_store_dword v{R}, v{QR+3}, s[{OUT}:{OUT+3}], s73 offen")
            e("s_mov_b64 exec, -1")
            self.label(done)
            self.stamp(10)
            self.stamp_flush()
            e("s_endpgm")


        self.free = [RING[2], RING[3], RING[4], RING[0], RING[1]]; self.slot0 = {}
        self.body(False, tail, pre_tail, w0_first)

    def gate(self):
        e = self.e
        acc, a, b, c, d = T[0], T[1], T[2], T[3], T[4]
        e(f"v_mov_b32 v{acc}, 0")
        e(f"s_mov_b32 s{S_T0}, 0xffff0000")
        for i in range(8):
            x, g = QR + i, QR + 8 + i
            e(f"v_lshlrev_b32 v{a}, 16, v{x}"); e(f"v_lshlrev_b32 v{b}, 16, v{g}")
            e(f"v_and_b32 v{c}, s{S_T0}, v{x}"); e(f"v_and_b32 v{d}, s{S_T0}, v{g}")
            e(f"v_mul_f32 v{a}, v{a}, v{b}"); e(f"v_mul_f32 v{c}, v{c}, v{d}")
            e(f"v_cvt_pk_bf16_f32 v{a}, v{a}, v{c}")
            e(f"v_lshlrev_b32 v{b}, 16, v{a}"); e(f"v_and_b32 v{c}, s{S_T0}, v{a}")
            e(f"v_add_f32 v{acc}, v{acc}, v{b}"); e(f"v_add_f32 v{acc}, v{acc}, v{c}")
        self.dpp("v_add_f32", acc, (1, 2, 4, 8))
        self.xlane("v_add_f32", acc, a, (16, 32))
        e(f"v_cvt_pk_bf16_f32 v{acc}, v{acc}, v{acc}"); e(f"v_lshlrev_b32 v{acc}, 16, v{acc}")
        e(f"v_mul_f32 v{acc}, {hex(f2u(-math.log2(math.e)))}, v{acc}")
        e(f"v_exp_f32 v{acc}, v{acc}"); e("s_nop 0")
        e(f"v_add_f32 v{acc}, 1.0, v{acc}")
        e(f"v_rcp_f32 v{acc}, v{acc}"); e("s_nop 0")
        e(f"v_cvt_pk_bf16_f32 v{acc}, v{acc}, v{acc}"); e(f"v_lshlrev_b32 v{V_GA}, 16, v{acc}")
        e(f"v_sub_f32 v{acc}, 1.0, v{V_GA}")
        e(f"v_cvt_pk_bf16_f32 v{acc}, v{acc}, v{acc}"); e(f"v_lshlrev_b32 v{V_GB}, 16, v{acc}")

    def roleO(self):
        e = self.e
        e(f"s_and_b32 s{S_T1}, s3, 1"); e(f"s_lshl_b32 s{S_T1}, s{S_T1}, 11")
        e(f"v_lshlrev_b32 v{V_X}, 5, v0")
        e(f"v_lshlrev_b32 v{V_WA}, 12, v25"); e(f"v_lshl_add_u32 v{V_WA}, v24, 4, v{V_WA}")
        e(f"s_lshl_b32 s{S_W}, s{S_J}, 16"); e(f"s_lshl_b32 s{S_T2}, s3, 8"); e(f"s_add_u32 s{S_W}, s{S_W}, s{S_T2}")
        e("s_waitcnt lgkmcnt(0)")
        self.srd(XS, 48, 4096); self.srd(GT, 68, 2048); self.srd(KA, 50, 0x4000000); self.srd(VA, 52, 0x4000000)
        self.pace = 0
        self.vm(f"buffer_load_dwordx4 v[{QR}:{QR+3}], v{V_X}, s[{XS}:{XS+3}], s{S_T1} offen", "g")
        self.vm(f"buffer_load_dwordx4 v[{QR+4}:{QR+7}], v{V_X}, s[{XS}:{XS+3}], s{S_T1} offen offset:16", "g")
        self.vm(f"buffer_load_dwordx4 v[{QR+8}:{QR+11}], v{V_X}, s[{GT}:{GT+3}], 0 offen", "g")
        self.vm(f"buffer_load_dwordx4 v[{QR+12}:{QR+15}], v{V_X}, s[{GT}:{GT+3}], 0 offen offset:16", "g")
        self.srd(KB, 60, 0x4000000); self.srd(VB, 62, 0x4000000); self.srd(WS, 74, WS_SIZE); self.srd(DBG, 72, 256)
        self.srd(W1, 56, 0x800000); self.srd(W2, 66, 0x800000)
        if self.stamps: e("s_mov_b64 s[48:49], s[96:97]")
        self.common_setup()
        self.pub_addrs(True)
        e("s_barrier")
        if self.opt("gatefirst", 1):
            self.wait("g"); self.gate()
        def w0_first(): pass
        S_HO, S_HM, S_G1, S_PH = 72, 73, 74, S_W
        H = QR
        def pre_tail():
            br = 1 if self.old else 0
            e(f"s_and_b32 s{S_T0}, s3, 1"); e(f"s_lshl_b32 s{S_T0}, s{S_T0}, 2"); e(f"s_lshr_b32 s{S_T1}, s{S_J}, 5"); e(f"s_add_u32 s{S_T0}, s{S_T0}, s{S_T1}")
            e(f"s_lshl_b32 s{S_HO}, s{S_T0}, 18")
            e(f"s_and_b32 s{S_T1}, s{S_J}, 31"); e(f"s_lshl_b32 s{S_T1}, s{S_T1}, 13"); e(f"s_add_u32 s{S_HO}, s{S_HO}, s{S_T1}")
            e(f"s_bfe_u32 s{S_T1}, s3, 0x10001"); e(f"s_lshl_b32 s{S_T1}, s{S_T1}, 12"); e(f"s_add_u32 s{S_HO}, s{S_HO}, s{S_T1}")
            e(f"s_add_u32 s{S_HO}, s{S_HO}, {hex(PO + br*8*32*8192)}")
            e(f"s_and_b32 s{S_T0}, s3, 1"); e(f"s_lshl_b32 s{S_T0}, s{S_T0}, 6"); e(f"s_bfe_u32 s{S_T1}, s3, 0x10001"); e(f"s_lshl_b32 s{S_T1}, s{S_T1}, 5")
            e(f"s_add_u32 s{S_T0}, s{S_T0}, s{S_T1}")
            e("v_and_b32 v26, 7, v0"); e(f"v_lshlrev_b32 v{H+1}, 2, v26"); e("v_bfe_u32 v26, v0, 4, 1"); e(f"v_lshl_add_u32 v{H+1}, v26, 1, v{H+1}"); e(f"v_add_u32 v{H+1}, s{S_T0}, v{H+1}")
            e("v_bfe_u32 v26, v0, 2, 1"); e(f"v_lshlrev_b32 v{H+2}, 6, v26"); e("v_lshrrev_b32 v26, 4, v0"); e(f"v_lshl_add_u32 v{H+2}, v26, 4, v{H+2}")
            e("v_bfe_u32 v26, v0, 4, 1"); e(f"v_lshlrev_b32 v{H+3}, 20, v26"); e("v_bfe_u32 v26, v0, 3, 1"); e(f"v_lshl_add_u32 v{H+3}, v26, 14, v{H+3}")
            e("v_and_b32 v26, 7, v0"); e(f"v_lshl_add_u32 v{H+3}, v26, 4, v{H+3}")
            e("v_lshrrev_b32 v26, 5, v0"); e(f"v_lshl_add_u32 v{H+3}, v26, 15, v{H+3}")
            e(f"s_lshl_b32 s98, s3, 17"); e(f"s_lshl_b32 s{S_T1}, s{S_J}, 7"); e(f"s_add_u32 s98, s98, s{S_T1}"); e(f"s_add_u32 s98, s98, {hex(PF)}")
            e(f"s_add_u32 s99, s98, 65536")
        def tail():
            if self.opt("notail", 0):
                e("s_waitcnt vmcnt(0)"); self.stamp(3); self.stamp(9); self.stamp(10); self.stamp_flush(); e("s_endpgm"); return
            old = self.old
            F0, F1, F2 = self.free[:3]
            PK = F2 + 16
            WAs, WBs = self.slot["WA"], self.slot["WB"]
            OPR = QR + 8
            D = F2
            self.mk = [4, 6, 8, 10]
            mkO = [f"buffer_load_dwordx4 v[{D+4*i}:{D+4*i+3}], v{V_L0}, s[{WS}:{WS+3}], s{S_HO} offen offset:{1024*i} sc1" for i in range(4)]
            for s in mkO: self.vm(s, "po", paced=False)
            for k in range(2):
                e(f"v_mov_b32 v{PK+4*k+1}, s{S_NONCE}"); e(f"v_mov_b32 v{PK+4*k+3}, s{S_NONCE}")
            e("s_mov_b32 s12, 0"); e("s_mov_b32 s13, -1")
            self.wait("WA")
            for dd in range(8): self.perms(F0 + dd * 4, WAs, dd)
            self.wait("WB")
            for dd in range(8): self.perms(F1 + dd * 4, WBs, dd)
            self.stamp(3)
            dp = lambda op, r, ror: e(f"{op}_dpp v{r}, v{r}, v{r} row_ror:{ror} row_mask:0xf bank_mask:0xf")
            gv = V_GB if old else V_GA
            def gather_reduce(off):
                self.stamp(4)
                self.poll_missing(mkO, [[D + 4 * i + 3] for i in range(4)], self.opt("posleep", 2), first=False)
                self.stamp(9)
                if self.stamps: e(f"s_mov_b32 s70, s{S_CNT}"); e("s_mov_b32 s71, 0")
                M, u, mc, x0, x1, Ls = T[0], T[1], T[2], T[3], T[4], T[5]
                for i in range(4): e(f"v_mov_b32_dpp v{D+4*i+3}, v{D+4*i+2} quad_perm:[0,0,2,2] row_mask:0xf bank_mask:0xf")
                for i in range(4): e(f"v_mov_b32_dpp v{D+4*i+2}, v{D+4*i+2} quad_perm:[1,1,3,3] row_mask:0xf bank_mask:0xf")
                e(f"v_max3_f32 v{M}, v{D+3}, v{D+7}, v{D+11}"); e(f"v_max_f32 v{M}, v{M}, v{D+15}")
                self.dpp("v_max_f32", M, (8,))
                self.xlane("v_max_f32", M, u, (16, 32))
                e(f"v_mul_f32 v{mc}, s{S_C}, v{M}")
                for i in range(4): e(f"v_fma_f32 v{D+4*i+3}, v{D+4*i+3}, s{S_C}, -v{mc}")
                for i in range(4): e(f"v_exp_f32 v{D+4*i+3}, v{D+4*i+3}")
                for i in range(4):
                    op = "v_mul_f32" if i == 0 else "v_fmac_f32"
                    e(f"{op} v{Ls}, v{D+4*i+2}, v{D+4*i+3}"); e(f"{op} v{x0}, v{D+4*i}, v{D+4*i+3}"); e(f"{op} v{x1}, v{D+4*i+1}, v{D+4*i+3}")
                dp("v_add_f32", Ls, 8); dp("v_add_f32", x0, 8); dp("v_add_f32", x1, 8)
                e(f"v_mov_b32 v{u}, v{Ls}"); e("s_nop 0")
                e(f"v_permlane16_swap_b32 v{x0}, v{x1}"); e(f"v_permlane16_swap_b32 v{Ls}, v{u}")
                e(f"v_add_f32 v{x0}, v{x0}, v{x1}"); e(f"v_add_f32 v{Ls}, v{Ls}, v{u}")
                e(f"v_mov_b32 v{x1}, v{x0}"); e(f"v_mov_b32 v{u}, v{Ls}"); e("s_nop 0")
                e(f"v_permlane32_swap_b32 v{x0}, v{x1}"); e(f"v_permlane32_swap_b32 v{Ls}, v{u}")
                e(f"v_add_f32 v{Ls}, v{Ls}, v{u}"); e(f"v_add_f32 v{x0}, v{x0}, v{x1}")
                e(f"v_rcp_f32 v{Ls}, v{Ls}")
                e(f"v_mul_f32 v{x0}, v{x0}, v{gv}")
                e(f"v_mul_f32 v{x0}, v{x0}, v{Ls}")
                e(f"v_cvt_pk_bf16_f32 v{x0}, v{x0}, v{x0}")
                e("s_mov_b64 exec, 0x00ff00ff")
                e(f"ds_write_b16 v{H+1}, v{x0} offset:{off}")
                e("s_mov_b64 exec, -1")
            if self.opt("bs1", 0):
                if not old:
                    gather_reduce(OB)
                    e("s_waitcnt lgkmcnt(0)")
                e("s_barrier")
                e(f"ds_read_b128 v[{OPR}:{OPR+3}], v{H+2} offset:{OB}")
                e("s_waitcnt lgkmcnt(0)")
                for dd in range(8): self.mfma(OACC + dd * 4, OPR, F0 + dd * 4, None)
                if old:
                    gather_reduce(OB + 128)
                    e("s_waitcnt lgkmcnt(0)")
                e("s_barrier")
                self.stamp(1)
                e(f"ds_read_b128 v[{OPR}:{OPR+3}], v{H+2} offset:{OB+128}")
                e("s_waitcnt lgkmcnt(0)")
                for dd in range(8): self.mfma(OACC + dd * 4, OPR, F1 + dd * 4, OACC + dd * 4)
            else:
                gather_reduce(OB + 128 if old else OB)
                e("s_waitcnt lgkmcnt(0)")
                e("s_barrier")
                self.stamp(1)
                e(f"ds_read_b128 v[{OPR}:{OPR+3}], v{H+2} offset:{OB}")
                e(f"ds_read_b128 v[{OPR+4}:{OPR+7}], v{H+2} offset:{OB+128}")
                e("s_waitcnt lgkmcnt(1)")
                for dd in range(4): self.mfma(OACC + dd * 4, OPR, F0 + dd * 4, None)
                e("s_waitcnt lgkmcnt(0)")
                for dd in range(4): self.mfma(OACC + dd * 4, OPR + 4, F1 + dd * 4, OACC + dd * 4)
                for dd in range(4, 8): self.mfma(OACC + dd * 4, OPR, F0 + dd * 4, None)
                for dd in range(4, 8): self.mfma(OACC + dd * 4, OPR + 4, F1 + dd * 4, OACC + dd * 4)
            for k in range(2):
                if k == 1 or self.opt("bs1", 0): e("s_nop 4" if k == 1 else "s_nop 3")
                e(f"v_cndmask_b32 v{PK+4*k}, v{OACC+16*k}, v{OACC+16*k+8}, s[12:13]"); e(f"v_cndmask_b32 v{PK+4*k+2}, v{OACC+16*k+4}, v{OACC+16*k+12}, s[12:13]")
                e(f"buffer_store_dwordx4 v[{PK+4*k}:{PK+4*k+3}], v{H+3}, s[{WS}:{WS+3}], s{98+k} offen sc1")
            self.stamp(10)
            self.stamp_flush()

            e("s_endpgm")
        self.free = list(RING); self.slot0 = {}
        self.body(True, tail, pre_tail, w0_first)

if __name__ == "__main__":
    out = sys.argv[1]
    st = "--stamps" in sys.argv
    opts = dict(a[2:].split("=") for a in sys.argv[2:] if a.startswith("--") and "=" in a)
    open(out, "w").write(G(stamps=st, opts=opts).build())
```

```python
import sys, struct, math
KNAME = "gated_mix__sliding_block_cached__gqa_block_cached__decode_kernel"
def f2u(x): return struct.unpack("<I", struct.pack("<f", x))[0]

QG, PML, H1, H2, PO, PF, STAMP = 0, 0x10000, 0x20000, 0x40000, 0x100000, 0x600000, 0x800000
HREP = 0x1100
WS_SIZE = 0x1000000
CM, CL, OB, FR, FLG, QOP, CO = 0, 512, 1024, 1280, 1792, 2048, 6656
F_CNT, F_QC, F_NON, F_AC = FLG, FLG + 4, FLG + 8, FLG + 12
CO_BR, CO_W, CO_H = 33792, 4224, 528
LDS_SIZE = 74240
KB, VB, KA, VA, W1, W2, WS, XS, GT, OUT, DBG = 4, 8, 12, 16, 20, 24, 28, 32, 36, 40, 44
S_SELLO, S_SELHI, S_C, S_NONCE, S_GRP, S_IDX, S_SPLIT, S_BB, S_AB = 76, 77, 78, 79, 80, 81, 82, 83, 84
S_T0, S_T1, S_T2, S_T3, S_CNT, S_J, S_W = 85, 86, 87, 88, 89, 90, 91
S_POB, S_POA, S_MLB, S_MLA = 92, 93, 94, 95
S_OK, S_QA, S_QB = 99, 100, 101
V_K0, V_K1, V_L0, V_L1 = 1, 2, 3, 4
V_COW, V_MLW, V_QR, V_COR, V_MLR, V_FLG, V_QW, V_X, V_WA, V_GA, V_GB = 5, 6, 7, 8, 9, 10, 11, 12, 13, 14, 15
V_PO = V_X
HA = [1, 1, 2, 4, 13]
V_HR = V_QW
S_H1 = 97
WSET = [16, 20]
T = list(range(24, 32))
OACC, QR, SR, PR, V_M, V_LS, V_U0, V_U1 = 32, 64, 80, 88, 92, 93, 94, 95
RING = [96 + 32 * i for i in range(5)]
QRX = 16
S_NA = 24
SPIN_MAX = 20000

class G:
    def __init__(self, stamps=False, opts=None):
        self.L = []; self.stamps = stamps; self.lab = 0
        self.o = opts or {}
        self.q = []
        self.pace = 0; self.resmul = None
    def opt(self, k, d): return int(self.o.get(k, d))
    def e(self, s): self.L.append("    " + s)
    def label(self, s): self.L.append(s + ":")
    def newlab(self, p):
        self.lab += 1; return f"L_{p}{self.lab}"
    def srd(self, d, b, n):
        self.e(f"s_mov_b32 s{d}, s{b}"); self.e(f"s_mov_b32 s{d+1}, s{b+1}")
        self.e(f"s_mov_b32 s{d+2}, {hex(n)}"); self.e(f"s_mov_b32 s{d+3}, 0x20000")
    def stamp(self, i):
        if self.stamps: self.e(f"s_memrealtime s[{48+2*i}:{49+2*i}]")
    def stamp_flush(self):
        if not self.stamps: return
        e = self.e
        e("s_waitcnt lgkmcnt(0)")
        e("s_lshl_b32 s92, s2, 3"); e("s_add_u32 s92, s92, s3"); e("s_lshl_b32 s92, s92, 7"); e(f"s_add_u32 s92, s92, {hex(STAMP)}")
        e("s_mov_b64 exec, 1")
        for i in range(12):
            e(f"v_mov_b32 v16, s{48+2*i}"); e(f"v_mov_b32 v17, s{49+2*i}")
            e(f"buffer_store_dwordx2 v[16:17], off, s[{WS}:{WS+3}], s92 offset:{i*8}")
            e("s_nop 0")
        e("s_mov_b64 exec, -1")
    def vm(self, s, tag, paced=True):
        if paced and self.pace and len(self.q) >= self.pace:
            self.e(f"s_waitcnt vmcnt({self.pace-1})")
        self.e(s); self.q.append(tag)
    def wait(self, tag, keep=0):
        idx = [i for i, t in enumerate(self.q) if t == tag]
        if not idx: return
        last = idx[len(idx) - 1 - keep]
        n = len(self.q) - 1 - last
        assert n <= 63
        self.e(f"s_waitcnt vmcnt({n})")
        self.q = self.q[last + 1:]
    def k_unit(self, r, srd, soff, tag):
        for j in range(8):
            t, jj = j >> 2, j & 3
            self.vm(f"buffer_load_dwordx4 v[{r+j*4}:{r+j*4+3}], v{V_K1 if t else V_K0}, s[{srd}:{srd+3}], s{soff} offen offset:{jj*64} nt", tag)
    def v_unit(self, r, srd, soff, tag):
        if self.o.get("map", "il") == "col8":
            for j in range(8):
                if j: self.e(f"s_add_u32 s{S_T1}, s{soff}, {j*8192}")
                self.vm(f"buffer_load_dwordx4 v[{r+j*4}:{r+j*4+3}], v{V_L0}, s[{srd}:{srd+3}], s{S_T1 if j else soff} offen nt", tag)
            return
        for j in range(8):
            self.vm(f"buffer_load_dwordx4 v[{r+j*4}:{r+j*4+3}], v{V_L1 if j >= 4 else V_L0}, s[{srd}:{srd+3}], s{soff} offen offset:{(j&3)*1024} nt", tag)
    def issue_next(self):
        if not self.seq or not self.free: return False
        u = self.seq.pop(0); r = self.free.pop(0); self.slot[u] = r
        if u[0] == "W":
            self.wo_unit(r, W1 if u == "WA" else W2, u)
        elif u[1] == "H":
            srd = KA if u[0] == "K" else VA
            for j in range(4):
                if u[0] == "K": self.vm(f"buffer_load_dwordx4 v[{r+j*4}:{r+j*4+3}], v{V_K0}, s[{srd}:{srd+3}], s{S_AB} offen offset:{j*64} nt", u)
                else: self.vm(f"buffer_load_dwordx4 v[{r+j*4}:{r+j*4+3}], v{V_L0}, s[{srd}:{srd+3}], s{S_AB} offen offset:{j*1024} nt", u)
        elif u[1] == "A":
            if u[0] == "K": self.k_unit(r, KA, S_AB, u)
            else: self.v_unit(r, VA, S_AB, u)
        else:
            t = int(u[1])
            self.e(f"s_add_u32 s{S_T0}, s{S_BB}, {hex(t * 0x200000)}")
            if u[0] == "K": self.k_unit(r, KB, S_T0, u)
            else: self.v_unit(r, VB, S_T0, u)
        return True
    def release(self, u):
        self.free.append(self.slot[u])
    def wo_unit(self, r, srd, tag):
        for ee in range(8):
            off = ((ee & 3) * 8 + (ee >> 2)) * 2048
            self.e(f"s_add_u32 s{S_T0}, s{S_W}, {off & ~4095}")
            self.vm(f"buffer_load_dwordx4 v[{r+ee*4}:{r+ee*4+3}], v{V_WA}, s[{srd}:{srd+3}], s{S_T0} offen offset:{off & 4095} nt", tag)
    def perm1(self, dst, src, dd, p):
        sel = S_SELHI if dd & 1 else S_SELLO
        self.e(f"v_perm_b32 v{dst+p}, v{src+(2*p+1)*4+(dd>>1)}, v{src+(2*p)*4+(dd>>1)}, s{sel}")
    def perms(self, dst, src, dd):
        for p in range(4): self.perm1(dst, src, dd, p)
    def mfma(self, d, a, b, c):
        cs = "0" if c is None else f"v[{c}:{c+3}]"
        self.e(f"v_mfma_f32_16x16x32_bf16 v[{d}:{d+3}], v[{a}:{a+3}], v[{b}:{b+3}], {cs}")
    def perm_mfma8(self, src, other, first, w_is_a, acc=OACC):
        def mm(dd):
            w = WSET[dd & 1]; d = acc + dd * 4
            if w_is_a: self.mfma(d, w, other, None if first else d)
            else: self.mfma(d, other, w, None if first else d)
        self.perms(WSET[0], src, 0)
        for dd in range(1, 8):
            self.perms(WSET[dd & 1], src, dd)
            mm(dd - 1)
        self.e("s_nop 0")
        mm(7)
    def pv_last(self, tag, src, dst, first):
        self.wait(tag, keep=2)
        for p in range(3):
            for dd in range(8): self.perm1(dst + dd * 4, src, dd, p)
        self.wait(tag)
        self.stamp(6)
        for dd in range(8):
            self.perm1(dst + dd * 4, src, dd, 3)
            if dd >= 2: self.mfma(OACC + (dd-2) * 4, dst + (dd-2) * 4, PR, None if first else OACC + (dd-2) * 4)
        self.e("s_nop 0")
        for dd in (6, 7): self.mfma(OACC + dd * 4, dst + dd * 4, PR, None if first else OACC + dd * 4)
    def qk(self, r):
        for jj in range(4):
            self.mfma(SR, r + jj * 4, QR + jj * 4, None if jj == 0 else SR)
            self.mfma(SR + 4, r + 16 + jj * 4, QR + jj * 4, None if jj == 0 else SR + 4)
    def xlane(self, op, t, u, kinds):
        for k in kinds:
            self.e(f"v_mov_b32 v{u}, v{t}"); self.e("s_nop 1")
            self.e(f"v_permlane{k}_swap_b32 v{t}, v{u}")
            self.e(f"{op} v{t}, v{t}, v{u}")
    def dpp(self, op, t, rors):
        for r in rors:
            self.e("s_nop 1")
            self.e(f"{op}_dpp v{t}, v{t}, v{t} row_ror:{r} row_mask:0xf bank_mask:0xf")
    def tilemax(self, first):
        e = self.e; t, u = T[0], T[1]; S = SR
        e(f"v_max3_f32 v{t}, v{S}, v{S+1}, v{S+2}"); e(f"v_max3_f32 v{t}, v{t}, v{S+3}, v{S+4}")
        e(f"v_max3_f32 v{t}, v{t}, v{S+5}, v{S+6}")
        if first: e(f"v_max_f32 v{t}, v{t}, v{S+7}")
        else: e(f"v_max3_f32 v{t}, v{t}, v{S+7}, v{V_M}")
        self.xlane("v_max_f32", t, u, (16, 32))
    def softmax_rest(self, first, V_M=V_M, V_LS=V_LS):
        e = self.e; t, u, mc, al = T[0], T[1], T[2], T[4]; S = SR
        e(f"v_mul_f32 v{mc}, s{S_C}, v{t}")
        if not first:
            e(f"v_fma_f32 v{al}, v{V_M}, s{S_C}, -v{mc}")
            e(f"v_exp_f32 v{al}, v{al}")
        e(f"v_mov_b32 v{V_M}, v{t}")
        for i in range(8): e(f"v_fma_f32 v{S+i}, v{S+i}, s{S_C}, -v{mc}")
        for i in range(8): e(f"v_exp_f32 v{S+i}, v{S+i}")
        if not first:
            for i in range(16):
                e(f"v_pk_mul_f32 v[{OACC+2*i}:{OACC+2*i+1}], v[{OACC+2*i}:{OACC+2*i+1}], v[{al}:{al+1}] op_sel_hi:[1,0]")
        else:
            e("s_nop 0")
        e(f"v_add_f32 v{t}, v{S}, v{S+1}"); e(f"v_add_f32 v{u}, v{S+2}, v{S+3}")
        e(f"v_add_f32 v{t}, v{t}, v{S+4}"); e(f"v_add_f32 v{u}, v{u}, v{S+5}")
        e(f"v_add_f32 v{t}, v{t}, v{S+6}"); e(f"v_add_f32 v{u}, v{u}, v{S+7}")
        for p in range(4): e(f"v_cvt_pk_bf16_f32 v{PR+p}, v{S+2*p}, v{S+2*p+1}")
        e(f"v_add_f32 v{t}, v{t}, v{u}")
        if first: e(f"v_mov_b32 v{V_LS}, v{t}")
        else: e(f"v_fma_f32 v{V_LS}, v{V_LS}, v{al}, v{t}")
    def softmax_common(self, first, br, tmp, hook=None, rescale_only=False):
        e = self.e
        if not rescale_only: self.tilemax(first)
        e("s_mov_b64 exec, 0xff")
        e(f"ds_write_b32 v{V_MLW}, v{T[0]} offset:{CM + br*256}")
        e("s_mov_b64 exec, -1")
        e("s_waitcnt lgkmcnt(0)")
        if not (br == 0 and self.opt("noabar", 0)): e("s_barrier")
        e(f"ds_read_b128 v[{tmp}:{tmp+3}], v{V_U0} offset:{CM + br*256}")
        e(f"ds_read_b128 v[{tmp+4}:{tmp+7}], v{V_U0} offset:{CM + br*256 + 16}")
        e(f"ds_read_b128 v[{tmp+8}:{tmp+11}], v{V_MLR} offset:{CM + br*256}")
        e(f"ds_read_b128 v[{tmp+12}:{tmp+15}], v{V_MLR} offset:{CM + br*256 + 16}")
        if hook: hook()
        e("s_waitcnt lgkmcnt(2)")
        t = T[0]
        e(f"v_max3_f32 v{t}, v{tmp}, v{tmp+1}, v{tmp+2}"); e(f"v_max3_f32 v{t}, v{t}, v{tmp+3}, v{tmp+4}")
        e(f"v_max3_f32 v{t}, v{t}, v{tmp+5}, v{tmp+6}"); e(f"v_max_f32 v{t}, v{t}, v{tmp+7}")
        if rescale_only:
            al = T[4]
            e(f"v_sub_f32 v{al}, v{V_M}, v{t}"); e(f"v_mul_f32 v{al}, s{S_C}, v{al}"); e(f"v_exp_f32 v{al}, v{al}"); e("s_nop 0")
            e(f"v_mul_f32 v{V_LS}, v{V_LS}, v{al}")
            for i in range(16):
                e(f"v_pk_mul_f32 v[{OACC+2*i}:{OACC+2*i+1}], v[{OACC+2*i}:{OACC+2*i+1}], v[{al}:{al+1}] op_sel_hi:[1,0]")
        else:
            self.softmax_rest(first)
            self.xlane("v_add_f32", V_LS, T[1], (16, 32))
        e("s_mov_b64 exec, 0xff")
        e(f"ds_write_b32 v{V_MLW}, v{V_LS} offset:{CL + br*256}")
        e("s_mov_b64 exec, -1")
        e("s_waitcnt lgkmcnt(1)")
        m = tmp + 8
        e(f"v_max3_f32 v{tmp+18}, v{m}, v{m+1}, v{m+2}"); e(f"v_max3_f32 v{tmp+18}, v{tmp+18}, v{m+3}, v{m+4}")
        e(f"v_max3_f32 v{tmp+18}, v{tmp+18}, v{m+5}, v{m+6}"); e(f"v_max_f32 v{tmp+18}, v{tmp+18}, v{m+7}")
        e(f"v_mov_b32 v{tmp+19}, s{S_NONCE}")
        e(f"v_and_b32 v{tmp+16}, 1, v0"); e(f"v_cmp_eq_u32 vcc, 1, v{tmp+16}")
    def write_o(self, br, OACC=OACC):
        e = self.e
        e("s_mov_b32 exec_lo, 0x00ff00ff"); e("s_mov_b32 exec_hi, 0x00ff00ff")
        for dd in range(8):
            e(f"ds_write_b128 v{V_COW}, v[{OACC+dd*4}:{OACC+dd*4+3}] offset:{br*CO_BR + dd*16}")
        e("s_mov_b64 exec, -1")
    def read_q(self, br):
        for jj in range(4):
            self.e(f"ds_read_b128 v[{QR+jj*4}:{QR+jj*4+3}], v{V_QR} offset:{br*2176 + jj*64}")
    def o_publish(self, R):
        e = self.e
        l = R + 20
        e(f"ds_read_b128 v[{l}:{l+3}], v{V_MLR} offset:{CL + 256}"); e(f"ds_read_b128 v[{l+4}:{l+7}], v{V_MLR} offset:{CL + 256 + 16}")
        for w in range(8):
            e(f"ds_read_b64 v[{R+2*w}:{R+2*w+1}], v{V_COR} offset:{CO_BR + w*CO_W}")
        P = R + 16
        pk = lambda d, x, y: e(f"v_pk_add_f32 v[{d}:{d+1}], v[{x}:{x+1}], v[{y}:{y+1}]")
        e("s_waitcnt lgkmcnt(8)")
        pk(l, l, l + 2); pk(l + 4, l + 4, l + 6); pk(l, l, l + 4)
        e("s_waitcnt lgkmcnt(4)")
        pk(R, R, R + 2); pk(R + 4, R + 4, R + 6)
        e(f"v_add_f32 v{l}, v{l}, v{l+1}")
        e("s_waitcnt lgkmcnt(0)")
        pk(R + 8, R + 8, R + 10); pk(R + 12, R + 12, R + 14)
        pk(R, R, R + 4); pk(R + 8, R + 8, R + 12)
        e(f"v_cndmask_b32 v{R+18}, v{R+18}, v{l}, vcc")
        pk(P, R, R + 8)
        self.vm(f"buffer_store_dwordx4 v[{P}:{P+3}], v{V_PO}, s[{WS}:{WS+3}], s{S_POB} offen sc1", "st", paced=False)
    def combine_a(self, R, hoff, P, na):
        e = self.e
        if na == 4: m, l, o = R, R + 4, R + 8
        else: m, l, o = SR, QRX, R
        M, mc = R + 16, T[2]
        for i in range(na // 4):
            e(f"ds_read_b128 v[{m+4*i}:{m+4*i+3}], v{V_MLR} offset:{CM + hoff*32 + 16*i}")
        for i in range(na // 4):
            e(f"ds_read_b128 v[{l+4*i}:{l+4*i+3}], v{V_MLR} offset:{CL + hoff*32 + 16*i}")
        for w in range(na): e(f"ds_read_b64 v[{o+2*w}:{o+2*w+1}], v{V_COR} offset:{w*CO_W + hoff*CO_H}")
        e(f"v_mov_b32 v{P+3}, s{S_NONCE}")
        e(f"v_and_b32 v{M+1}, 1, v0"); e(f"v_cmp_eq_u32 vcc, 1, v{M+1}")
        e(f"s_waitcnt lgkmcnt({na + na//4})")
        e(f"v_max3_f32 v{M}, v{m}, v{m+1}, v{m+2}"); e(f"v_max_f32 v{M}, v{M}, v{m+3}")
        if na == 8:
            e(f"v_max3_f32 v{M}, v{M}, v{m+4}, v{m+5}"); e(f"v_max3_f32 v{M}, v{M}, v{m+6}, v{m+7}")
        e(f"v_mul_f32 v{mc}, s{S_C}, v{M}")
        for w in range(na): e(f"v_fma_f32 v{m+w}, v{m+w}, s{S_C}, -v{mc}")
        for w in range(na): e(f"v_exp_f32 v{m+w}, v{m+w}")
        e("s_waitcnt lgkmcnt(0)")
        e(f"v_mul_f32 v{P}, v{m}, v{o}"); e(f"v_mul_f32 v{P+1}, v{m}, v{o+1}"); e(f"v_mul_f32 v{M+2}, v{m}, v{l}")
        for w in range(1, na):
            e(f"v_fmac_f32 v{P}, v{m+w}, v{o+2*w}"); e(f"v_fmac_f32 v{P+1}, v{m+w}, v{o+2*w+1}"); e(f"v_fmac_f32 v{M+2}, v{m+w}, v{l+w}")
        e(f"v_cndmask_b32 v{P+2}, v{M}, v{M+2}, vcc")
    def a_tile(self, half):
        e = self.e
        uk, uv = ("KH", "VH") if half else ("KA", "VA")
        self.read_q(0)
        self.wait(uk)
        e("s_waitcnt lgkmcnt(0)")
        r = self.slot[uk]
        if half:
            for jj in range(4): self.mfma(SR, r + jj * 4, QR + jj * 4, None if jj == 0 else SR)
            for i in range(4): e(f"v_mov_b32 v{SR+4+i}, 0xff7fffff")
        else:
            self.qk(r)
        acc = r
        self.read_q(1)
        e("s_nop 3")
        self.tilemax(True); self.softmax_rest(True, T[5], T[6])
        self.xlane("v_add_f32", T[6], T[1], (16, 32))
        e("s_mov_b64 exec, 0xff")
        e(f"ds_write_b32 v{V_MLW}, v{T[5]} offset:{CM}")
        e(f"ds_write_b32 v{V_MLW}, v{T[6]} offset:{CL}")
        e("s_mov_b64 exec, -1")
        if half:
            for i in range(16): e(f"v_mov_b32 v{self.slot[uv]+16+i}, 0")
        self.wait(uv)
        self.perm_mfma8(self.slot[uv], PR, True, True, acc); self.release(uv)
        if not self.issue_next(): e("s_nop 3")
        self.write_o(0, acc); self.release(uk)
        e(f"v_mov_b32 v{T[1]}, 1")
        e("s_mov_b64 exec, 1"); e(f"ds_add_u32 v{V_FLG}, v{T[1]} offset:{F_AC - FLG}"); e("s_mov_b64 exec, -1")
        e("s_waitcnt lgkmcnt(0)")
        self.issue_next()
    def pub_addrs(self, with_a):
        e = self.e
        for br, sp, po, ml in ((1, S_SPLIT, S_POB, S_MLB), (0, S_SPLIT, S_POA, S_MLA)):
            if br == 0 and not with_a: continue
            e(f"s_lshl_b32 s{po}, s{S_GRP}, 3"); e(f"s_add_u32 s{po}, s{po}, s3"); e(f"s_lshl_b32 s{po}, s{po}, 15")
            e(f"s_lshl_b32 s{S_T1}, s{sp}, 7"); e(f"s_add_u32 s{po}, s{po}, s{S_T1}"); e(f"s_add_u32 s{po}, s{po}, {hex(PO + br*8*32*8192)}")
    def check(self, tags):
        e = self.e; acc = T[7]
        e(f"v_xor_b32 v{acc}, s{S_NONCE}, v{tags[0]}")
        for t in tags[1:]:
            e(f"v_xor_b32 v{T[6]}, s{S_NONCE}, v{t}"); e(f"v_or_b32 v{acc}, v{acc}, v{T[6]}")
        e(f"v_cmp_ne_u32 vcc, 0, v{acc}")
    def poll(self, loads, tags, sleep=1, pre_issued=False):
        e = self.e
        lp, ok, chk = self.newlab("poll"), self.newlab("ok"), self.newlab("chk")
        e(f"s_mov_b32 s{S_CNT}, 0")
        if pre_issued: e(f"s_branch {chk}")
        self.label(lp)
        for s in loads: e(s)
        e("s_waitcnt vmcnt(0)")
        self.label(chk)
        self.check(tags)
        e(f"s_add_u32 s{S_CNT}, s{S_CNT}, 1")
        e(f"s_cbranch_vccz {ok}")
        e(f"s_cmp_gt_u32 s{S_CNT}, {SPIN_MAX}")
        e(f"s_cbranch_scc1 {ok}")
        if sleep: e(f"s_sleep {sleep}")
        e(f"s_branch {lp}")
        self.label(ok)
    def poll_pipe(self, mk, nreg, sets, first_issued=0):
        e = self.e
        nl = len(mk(sets[0])); ns = len(sets)
        lp, done = self.newlab("pp"), self.newlab("ppdone")
        oks = [self.newlab("ppok") for _ in sets]
        def cp(b):
            if self.resmul is None:
                e(f"v_add_f32 v{self.res}, v{b}, v{b+4}"); e(f"v_add_f32 v{self.res+1}, v{b+2}, v{b+6}")
            else:
                for i, w in enumerate(self.resmul):
                    op = "v_mul_f32" if i == 0 else "v_fmac_f32"
                    e(f"{op} v{self.res}, v{b+4*i}, v{w}"); e(f"{op} v{self.res+1}, v{b+4*i+2}, v{w}")
        e(f"s_mov_b32 s{S_CNT}, 0")
        for i in range(first_issued, ns):
            for s in mk(sets[i]): e(s)
            if i < ns - 1: e(f"s_sleep {self.opt('ppsleep', 2)}")
        self.label(lp)
        for i in range(ns):
            e(f"s_waitcnt vmcnt({(nl + self.opt('ppinv', 0)) * (ns - 1)})")
            self.check([sets[i] + 1 + 2 * k for k in range(nreg // 2)])
            e(f"s_cbranch_vccz {oks[i]}")
            if self.opt("ppinv", 0): e("buffer_inv sc1")
            if self.opt("ppgap", 0): e(f"s_sleep {self.opt('ppgap', 0)}")
            for s in mk(sets[i]): e(s)
        e(f"s_add_u32 s{S_CNT}, s{S_CNT}, 1")
        e(f"s_cmp_gt_u32 s{S_CNT}, {SPIN_MAX}")
        e(f"s_cbranch_scc0 {lp}")
        for i in range(ns - 1, 0, -1):
            self.label(oks[i])
            cp(sets[i])
            e(f"s_branch {done}")
        self.label(oks[0])
        cp(sets[0])
        self.label(done)
    def poll_missing(self, loads, tags, sleep, first=True, hook=None):
        e = self.e
        n = len(loads)
        lp, done = self.newlab("pm"), self.newlab("pmdone")
        MK = [60, 62, 64, 66] if not self.stamps else [40, 42, 36, 38]
        MK = self.mk
        e(f"s_mov_b32 s{S_CNT}, 0")
        if first:
            for s_ in loads: e(s_)
        self.label(lp)
        e("s_waitcnt vmcnt(0)")
        for i in range(n):
            tg = tags[i]
            if len(tg) == 1:
                e(f"v_cmp_ne_u32 s[{MK[i]}:{MK[i]+1}], s{S_NONCE}, v{tg[0]}")
            else:
                e(f"v_xor_b32 v{T[6]}, s{S_NONCE}, v{tg[0]}"); e(f"v_xor_b32 v{T[7]}, s{S_NONCE}, v{tg[1]}"); e(f"v_or_b32 v{T[6]}, v{T[6]}, v{T[7]}")
                e(f"v_cmp_ne_u32 s[{MK[i]}:{MK[i]+1}], 0, v{T[6]}")
        if n == 1: e(f"s_or_b64 vcc, s[{MK[0]}:{MK[0]+1}], s[{MK[0]}:{MK[0]+1}]")
        else:
            e(f"s_or_b64 vcc, s[{MK[0]}:{MK[0]+1}], s[{MK[1]}:{MK[1]+1}]")
            for i in range(2, n): e(f"s_or_b64 vcc, vcc, s[{MK[i]}:{MK[i]+1}]")
        e(f"s_cbranch_scc0 {done}")
        e(f"s_add_u32 s{S_CNT}, s{S_CNT}, 1")
        e(f"s_cmp_gt_u32 s{S_CNT}, {SPIN_MAX}"); e(f"s_cbranch_scc1 {done}")
        if sleep: e(f"s_sleep {sleep}")
        for i in range(n):
            sk = self.newlab("pms")
            e(f"s_mov_b64 exec, s[{MK[i]}:{MK[i]+1}]")
            e(f"s_cbranch_execz {sk}")
            e(loads[i])
            self.label(sk)
        e("s_mov_b64 exec, -1")
        if hook: hook()
        e(f"s_branch {lp}")
        self.label(done)
    def lds_spin(self, off, target=None, dst=S_T3):
        if self.opt("noq", 0): return
        e = self.e
        lp, ok = self.newlab("ls"), self.newlab("lsok")
        e(f"s_mov_b32 s{S_CNT}, 0")
        self.label(lp)
        e(f"ds_read_b32 v{T[7]}, v{V_FLG} offset:{off - FLG}")
        e("s_waitcnt lgkmcnt(0)")
        e(f"v_readfirstlane_b32 s{dst}, v{T[7]}")
        e(f"s_add_u32 s{S_CNT}, s{S_CNT}, 1")
        if target is None: e(f"s_cmp_lg_u32 s{dst}, 0")
        else: e(f"s_cmp_eq_u32 s{dst}, {target}")
        e(f"s_cbranch_scc1 {ok}")
        e(f"s_cmp_gt_u32 s{S_CNT}, {SPIN_MAX*50}")
        e(f"s_cbranch_scc1 {ok}")
        e("s_sleep 1")
        e(f"s_branch {lp}")
        self.label(ok)
    def get_nonce(self):
        e = self.e
        lp, ok = self.newlab("nn"), self.newlab("nnok")
        e(f"s_mov_b32 s{S_CNT}, 0")
        self.label(lp)
        e(f"v_readfirstlane_b32 s{S_NONCE}, v{V_U1}")
        e(f"s_add_u32 s{S_CNT}, s{S_CNT}, 1")
        e(f"s_cmp_lg_u32 s{S_NONCE}, 0")
        e(f"s_cbranch_scc1 {ok}")
        e(f"s_cmp_gt_u32 s{S_CNT}, {SPIN_MAX}")
        e(f"s_cbranch_scc1 {ok}")
        e(f"buffer_load_dword v{V_U1}, off, s[{DBG}:{DBG+3}], 0 sc1")
        e("s_waitcnt vmcnt(0)")
        e(f"s_branch {lp}")
        self.label(ok)
    def qpoll_loads(self):
        return [f"buffer_load_dwordx4 v[{OACC}:{OACC+3}], v{V_L0}, s[{WS}:{WS+3}], s{S_QB} offen sc1",
                f"buffer_load_dwordx4 v[{OACC+4}:{OACC+7}], v{V_L0}, s[{WS}:{WS+3}], s{S_QA} offen sc1"]
    def qcommit(self):
        e = self.e
        e(f"v_mov_b32 v{OACC+1}, v{OACC+2}"); e(f"v_mov_b32 v{OACC+5}, v{OACC+6}")
        e(f"v_mov_b32 v{T[0]}, s{S_NONCE}"); e(f"v_mov_b32 v{T[1]}, 1")
        e(f"ds_write_b64 v{V_QW}, v[{OACC}:{OACC+1}] offset:2176")
        e(f"ds_write_b64 v{V_QW}, v[{OACC+4}:{OACC+5}]")
        e("s_mov_b64 exec, 1")
        e(f"ds_write_b32 v{V_FLG}, v{T[0]} offset:{F_NON - FLG}")
        e(f"ds_add_u32 v{V_FLG}, v{T[1]} offset:{F_QC - FLG}")
        e("s_mov_b64 exec, -1")
        e(f"s_mov_b32 s{S_OK}, 1")
        self.stamp(4)
    def qcheck(self):
        e = self.e
        skip = self.newlab("qskip")
        e(f"s_cmp_eq_u32 s{S_OK}, 1"); e(f"s_cbranch_scc1 {skip}")
        self.check([OACC + 1, OACC + 3, OACC + 5, OACC + 7])
        e(f"s_cbranch_vccnz {skip}")
        self.qcommit()
        self.label(skip)
    def young_prefetch(self, nonce_ready):
        e = self.e
        e(f"s_lshl_b32 s{S_QA}, s{S_GRP}, 12"); e(f"s_and_b32 s{S_T1}, s3, 3"); e(f"s_lshl_b32 s{S_T2}, s{S_T1}, 10"); e(f"s_add_u32 s{S_QA}, s{S_QA}, s{S_T2}")
        if QG: e(f"s_add_u32 s{S_QA}, s{S_QA}, {QG}")
        e(f"s_add_u32 s{S_QB}, s{S_QA}, 32768")
        e(f"s_mul_i32 s{S_T1}, s{S_T1}, 544"); e(f"v_add_u32 v{V_QW}, s{S_T1}, v{V_QW}")
        e(f"s_mov_b32 s{S_OK}, 0")
        first = self.opt("qfirst", 1)
        k = 0
        pend = False
        while True:
            if k >= first:
                if not nonce_ready and k == first:
                    self.vm(f"buffer_load_dword v{V_U1}, off, s[{DBG}:{DBG+3}], 0 sc1", "nn", paced=False)
                for s_ in self.qpoll_loads(): self.vm(s_, f"qp{k}", paced=False)
                pend = True
            ok = self.issue_next()
            if pend:
                self.wait(f"qp{k}")
                if not nonce_ready:
                    self.get_nonce(); nonce_ready = True
                self.qcheck()
                pend = False
            k += 1
            if not ok or not self.free: break
        done = self.newlab("qd")
        e(f"s_cmp_eq_u32 s{S_OK}, 1"); e(f"s_cbranch_scc1 {done}")
        self.poll(self.qpoll_loads(), [OACC + 1, OACC + 3, OACC + 5, OACC + 7], sleep=1)
        self.qcommit()
        self.label(done)
    def wait_q(self):
        e = self.e
        self.lds_spin(F_QC, 4)
        if self.opt("noq", 0): return
        e(f"ds_read_b32 v{T[7]}, v{V_FLG} offset:{F_NON - FLG}")
        e("s_waitcnt lgkmcnt(0)")
        e(f"v_readfirstlane_b32 s{S_NONCE}, v{T[7]}")

    def build(self):
        e = self.e; L = self.L
        L.append(f"; @launch grid=(256,1,1) block=(512,1,1) lds={LDS_SIZE}")
        L.append('.amdgcn_target "amdgcn-amd-amdhsa--gfx950"')
        L.append(".text"); L.append(f".globl {KNAME}"); L.append(".p2align 8"); L.append(f".type {KNAME},@function"); L.append(f"{KNAME}:")
        e("s_cmp_ge_u32 s2, 256"); e("s_cbranch_scc1 L_end")
        e("s_load_dwordx16 s[48:63], s[0:1], 0")
        e("s_load_dwordx8 s[64:71], s[0:1], 64")
        e("s_load_dwordx4 s[72:75], s[0:1], 96")
        e("s_memrealtime s[96:97]")
        e("v_lshrrev_b32 v1, 6, v0")
        e("v_and_b32 v0, 63, v0")
        e("v_readfirstlane_b32 s3, v1")
        e(f"v_mov_b32 v{V_FLG}, {FLG}")
        e("v_mov_b32 v28, 0"); e("v_mov_b32 v29, 0"); e("v_mov_b32 v30, 0"); e("v_mov_b32 v31, 0")
        e("s_cmp_lg_u32 s3, 0"); e("s_cbranch_scc1 L_noinit")
        e(f"ds_write_b128 v{V_FLG}, v[28:31]")
        self.label("L_noinit")
        e("v_and_b32 v24, 15, v0"); e("v_lshrrev_b32 v25, 4, v0")
        col8 = self.o.get("map", "il") == "col8"
        e("v_and_b32 v26, 3, v24"); e(f"v_lshlrev_b32 v26, {13 if col8 else 10}, v26")
        e("v_lshrrev_b32 v27, 2, v24"); e("v_lshl_add_u32 v26, v27, 8, v26")
        e(f"v_lshl_add_u32 v{V_K0}, v25, 4, v26")
        e(f"v_add_u32 v{V_K1}, {32768 if col8 else 4096}, v{V_K0}")
        e(f"v_lshlrev_b32 v{V_L0}, 4, v0"); e(f"v_add_u32 v{V_L1}, 4096, v{V_L0}")
        e(f"s_lshr_b32 s{S_GRP}, s2, 5"); e(f"s_and_b32 s{S_IDX}, s2, 15"); e(f"s_and_b32 s{S_SPLIT}, s2, 31")
        e(f"s_lshl_b32 s{S_J}, s{S_GRP}, 4"); e(f"s_add_u32 s{S_J}, s{S_J}, s{S_IDX}")
        e(f"s_lshl_b32 s{S_T0}, s{S_GRP}, 23")
        if col8:
            e(f"s_lshl_b32 s{S_BB}, s{S_SPLIT}, 16"); e(f"s_lshl_b32 s{S_T1}, s3, 10"); e(f"s_add_u32 s{S_BB}, s{S_BB}, s{S_T1}"); e(f"s_add_u32 s{S_BB}, s{S_BB}, s{S_T0}")
            e(f"s_lshr_b32 s{S_AB}, s{S_SPLIT}, 1"); e(f"s_lshl_b32 s{S_AB}, s{S_AB}, 16"); e(f"s_add_u32 s{S_AB}, s{S_AB}, s{S_T1}")
            e(f"s_and_b32 s{S_T1}, s{S_SPLIT}, 1"); e(f"s_lshl_b32 s{S_T1}, s{S_T1}, 12"); e(f"s_add_u32 s{S_AB}, s{S_AB}, s{S_T1}"); e(f"s_add_u32 s{S_AB}, s{S_AB}, s{S_T0}")
        else:
            e(f"s_lshl_b32 s{S_BB}, s{S_SPLIT}, 3"); e(f"s_add_u32 s{S_BB}, s{S_BB}, s3"); e(f"s_lshl_b32 s{S_BB}, s{S_BB}, 13"); e(f"s_add_u32 s{S_BB}, s{S_BB}, s{S_T0}")
            e(f"s_lshl_b32 s{S_AB}, s{S_SPLIT}, 2"); e(f"s_add_u32 s{S_AB}, s{S_AB}, s3"); e(f"s_lshl_b32 s{S_AB}, s{S_AB}, 13"); e(f"s_add_u32 s{S_AB}, s{S_AB}, s{S_T0}")
        e(f"s_add_u32 s{S_AB}, s{S_AB}, 0x700000")
        e("s_bitcmp1_b32 s2, 4"); e("s_cbranch_scc1 L_roleO")
        self.q = []
        self.roleQ()
        self.label("L_roleO")
        self.q = []
        self.roleO()
        self.label("L_end"); e("s_endpgm"); self.label("L_code_end")
        L.append('.section .rodata,"a"'); L.append(".p2align 6"); L.append(f".amdhsa_kernel {KNAME}")
        for s in ["next_free_vgpr 256", "next_free_sgpr 102", "accum_offset 256", "group_segment_fixed_size 0", "kernarg_size 112",
                  "user_sgpr_count 2", "user_sgpr_kernarg_segment_ptr 1", "system_sgpr_workgroup_id_x 1"]:
            L.append("  .amdhsa_" + s)
        L.append(".end_amdhsa_kernel")
        txt = "\n".join(L) + "\n"
        import re
        if self.opt("ld01", 0): txt = re.sub(r"(buffer_load[^\n]*) sc1", r"\1 sc0 sc1", txt)
        if self.opt("st01", 0): txt = re.sub(r"(buffer_store[^\n]*) sc1", r"\1 sc0 sc1", txt)
        return txt

    def common_setup(self):
        e = self.e
        e(f"s_mov_b32 s{S_SELLO}, 0x05040100"); e(f"s_mov_b32 s{S_SELHI}, 0x07060302")
        e(f"s_mov_b32 s{S_C}, {hex(f2u(math.log2(math.e) / math.sqrt(128.0)))}")
        e(f"s_mul_i32 s{S_T0}, s3, {CO_W}"); e(f"s_add_u32 s{S_T0}, s{S_T0}, {CO}")
        e(f"v_mul_u32_u24 v{V_COW}, {CO_H}, v24"); e(f"v_lshl_add_u32 v{V_COW}, v25, 7, v{V_COW}"); e(f"v_add_u32 v{V_COW}, s{S_T0}, v{V_COW}")
        e(f"s_lshl_b32 s{S_T0}, s3, 2"); e(f"v_lshlrev_b32 v{V_MLW}, 5, v24"); e(f"v_add_u32 v{V_MLW}, s{S_T0}, v{V_MLW}")
        e("v_and_b32 v26, 7, v24"); e(f"v_lshlrev_b32 v{V_U0}, 5, v26")
        e(f"v_mul_u32_u24 v{V_QR}, 272, v26"); e(f"v_lshl_add_u32 v{V_QR}, v25, 4, v{V_QR}"); e(f"v_add_u32 v{V_QR}, {QOP}, v{V_QR}")
        e(f"s_mul_i32 s{S_T0}, s3, {CO_H}"); e(f"s_add_u32 s{S_T0}, s{S_T0}, {CO}"); e(f"v_lshlrev_b32 v{V_COR}, 3, v0"); e(f"v_add_u32 v{V_COR}, s{S_T0}, v{V_COR}")
        e(f"s_lshl_b32 s{S_T0}, s3, 5"); e(f"v_mov_b32 v{V_MLR}, s{S_T0}")
        e("v_lshrrev_b32 v26, 5, v0"); e(f"v_mul_u32_u24 v{V_QW}, 272, v26"); e("v_and_b32 v26, 31, v0"); e(f"v_lshl_add_u32 v{V_QW}, v26, 3, v{V_QW}"); e(f"v_add_u32 v{V_QW}, {QOP}, v{V_QW}")

    def tiles(self, old, pre_tail):
        e = self.e
        self.read_q(1)
        pt = self.opt("pretouch", 0)
        if pt == 1:
            e(f"s_lshl_b32 s{S_T1}, s3, 20"); e(f"s_lshl_b32 s{S_T2}, s2, 7"); e(f"s_add_u32 s{S_T1}, s{S_T1}, s{S_T2}"); e(f"s_add_u32 s{S_T1}, s{S_T1}, 0x80000")
            self.vm(f"buffer_load_dword v{V_U1}, off, s[{WS}:{WS+3}], s{S_T1} nt", "pt", paced=False)
        if pt == 2:
            e(f"s_lshl_b32 s{S_T1}, s3, 20"); e(f"s_lshl_b32 s{S_T2}, s2, 6"); e(f"s_add_u32 s{S_T1}, s{S_T1}, s{S_T2}")
            e(f"v_lshlrev_b32 v{T[0]}, 14, v0")
            self.vm(f"buffer_load_dword v{V_U1}, v{T[0]}, s[{WS}:{WS+3}], s{S_T1} offen nt", "pt", paced=False)
        e(f"v_lshrrev_b32 v{T[0]}, 3, v0"); e(f"v_lshlrev_b32 v{V_PO}, 12, v{T[0]}"); e(f"v_and_b32 v{T[0]}, 7, v0"); e(f"v_lshl_add_u32 v{V_PO}, v{T[0]}, 4, v{V_PO}")
        e("s_waitcnt lgkmcnt(0)")
        if self.amode == "half": self.a_tile(True)
        for t in range(3):
            uk, uv = f"K{t}", f"V{t}"
            self.wait(uk)
            self.qk(self.slot[uk]); self.release(uk)
            if not self.issue_next(): e("s_nop 7")
            self.tilemax(t == 0); self.softmax_rest(t == 0)
            self.wait(uv)
            self.perm_mfma8(self.slot[uv], PR, t == 0, True); self.release(uv)
            self.issue_next()
        if self.amode == "full": self.a_tile(False)
        assert not self.seq, self.seq
        assert len(self.free) >= 1, self.free
        pre_tail()
        R = self.free[0]
        if old:
            if self.amode is None:
                e(f"v_and_b32 v{T[0]}, 1, v0"); e(f"v_cmp_eq_u32 vcc, 1, v{T[0]}"); e(f"v_mov_b32 v{T[1]}, 0xff7fffff")
                for P in (R + 24, R + 28):
                    e(f"v_mov_b32 v{P}, 0"); e(f"v_mov_b32 v{P+1}, 0"); e(f"v_cndmask_b32 v{P+2}, v{T[1]}, v{P}, vcc"); e(f"v_mov_b32 v{P+3}, s{S_NONCE}")
            elif self.isO or not self.opt("rebal", 1):
                self.lds_spin(F_AC, 4)
                self.combine_a(R, 0, R + 24, 4); self.combine_a(R, 4, R + 28, 4)
            else:
                l8, ld = self.newlab("na8"), self.newlab("nad")
                self.lds_spin(F_AC, f"s{S_NA}")
                e(f"s_cmp_eq_u32 s{S_NA}, 8"); e(f"s_cbranch_scc1 {l8}")
                self.combine_a(R, 0, R + 24, 4); self.combine_a(R, 4, R + 28, 4)
                e(f"s_branch {ld}")
                self.label(l8)
                self.combine_a(R, 0, R + 24, 8); self.combine_a(R, 4, R + 28, 8)
                self.label(ld)
            e(f"s_add_u32 s{S_MLA}, s{S_POA}, {4*32768}")
        self.wait("K3")
        self.qk(self.slot["K3"]); self.release("K3")
        R2 = self.free[1]
        e("s_nop 7")
        def after_bm():
            if old:
                self.vm(f"buffer_store_dwordx4 v[{R+24}:{R+27}], v{V_PO}, s[{WS}:{WS+3}], s{S_POA} offen sc1", "st", paced=False)
                self.vm(f"buffer_store_dwordx4 v[{R+28}:{R+31}], v{V_PO}, s[{WS}:{WS+3}], s{S_MLA} offen sc1", "st", paced=False)
        if self.opt("abm", 1) == 0: after_bm()
        hook = after_bm if self.opt("abm", 1) else None
        if old and self.opt("oldfin", 1):
            self.tilemax(False); self.softmax_rest(False)
            self.wait("V3")
            self.perm_mfma8(self.slot["V3"], PR, False, True); self.release("V3")
            self.xlane("v_add_f32", V_LS, T[1], (16, 32))
            e(f"v_mov_b32 v{T[0]}, v{V_M}")
            self.softmax_common(False, 1, R, hook, rescale_only=True)
            self.stamp(2); self.stamp(6)
        else:
            if not old and self.opt("yprio", 1): e("s_setprio 2")
            self.softmax_common(False, 1, R, hook)
            self.stamp(2)
            self.pv_last("V3", self.slot["V3"], R2, False); self.release("V3")
        self.write_o(1)
        e("s_waitcnt lgkmcnt(0)")
        e("s_barrier")
        self.stamp(7)
        self.o_publish(R)
        self.stamp(8)

    def code_prefetch(self, dst):
        e = self.e
        n = self.opt("cpn", 1)
        lab = self.newlab("pc")
        e("s_getpc_b64 s[70:71]" if not self.stamps else "s_getpc_b64 s[74:75]")
        pc = 70 if not self.stamps else 74
        self.label(lab)
        e(f"s_sub_u32 s{pc}, s{pc}, {lab}-{KNAME}"); e(f"s_subb_u32 s{pc+1}, s{pc+1}, 0")
        e(f"s_bfe_u32 s{S_T1}, s2, 0x30003"); e(f"s_lshl_b32 s{S_T1}, s{S_T1}, 2"); e(f"s_add_u32 s{S_T1}, s{S_T1}, s3"); e(f"s_mul_i32 s{S_T1}, s{S_T1}, {1024*n}")
        e(f"v_add_u32 v{T[5]}, s{S_T1}, v{V_L0}")
        e(f"v_min_u32 v{T[5]}, L_code_end-{KNAME}-{16 + 1024*(n-1)}, v{T[5]}")
        for i in range(n):
            self.vm(f"global_load_dword v{V_U1}, v{T[5]}, s[{pc}:{pc+1}] offset:{1024*i}", "cp", paced=False)
    def mkseq(self, old, isO):
        am = self.amode
        q = (["KH", "VH"] if am == "half" else []) + ["K0", "V0", "K1", "V1", "K2", "V2"] + (["KA", "VA"] if am == "full" else [])
        if isO and not old and self.opt("woearly", 1): return q + ["WA", "WB", "K3", "V3"]
        return q + ["K3", "V3"] + (["WA", "WB"] if isO else [])

    def body(self, isO, tail, pre_tail, young_first):
        e = self.e
        p = "o" if isO else "q"
        self.isO = isO
        base_q, base_free = list(self.q), list(self.free)
        reb = (not isO) and self.opt("rebal", 1)
        variants = [(True, "full"), (False, None)] + ([(True, None), (False, "half")] if reb else [])
        if reb:
            e(f"s_and_b32 s{S_T0}, s2, 6"); e(f"s_cmp_eq_u32 s{S_T0}, 0"); e(f"s_cselect_b32 s{S_NA}, 8, 4")
            e(f"s_and_b32 s{S_T0}, s2, 7"); e(f"s_cmp_eq_u32 s{S_T0}, 3"); e(f"s_cselect_b32 s{S_NA}, 0, s{S_NA}")
            e("s_cmp_ge_u32 s3, 4"); e(f"s_cbranch_scc1 L_{p}_ysel")
            e(f"s_cmp_eq_u32 s{S_NA}, 0"); e(f"s_cbranch_scc1 L_{p}_v2")
        else:
            e("s_cmp_ge_u32 s3, 4"); e(f"s_cbranch_scc1 L_{p}_v1")
        for vi, (old, am) in enumerate(variants):
            self.q, self.free, self.slot = list(base_q), list(base_free), dict(self.slot0)
            self.amode = am; self.old = old
            self.seq = self.mkseq(old, isO)
            if vi == 1 and reb:
                self.label(f"L_{p}_ysel")
                e(f"s_cmp_eq_u32 s{S_NA}, 8"); e(f"s_cbranch_scc1 L_{p}_v3")
            self.label(f"L_{p}_v{vi}")
            if am == "half":
                e(f"s_and_b32 s{S_AB}, s2, 8"); e(f"s_add_u32 s{S_AB}, s{S_AB}, 3"); e(f"s_lshl_b32 s{S_AB}, s{S_AB}, 2"); e(f"s_and_b32 s{S_T0}, s3, 3"); e(f"s_add_u32 s{S_AB}, s{S_AB}, s{S_T0}")
                e(f"s_lshl_b32 s{S_AB}, s{S_AB}, 1"); e(f"s_and_b32 s{S_T0}, s2, 1"); e(f"s_add_u32 s{S_AB}, s{S_AB}, s{S_T0}"); e(f"s_lshl_b32 s{S_AB}, s{S_AB}, 12")
                e(f"s_lshl_b32 s{S_T0}, s{S_GRP}, 23"); e(f"s_add_u32 s{S_AB}, s{S_AB}, s{S_T0}"); e(f"s_add_u32 s{S_AB}, s{S_AB}, 0x700000")
            self.pace = self.opt("ppre", 0)
            if old or self.opt("noq", 0):
                while self.issue_next(): pass
            else:
                young_first()
                self.young_prefetch(not isO)
            if isO and not self.opt("gatefirst", 1):
                self.wait("g"); self.gate()
            self.wait_q()
            self.stamp(5)
            self.pace = self.opt("pmain", 0)
            self.tiles(old, pre_tail)
            tail()

    def roleQ(self):
        e = self.e
        e("v_and_b32 v26, 1, v24"); e(f"v_lshlrev_b32 v{V_X}, 11, v26"); e(f"v_lshl_add_u32 v{V_X}, v25, 5, v{V_X}")
        e("v_bfe_u32 v26, v24, 2, 1"); e(f"v_lshl_add_u32 v{V_X}, v26, 4, v{V_X}")
        e("v_lshrrev_b32 v26, 3, v0"); e(f"v_lshlrev_b32 v{V_WA}, 16, v26"); e("v_and_b32 v26, 7, v0"); e(f"v_lshl_add_u32 v{V_WA}, v26, 4, v{V_WA}")
        if self.opt("cgmap", 0):
            e(f"s_and_b32 s99, s2, 7"); e("s_lshl_b32 s99, s99, 3"); e(f"s_and_b32 s{S_T1}, s{S_GRP}, 3"); e(f"s_lshl_b32 s{S_T1}, s{S_T1}, 1"); e(f"s_add_u32 s99, s99, s{S_T1}")
            e(f"s_bfe_u32 s{S_T1}, s2, 0x10003"); e(f"s_add_u32 s99, s99, s{S_T1}")
        else:
            e(f"s_and_b32 s99, s{S_J}, 63")
        e(f"s_lshl_b32 s{S_W}, s99, 7"); e(f"s_lshl_b32 s{S_T1}, s3, 20"); e(f"s_add_u32 s{S_W}, s{S_W}, s{S_T1}")
        e(f"s_lshl_b32 s{S_T1}, s3, 8")
        e("s_waitcnt lgkmcnt(0)")
        e("s_cmp_ge_u32 s2, 128")
        e(f"s_cselect_b32 s{W1}, s64, s54"); e(f"s_cselect_b32 s{W1+1}, s65, s55"); e(f"s_mov_b32 s{W1+2}, 0x800000"); e(f"s_mov_b32 s{W1+3}, 0x20000")
        self.srd(XS, 48, 4096); self.srd(DBG, 72, 256)
        e("s_or_b32 s98, s2, s3"); e("s_cmp_lg_u32 s98, 0"); e("s_cbranch_scc1 L_q_non")
        e("s_or_b32 s98, s96, 1"); e("v_mov_b32 v26, s98")
        e("s_mov_b64 exec, 1")
        e(f"buffer_store_dword v26, off, s[{DBG}:{DBG+3}], 0 sc1")
        e("s_mov_b64 exec, -1")
        self.label("L_q_non")
        self.pace = self.opt("pw", 0)
        self.vm(f"buffer_load_dwordx4 v[{QR}:{QR+3}], v{V_X}, s[{XS}:{XS+3}], s{S_T1} offen", "x")
        self.vm(f"buffer_load_dwordx4 v[{QR+4}:{QR+7}], v{V_X}, s[{XS}:{XS+3}], s{S_T1} offen offset:128", "x")
        for u in range(2):
            for ee in range(8):
                r = RING[u] + ee * 4
                e(f"s_add_u32 s{S_T0}, s{S_W}, {(u*64+ee)*8192}")
                self.vm(f"buffer_load_dwordx4 v[{r}:{r+3}], v{V_WA}, s[{W1}:{W1+3}], s{S_T0} offen nt", u)
        self.vm(f"buffer_load_dword v{V_U1}, off, s[{DBG}:{DBG+3}], 0 sc1", "nn", paced=False)
        self.srd(KB, 60, 0x4000000); self.srd(VB, 62, 0x4000000); self.srd(WS, 74, WS_SIZE); self.srd(OUT, 70, 4096)
        self.common_setup()
        self.pub_addrs(True)
        self.srd(KA, 50, 0x4000000); self.srd(VA, 52, 0x4000000)
        if self.stamps: e("s_mov_b64 s[48:49], s[96:97]")
        e("s_barrier")
        self.wait(0)
        self.perm_mfma8(RING[0], QR, True, False)
        e("v_bfe_u32 v26, v0, 3, 1"); e("v_lshlrev_b32 v27, 9, v26"); e("v_and_b32 v26, 7, v0"); e("v_lshl_add_u32 v27, v26, 6, v27")
        e(f"s_lshl_b32 s{S_T0}, s3, 10"); e(f"s_add_u32 s{S_T0}, s{S_T0}, {CO + CO_BR}"); e(f"v_add_u32 v27, s{S_T0}, v27")
        e("v_mov_b32 v28, 1")
        self.wait(1)
        self.perm_mfma8(RING[1], QR + 4, False, False)
        e("s_mov_b32 exec_lo, 0xff0000ff"); e("s_mov_b32 exec_hi, 0")
        e("s_nop 1")
        for dd in range(8):
            if dd == 6: e("s_nop 0")
            e(f"ds_write_b64 v27, v[{OACC+dd*4}:{OACC+dd*4+1}] offset:{dd*8}")
        e("s_mov_b64 exec, 1")
        e(f"ds_add_u32 v{V_FLG}, v28 offset:{F_CNT - FLG}")
        e("s_mov_b64 exec, -1")
        def w0_first():
            e("s_setprio 3")
            e("v_lshrrev_b32 v26, 5, v0"); e("v_lshlrev_b32 v27, 12, v26"); e("v_lshlrev_b32 v28, 14, v26")
            e("v_and_b32 v26, 31, v0"); e("v_lshl_add_u32 v27, v26, 4, v27"); e(f"v_add_u32 v27, {CO + CO_BR}, v27"); e("v_lshl_add_u32 v28, v26, 3, v28")
            e(f"s_lshr_b32 s{S_T0}, s{S_J}, 6"); e(f"s_lshl_b32 s{S_T0}, s{S_T0}, 15"); e(f"s_lshl_b32 s{S_T1}, s99, 8")
            e(f"s_add_u32 s{S_T2}, s{S_T0}, s{S_T1}")
            if QG: e(f"s_add_u32 s{S_T2}, s{S_T2}, {QG}")
            self.wait("nn")
            self.get_nonce()
            self.lds_spin(F_CNT, 8)
            for p in range(8):
                e(f"ds_read_b128 v[{OACC+p*4}:{OACC+p*4+3}], v27 offset:{p*512}")
            e("s_waitcnt lgkmcnt(0)")
            for p in (4, 2, 1):
                for q in range(p):
                    for i in (0, 2):
                        e(f"v_pk_add_f32 v[{OACC+q*4+i}:{OACC+q*4+i+1}], v[{OACC+q*4+i}:{OACC+q*4+i+1}], v[{OACC+(q+p)*4+i}:{OACC+(q+p)*4+i+1}]")
            e(f"v_mov_b32 v{OACC+5}, s{S_NONCE}")
            e("s_nop 0")
            e(f"v_permlane32_swap_b32 v{OACC}, v{OACC+1}"); e(f"v_permlane32_swap_b32 v{OACC+2}, v{OACC+3}")
            e(f"v_add_f32 v{OACC}, v{OACC}, v{OACC+1}"); e(f"v_add_f32 v{OACC+2}, v{OACC+2}, v{OACC+3}")
            e(f"v_cvt_pk_bf16_f32 v{OACC+4}, v{OACC}, v{OACC+2}")
            e(f"s_and_b32 s{S_T0}, s3, 3"); e(f"s_lshl_b32 s{S_T0}, s{S_T0}, 4"); e(f"s_lshl_b64 exec, 0xffff, s{S_T0}")
            self.vm(f"buffer_store_dwordx2 v[{OACC+4}:{OACC+5}], v28, s[{WS}:{WS+3}], s{S_T2} offen sc1", "st", paced=False)
            e("s_mov_b64 exec, -1")
            e("s_setprio 0")
            self.stamp(3)
        def pre_tail():
            e(f"s_lshl_b32 s72, s{S_J}, 14"); e(f"s_lshl_b32 s{S_T2}, s3, 11"); e(f"s_add_u32 s72, s72, s{S_T2}"); e(f"s_add_u32 s72, s72, {hex(PF)}")
            e(f"v_and_b32 v26, 7, v0"); e(f"v_lshlrev_b32 v{HA[1]}, 3, v26"); e(f"v_bfe_u32 v{HA[2]}, v0, 4, 1"); e(f"v_lshl_add_u32 v{HA[2]}, v{HA[2]}, 2, v{HA[1]}")
            e(f"s_lshl_b32 s73, s3, 6"); e(f"s_add_u32 s73, s73, {FR}"); e(f"v_add_u32 v{HA[2]}, s73, v{HA[2]}")
            e(f"s_lshr_b32 s73, s{S_J}, 3"); e(f"s_lshl_b32 s73, s73, 8")
            e(f"s_and_b32 s{S_T2}, s{S_J}, 1"); e(f"s_lshl_b32 s{S_T2}, s{S_T2}, 7"); e(f"s_add_u32 s73, s73, s{S_T2}")
            e(f"s_bfe_u32 s{S_T2}, s{S_J}, 0x20001"); e(f"s_lshl_b32 s{S_T2}, s{S_T2}, 2"); e(f"s_add_u32 s73, s73, s{S_T2}")
            e(f"v_lshlrev_b32 v{HA[3]}, 4, v26")
        def tail():
            done = self.newlab('qdone'); self.resmul = None
            if self.opt("notail", 0):
                self.stamp(9); self.stamp(10); self.stamp_flush(); e("s_endpgm"); return
            R = self.free[0]
            self.mk = [4, 6, 8, 10]
            lds_ = [f"buffer_load_dwordx4 v[{R+4*i}:{R+4*i+3}], v{V_L0}, s[{WS}:{WS+3}], s72 offen offset:{i*1024} sc1" for i in range(2)]
            gl, gd = self.newlab("gl"), self.newlab("gd")
            e(f"s_and_b32 s{S_T0}, s{S_J}, 15"); e(f"s_lshl_b32 s{S_T0}, s{S_T0}, 7"); e(f"s_add_u32 s{S_T0}, s{S_T0}, s72")
            e(f"s_mov_b32 s{S_CNT}, 0"); e(f"v_mov_b32 v{T[1]}, 1")
            self.label(gl)
            e(f"buffer_load_dword v{R}, off, s[{WS}:{WS+3}], s{S_T0} offset:4 sc1")
            e(f"ds_read_b32 v{T[7]}, v{V_FLG} offset:{F_CNT - FLG}")
            e("s_waitcnt vmcnt(0) lgkmcnt(0)")
            e(f"v_readfirstlane_b32 s{S_T1}, v{R}"); e(f"v_readfirstlane_b32 s{S_T2}, v{T[7]}")
            e(f"s_add_u32 s{S_CNT}, s{S_CNT}, 1")
            e(f"s_cmp_lg_u32 s{S_T2}, 8"); e(f"s_cbranch_scc1 {gd}")
            gs = self.newlab("gs")
            e(f"s_cmp_eq_u32 s{S_T1}, s{S_NONCE}"); e(f"s_cbranch_scc1 {gs}")
            e(f"s_cmp_gt_u32 s{S_CNT}, {SPIN_MAX}"); e(f"s_cbranch_scc1 {gd}")
            e(f"s_sleep {self.opt('presleep', 2)}")
            e(f"s_branch {gl}")
            self.label(gs)
            e("s_mov_b64 exec, 1"); e(f"ds_add_u32 v{V_FLG}, v{T[1]} offset:{F_CNT - FLG}"); e("s_mov_b64 exec, -1")
            self.label(gd)
            self.stamp(1)
            self.poll_missing(lds_, [[R + 1, R + 3], [R + 5, R + 7]], self.opt("pfsleep", 0))
            e(f"v_add_f32 v{OACC}, v{R}, v{R+4}"); e(f"v_add_f32 v{OACC+1}, v{R+2}, v{R+6}")
            self.stamp(9)
            x, y = OACC, OACC + 1
            e("s_nop 0")
            e(f"v_add_f32_dpp v{x}, v{x}, v{x} row_ror:8 row_mask:0xf bank_mask:0xf")
            e(f"v_add_f32_dpp v{y}, v{y}, v{y} row_ror:8 row_mask:0xf bank_mask:0xf")
            e("s_nop 1")
            e(f"v_permlane16_swap_b32 v{x}, v{y}")
            e(f"v_add_f32 v{x}, v{x}, v{y}")
            self.xlane("v_add_f32", x, y, (32,))
            e("s_mov_b64 exec, 0x00ff00ff")
            e(f"ds_write_b32 v{HA[2]}, v{x}")
            e("s_mov_b64 exec, -1")
            e("s_waitcnt lgkmcnt(0)")
            e("s_barrier")
            e("s_cmp_lg_u32 s3, 0"); e(f"s_cbranch_scc1 {done}")
            R = OACC + 8
            for w in range(8):
                e(f"ds_read_b64 v[{R+2*w}:{R+2*w+1}], v{HA[1]} offset:{FR + w*64}")
            e("s_waitcnt lgkmcnt(0)")
            for p in (4, 2, 1):
                for q in range(p):
                    e(f"v_pk_add_f32 v[{R+q*2}:{R+q*2+1}], v[{R+q*2}:{R+q*2+1}], v[{R+(q+p)*2}:{R+(q+p)*2+1}]")
            e(f"v_cvt_pk_bf16_f32 v{R}, v{R}, v{R+1}")
            e("s_mov_b64 exec, 0xff")
            e(f"buffer_store_dword v{R}, v{HA[3]}, s[{OUT}:{OUT+3}], s73 offen")
            e("s_mov_b64 exec, -1")
            self.label(done)
            self.stamp(10)
            self.stamp_flush()
            e("s_endpgm")


        self.free = [RING[2], RING[3], RING[4], RING[0], RING[1]]; self.slot0 = {}
        self.body(False, tail, pre_tail, w0_first)

    def gate(self):
        e = self.e
        acc, a, b, c, d = T[0], T[1], T[2], T[3], T[4]
        e(f"v_mov_b32 v{acc}, 0")
        e(f"s_mov_b32 s{S_T0}, 0xffff0000")
        for i in range(8):
            x, g = QR + i, QR + 8 + i
            e(f"v_lshlrev_b32 v{a}, 16, v{x}"); e(f"v_lshlrev_b32 v{b}, 16, v{g}")
            e(f"v_and_b32 v{c}, s{S_T0}, v{x}"); e(f"v_and_b32 v{d}, s{S_T0}, v{g}")
            e(f"v_mul_f32 v{a}, v{a}, v{b}"); e(f"v_mul_f32 v{c}, v{c}, v{d}")
            e(f"v_cvt_pk_bf16_f32 v{a}, v{a}, v{c}")
            e(f"v_lshlrev_b32 v{b}, 16, v{a}"); e(f"v_and_b32 v{c}, s{S_T0}, v{a}")
            e(f"v_add_f32 v{acc}, v{acc}, v{b}"); e(f"v_add_f32 v{acc}, v{acc}, v{c}")
        self.dpp("v_add_f32", acc, (1, 2, 4, 8))
        self.xlane("v_add_f32", acc, a, (16, 32))
        e(f"v_cvt_pk_bf16_f32 v{acc}, v{acc}, v{acc}"); e(f"v_lshlrev_b32 v{acc}, 16, v{acc}")
        e(f"v_mul_f32 v{acc}, {hex(f2u(-math.log2(math.e)))}, v{acc}")
        e(f"v_exp_f32 v{acc}, v{acc}"); e("s_nop 0")
        e(f"v_add_f32 v{acc}, 1.0, v{acc}")
        e(f"v_rcp_f32 v{acc}, v{acc}"); e("s_nop 0")
        e(f"v_cvt_pk_bf16_f32 v{acc}, v{acc}, v{acc}"); e(f"v_lshlrev_b32 v{V_GA}, 16, v{acc}")
        e(f"v_sub_f32 v{acc}, 1.0, v{V_GA}")
        e(f"v_cvt_pk_bf16_f32 v{acc}, v{acc}, v{acc}"); e(f"v_lshlrev_b32 v{V_GB}, 16, v{acc}")

    def roleO(self):
        e = self.e
        e(f"s_and_b32 s{S_T1}, s3, 1"); e(f"s_lshl_b32 s{S_T1}, s{S_T1}, 11")
        e(f"v_lshlrev_b32 v{V_X}, 5, v0")
        e(f"v_lshlrev_b32 v{V_WA}, 12, v25"); e(f"v_lshl_add_u32 v{V_WA}, v24, 4, v{V_WA}")
        e(f"s_lshl_b32 s{S_W}, s{S_J}, 16"); e(f"s_lshl_b32 s{S_T2}, s3, 8"); e(f"s_add_u32 s{S_W}, s{S_W}, s{S_T2}")
        e("s_waitcnt lgkmcnt(0)")
        self.srd(XS, 48, 4096); self.srd(GT, 68, 2048); self.srd(KA, 50, 0x4000000); self.srd(VA, 52, 0x4000000)
        self.pace = 0
        self.vm(f"buffer_load_dwordx4 v[{QR}:{QR+3}], v{V_X}, s[{XS}:{XS+3}], s{S_T1} offen", "g")
        self.vm(f"buffer_load_dwordx4 v[{QR+4}:{QR+7}], v{V_X}, s[{XS}:{XS+3}], s{S_T1} offen offset:16", "g")
        self.vm(f"buffer_load_dwordx4 v[{QR+8}:{QR+11}], v{V_X}, s[{GT}:{GT+3}], 0 offen", "g")
        self.vm(f"buffer_load_dwordx4 v[{QR+12}:{QR+15}], v{V_X}, s[{GT}:{GT+3}], 0 offen offset:16", "g")
        self.srd(KB, 60, 0x4000000); self.srd(VB, 62, 0x4000000); self.srd(WS, 74, WS_SIZE); self.srd(DBG, 72, 256)
        self.srd(W1, 56, 0x800000); self.srd(W2, 66, 0x800000)
        if self.stamps: e("s_mov_b64 s[48:49], s[96:97]")
        self.common_setup()
        self.pub_addrs(True)
        e("s_barrier")
        if self.opt("gatefirst", 1):
            self.wait("g"); self.gate()
        def w0_first(): pass
        S_HO, S_HM, S_G1, S_PH = 72, 73, 74, S_W
        H = QR
        def pre_tail():
            br = 1 if self.old else 0
            e(f"s_and_b32 s{S_T0}, s3, 1"); e(f"s_lshl_b32 s{S_T0}, s{S_T0}, 2"); e(f"s_lshr_b32 s{S_T1}, s{S_J}, 5"); e(f"s_add_u32 s{S_T0}, s{S_T0}, s{S_T1}")
            e(f"s_lshl_b32 s{S_HO}, s{S_T0}, 18")
            e(f"s_and_b32 s{S_T1}, s{S_J}, 31"); e(f"s_lshl_b32 s{S_T1}, s{S_T1}, 13"); e(f"s_add_u32 s{S_HO}, s{S_HO}, s{S_T1}")
            e(f"s_bfe_u32 s{S_T1}, s3, 0x10001"); e(f"s_lshl_b32 s{S_T1}, s{S_T1}, 12"); e(f"s_add_u32 s{S_HO}, s{S_HO}, s{S_T1}")
            e(f"s_add_u32 s{S_HO}, s{S_HO}, {hex(PO + br*8*32*8192)}")
            e(f"s_and_b32 s{S_T0}, s3, 1"); e(f"s_lshl_b32 s{S_T0}, s{S_T0}, 6"); e(f"s_bfe_u32 s{S_T1}, s3, 0x10001"); e(f"s_lshl_b32 s{S_T1}, s{S_T1}, 5")
            e(f"s_add_u32 s{S_T0}, s{S_T0}, s{S_T1}")
            e("v_and_b32 v26, 7, v0"); e(f"v_lshlrev_b32 v{HA[1]}, 2, v26"); e("v_bfe_u32 v26, v0, 4, 1"); e(f"v_lshl_add_u32 v{HA[1]}, v26, 1, v{HA[1]}"); e(f"v_add_u32 v{HA[1]}, s{S_T0}, v{HA[1]}")
            e("v_bfe_u32 v26, v0, 2, 1"); e(f"v_lshlrev_b32 v{HA[2]}, 6, v26"); e("v_lshrrev_b32 v26, 4, v0"); e(f"v_lshl_add_u32 v{HA[2]}, v26, 4, v{HA[2]}")
            e("v_bfe_u32 v26, v0, 4, 1"); e(f"v_lshlrev_b32 v{HA[3]}, 20, v26"); e("v_bfe_u32 v26, v0, 3, 1"); e(f"v_lshl_add_u32 v{HA[3]}, v26, 14, v{HA[3]}")
            e("v_and_b32 v26, 7, v0"); e(f"v_lshl_add_u32 v{HA[3]}, v26, 4, v{HA[3]}")
            e("v_lshrrev_b32 v26, 5, v0"); e(f"v_lshl_add_u32 v{HA[3]}, v26, 15, v{HA[3]}")
            e(f"s_lshl_b32 s98, s3, 17"); e(f"s_lshl_b32 s{S_T1}, s{S_J}, 7"); e(f"s_add_u32 s98, s98, s{S_T1}"); e(f"s_add_u32 s98, s98, {hex(PF)}")
            e(f"s_add_u32 s99, s98, 65536")
        def tail():
            if self.opt("notail", 0):
                e("s_waitcnt vmcnt(0)"); self.stamp(3); self.stamp(9); self.stamp(10); self.stamp_flush(); e("s_endpgm"); return
            old = self.old
            F0, F1, F2 = self.free[:3]
            PK = F2 + 16
            WAs, WBs = self.slot["WA"], self.slot["WB"]
            OPR = QR + 8
            D = F2
            self.mk = [4, 6, 8, 10]
            mkO = [f"buffer_load_dwordx4 v[{D+4*i}:{D+4*i+3}], v{V_L0}, s[{WS}:{WS+3}], s{S_HO} offen offset:{1024*i} sc1" for i in range(4)]
            for s in mkO: self.vm(s, "po", paced=False)
            for k in range(2):
                e(f"v_mov_b32 v{PK+4*k+1}, s{S_NONCE}"); e(f"v_mov_b32 v{PK+4*k+3}, s{S_NONCE}")
            e("s_mov_b32 s12, 0"); e("s_mov_b32 s13, -1")
            self.wait("WA")
            for dd in range(8): self.perms(F0 + dd * 4, WAs, dd)
            self.wait("WB")
            for dd in range(8): self.perms(F1 + dd * 4, WBs, dd)
            self.stamp(3)
            dp = lambda op, r, ror: e(f"{op}_dpp v{r}, v{r}, v{r} row_ror:{ror} row_mask:0xf bank_mask:0xf")
            gv = V_GB if old else V_GA
            def gather_reduce(off, hook=None):
                self.stamp(4)
                self.poll_missing(mkO, [[D + 4 * i + 3] for i in range(4)], self.opt("posleep", 0), first=False, hook=hook)
                self.stamp(9)
                if self.stamps: e(f"s_mov_b32 s70, s{S_CNT}"); e("s_mov_b32 s71, 0")
                M, u, mc, x0, x1, Ls = T[0], T[1], T[2], T[3], T[4], T[5]
                for i in range(4): e(f"v_mov_b32_dpp v{D+4*i+3}, v{D+4*i+2} quad_perm:[0,0,2,2] row_mask:0xf bank_mask:0xf")
                for i in range(4): e(f"v_mov_b32_dpp v{D+4*i+2}, v{D+4*i+2} quad_perm:[1,1,3,3] row_mask:0xf bank_mask:0xf")
                e(f"v_max3_f32 v{M}, v{D+3}, v{D+7}, v{D+11}"); e(f"v_max_f32 v{M}, v{M}, v{D+15}")
                self.dpp("v_max_f32", M, (8,))
                self.xlane("v_max_f32", M, u, (16, 32))
                e(f"v_mul_f32 v{mc}, s{S_C}, v{M}")
                for i in range(4): e(f"v_fma_f32 v{D+4*i+3}, v{D+4*i+3}, s{S_C}, -v{mc}")
                for i in range(4): e(f"v_exp_f32 v{D+4*i+3}, v{D+4*i+3}")
                for i in range(4):
                    op = "v_mul_f32" if i == 0 else "v_fmac_f32"
                    e(f"{op} v{Ls}, v{D+4*i+2}, v{D+4*i+3}"); e(f"{op} v{x0}, v{D+4*i}, v{D+4*i+3}"); e(f"{op} v{x1}, v{D+4*i+1}, v{D+4*i+3}")
                dp("v_add_f32", Ls, 8); dp("v_add_f32", x0, 8); dp("v_add_f32", x1, 8)
                e(f"v_mov_b32 v{u}, v{Ls}"); e("s_nop 0")
                e(f"v_permlane16_swap_b32 v{x0}, v{x1}"); e(f"v_permlane16_swap_b32 v{Ls}, v{u}")
                e(f"v_add_f32 v{x0}, v{x0}, v{x1}"); e(f"v_add_f32 v{Ls}, v{Ls}, v{u}")
                e(f"v_mov_b32 v{x1}, v{x0}"); e(f"v_mov_b32 v{u}, v{Ls}"); e("s_nop 0")
                e(f"v_permlane32_swap_b32 v{x0}, v{x1}"); e(f"v_permlane32_swap_b32 v{Ls}, v{u}")
                e(f"v_add_f32 v{Ls}, v{Ls}, v{u}"); e(f"v_add_f32 v{x0}, v{x0}, v{x1}")
                e(f"v_rcp_f32 v{Ls}, v{Ls}")
                e(f"v_mul_f32 v{x0}, v{x0}, v{gv}")
                e(f"v_mul_f32 v{x0}, v{x0}, v{Ls}")
                e(f"v_cvt_pk_bf16_f32 v{x0}, v{x0}, v{x0}")
                e("s_mov_b64 exec, 0x00ff00ff")
                e(f"ds_write_b16 v{HA[1]}, v{x0} offset:{off}")
                e("s_mov_b64 exec, -1")
            if self.opt("bs1", 0):
                if not old:
                    gather_reduce(OB)
                    e("s_waitcnt lgkmcnt(0)")
                e("s_barrier")
                e(f"ds_read_b128 v[{OPR}:{OPR+3}], v{HA[2]} offset:{OB}")
                e("s_waitcnt lgkmcnt(0)")
                for dd in range(8): self.mfma(OACC + dd * 4, OPR, F0 + dd * 4, None)
                if old:
                    gather_reduce(OB + 128)
                    e("s_waitcnt lgkmcnt(0)")
                e("s_barrier")
                self.stamp(1)
                e(f"ds_read_b128 v[{OPR}:{OPR+3}], v{HA[2]} offset:{OB+128}")
                e("s_waitcnt lgkmcnt(0)")
                for dd in range(8): self.mfma(OACC + dd * 4, OPR, F1 + dd * 4, OACC + dd * 4)
            else:
                S_AD = 14
                def a_mfma():
                    e(f"ds_read_b128 v[{OPR}:{OPR+3}], v{HA[2]} offset:{OB}")
                    e("s_waitcnt lgkmcnt(0)")
                    for dd in range(8): self.mfma(OACC + dd * 4, OPR, F0 + dd * 4, None)
                if old:
                    e(f"s_mov_b32 s{S_AD}, 0")
                    def hook():
                        sk = self.newlab("ah")
                        e(f"s_cmp_lg_u32 s{S_AD}, 0"); e(f"s_cbranch_scc1 {sk}")
                        e(f"ds_read_b32 v{T[7]}, v{V_FLG} offset:{F_CNT - FLG}")
                        e("s_waitcnt lgkmcnt(0)")
                        e(f"v_readfirstlane_b32 s{S_T3}, v{T[7]}")
                        e("s_nop 0")
                        e(f"s_cmp_lg_u32 s{S_T3}, 4"); e(f"s_cbranch_scc1 {sk}")
                        a_mfma()
                        e(f"s_mov_b32 s{S_AD}, 1")
                        self.label(sk)
                    gather_reduce(OB + 128, hook)
                    sk = self.newlab("ad")
                    e(f"s_cmp_lg_u32 s{S_AD}, 0"); e(f"s_cbranch_scc1 {sk}")
                    self.lds_spin(F_CNT, 4)
                    a_mfma()
                    self.label(sk)
                    e("s_waitcnt lgkmcnt(0)")
                else:
                    gather_reduce(OB)
                    e(f"v_mov_b32 v{T[1]}, 1")
                    e("s_mov_b64 exec, 1"); e(f"ds_add_u32 v{V_FLG}, v{T[1]} offset:{F_CNT - FLG}"); e("s_mov_b64 exec, -1")
                    self.lds_spin(F_CNT, 4)
                    a_mfma()
                e("s_barrier")
                self.stamp(1)
                e(f"ds_read_b128 v[{OPR+4}:{OPR+7}], v{HA[2]} offset:{OB+128}")
                e("s_waitcnt lgkmcnt(0)")
                for dd in range(8): self.mfma(OACC + dd * 4, OPR + 4, F1 + dd * 4, OACC + dd * 4)
                e("s_nop 3")
            for k in range(2):
                if k == 1: e("s_nop 0")
                elif self.opt("bs1", 0): e("s_nop 3")
                e(f"v_cndmask_b32 v{PK+4*k}, v{OACC+16*k}, v{OACC+16*k+8}, s[12:13]"); e(f"v_cndmask_b32 v{PK+4*k+2}, v{OACC+16*k+4}, v{OACC+16*k+12}, s[12:13]")
                e(f"buffer_store_dwordx4 v[{PK+4*k}:{PK+4*k+3}], v{HA[3]}, s[{WS}:{WS+3}], s{98+k} offen sc1")
            self.stamp(10)
            self.stamp_flush()

            e("s_endpgm")
        self.free = list(RING); self.slot0 = {}
        self.body(True, tail, pre_tail, w0_first)

if __name__ == "__main__":
    out = sys.argv[1]
    st = "--stamps" in sys.argv
    opts = dict(a[2:].split("=") for a in sys.argv[2:] if a.startswith("--") and "=" in a)
    open(out, "w").write(G(stamps=st, opts=opts).build())
```

```python
import sys, struct, math
KNAME = "gated_mix__sliding_block_cached__gqa_block_cached__decode_kernel"
def f2u(x): return struct.unpack("<I", struct.pack("<f", x))[0]

QG, PML, H1, H2, PO, PF, STAMP = 0, 0x10000, 0x20000, 0x40000, 0x100000, 0x600000, 0x800000
HREP = 0x1100
WS_SIZE = 0x1000000
CM, CL, OB, FR, FLG, QOP, CO = 0, 512, 1024, 1280, 1792, 2048, 6656
F_CNT, F_QC, F_NON, F_AC = FLG, FLG + 4, FLG + 8, FLG + 12
CO_BR, CO_W, CO_H = 33792, 4224, 528
LDS_SIZE = 74240
KB, VB, KA, VA, W1, W2, WS, XS, GT, OUT, DBG = 4, 8, 12, 16, 20, 24, 28, 32, 36, 40, 44
S_SELLO, S_SELHI, S_C, S_NONCE, S_GRP, S_IDX, S_SPLIT, S_BB, S_AB = 76, 77, 78, 79, 80, 81, 82, 83, 84
S_T0, S_T1, S_T2, S_T3, S_CNT, S_J, S_W = 85, 86, 87, 88, 89, 90, 91
S_POB, S_POA, S_MLB, S_MLA = 92, 93, 94, 95
S_OK, S_QA, S_QB = 99, 100, 101
V_K0, V_K1, V_L0, V_L1 = 1, 2, 3, 4
V_COW, V_MLW, V_QR, V_COR, V_MLR, V_FLG, V_QW, V_X, V_WA, V_GA, V_GB = 5, 6, 7, 8, 9, 10, 11, 12, 13, 14, 15
V_PO = V_X
HA = [1, 1, 2, 4, 13]
V_HR = V_QW
S_H1 = 97
WSET = [16, 20]
T = list(range(24, 32))
OACC, QR, SR, PR, V_M, V_LS, V_U0, V_U1 = 32, 64, 80, 88, 92, 93, 94, 95
RING = [96 + 32 * i for i in range(5)]
QRX = 16
S_NA = 24
SPIN_MAX = 20000

class G:
    def __init__(self, stamps=False, opts=None):
        self.L = []; self.stamps = stamps; self.lab = 0
        self.o = opts or {}
        self.q = []
        self.pace = 0; self.resmul = None
    def opt(self, k, d): return int(self.o.get(k, d))
    def e(self, s): self.L.append("    " + s)
    def label(self, s): self.L.append(s + ":")
    def newlab(self, p):
        self.lab += 1; return f"L_{p}{self.lab}"
    def srd(self, d, b, n):
        self.e(f"s_mov_b32 s{d}, s{b}"); self.e(f"s_mov_b32 s{d+1}, s{b+1}")
        self.e(f"s_mov_b32 s{d+2}, {hex(n)}"); self.e(f"s_mov_b32 s{d+3}, 0x20000")
    def stamp(self, i):
        if self.stamps: self.e(f"s_memrealtime s[{48+2*i}:{49+2*i}]")
    def stamp_flush(self):
        if not self.stamps: return
        e = self.e
        if self.opt("dbgst", 0):
            if self.isO or not self.old: return
            lab = self.newlab("dbg")
            e("s_waitcnt lgkmcnt(0)")
            e("s_cmp_lg_u32 s3, 0"); e(f"s_cbranch_scc1 {lab}")
            e(f"s_mul_i32 s92, s{S_J}, 43"); e("s_lshr_b32 s93, s92, 0")
            e(f"s_cmp_gt_u32 s{S_J}, 3"); e(f"s_cbranch_scc1 {lab}")
            e(f"s_cmp_eq_u32 s{S_J}, 0"); e(f"s_cbranch_scc1 {lab}")
            for k, i in enumerate((5, 8, 9, 10)):
                e(f"s_sub_u32 s92, s{48+2*i}, s48"); e(f"v_mov_b32 v{16+k}, s92")
            e(f"s_lshl_b32 s92, s{S_J}, 4")
            e("s_mov_b64 exec, 1")
            e(f"buffer_store_dwordx4 v[16:19], off, s[{DBG}:{DBG+3}], s92")
            e("s_mov_b64 exec, -1")
            self.label(lab)
            return
        e("s_waitcnt lgkmcnt(0)")
        e("s_lshl_b32 s92, s2, 3"); e("s_add_u32 s92, s92, s3"); e("s_lshl_b32 s92, s92, 7"); e(f"s_add_u32 s92, s92, {hex(STAMP)}")
        e("s_mov_b64 exec, 1")
        for i in range(12):
            e(f"v_mov_b32 v16, s{48+2*i}"); e(f"v_mov_b32 v17, s{49+2*i}")
            e(f"buffer_store_dwordx2 v[16:17], off, s[{WS}:{WS+3}], s92 offset:{i*8}")
            e("s_nop 0")
        e("s_mov_b64 exec, -1")
    def vm(self, s, tag, paced=True):
        if paced and self.pace and len(self.q) >= self.pace:
            self.e(f"s_waitcnt vmcnt({self.pace-1})")
        self.e(s); self.q.append(tag)
    def wait(self, tag, keep=0):
        idx = [i for i, t in enumerate(self.q) if t == tag]
        if not idx: return
        last = idx[len(idx) - 1 - keep]
        n = len(self.q) - 1 - last
        assert n <= 63
        self.e(f"s_waitcnt vmcnt({n})")
        self.q = self.q[last + 1:]
    def k_unit(self, r, srd, soff, tag):
        for j in range(8):
            t, jj = j >> 2, j & 3
            self.vm(f"buffer_load_dwordx4 v[{r+j*4}:{r+j*4+3}], v{V_K1 if t else V_K0}, s[{srd}:{srd+3}], s{soff} offen offset:{jj*64} nt", tag)
    def v_unit(self, r, srd, soff, tag):
        if self.o.get("map", "il") == "col8":
            for j in range(8):
                if j: self.e(f"s_add_u32 s{S_T1}, s{soff}, {j*8192}")
                self.vm(f"buffer_load_dwordx4 v[{r+j*4}:{r+j*4+3}], v{V_L0}, s[{srd}:{srd+3}], s{S_T1 if j else soff} offen nt", tag)
            return
        for j in range(8):
            self.vm(f"buffer_load_dwordx4 v[{r+j*4}:{r+j*4+3}], v{V_L1 if j >= 4 else V_L0}, s[{srd}:{srd+3}], s{soff} offen offset:{(j&3)*1024} nt", tag)
    def issue_next(self):
        if not self.seq or not self.free: return False
        u = self.seq.pop(0); r = self.free.pop(0); self.slot[u] = r
        if u[0] == "W":
            self.wo_unit(r, W1 if u == "WA" else W2, u)
        elif u[1] == "H":
            srd = KA if u[0] == "K" else VA
            for j in range(4):
                if u[0] == "K": self.vm(f"buffer_load_dwordx4 v[{r+j*4}:{r+j*4+3}], v{V_K0}, s[{srd}:{srd+3}], s{S_AB} offen offset:{j*64} nt", u)
                else: self.vm(f"buffer_load_dwordx4 v[{r+j*4}:{r+j*4+3}], v{V_L0}, s[{srd}:{srd+3}], s{S_AB} offen offset:{j*1024} nt", u)
        elif u[1] == "A":
            if u[0] == "K": self.k_unit(r, KA, S_AB, u)
            else: self.v_unit(r, VA, S_AB, u)
        else:
            t = int(u[1])
            self.e(f"s_add_u32 s{S_T0}, s{S_BB}, {hex(t * 0x200000)}")
            if u[0] == "K": self.k_unit(r, KB, S_T0, u)
            else: self.v_unit(r, VB, S_T0, u)
        return True
    def release(self, u):
        self.free.append(self.slot[u])
    def wo_unit(self, r, srd, tag):
        for ee in range(8):
            off = ((ee & 3) * 8 + (ee >> 2)) * 2048
            self.e(f"s_add_u32 s{S_T0}, s{S_W}, {off & ~4095}")
            self.vm(f"buffer_load_dwordx4 v[{r+ee*4}:{r+ee*4+3}], v{V_WA}, s[{srd}:{srd+3}], s{S_T0} offen offset:{off & 4095} nt", tag)
    def perm1(self, dst, src, dd, p):
        sel = S_SELHI if dd & 1 else S_SELLO
        self.e(f"v_perm_b32 v{dst+p}, v{src+(2*p+1)*4+(dd>>1)}, v{src+(2*p)*4+(dd>>1)}, s{sel}")
    def perms(self, dst, src, dd):
        for p in range(4): self.perm1(dst, src, dd, p)
    def mfma(self, d, a, b, c):
        cs = "0" if c is None else f"v[{c}:{c+3}]"
        self.e(f"v_mfma_f32_16x16x32_bf16 v[{d}:{d+3}], v[{a}:{a+3}], v[{b}:{b+3}], {cs}")
    def perm_mfma8(self, src, other, first, w_is_a, acc=OACC):
        def mm(dd):
            w = WSET[dd & 1]; d = acc + dd * 4
            if w_is_a: self.mfma(d, w, other, None if first else d)
            else: self.mfma(d, other, w, None if first else d)
        self.perms(WSET[0], src, 0)
        for dd in range(1, 8):
            self.perms(WSET[dd & 1], src, dd)
            mm(dd - 1)
        self.e("s_nop 0")
        mm(7)
    def pv_last(self, tag, src, dst, first):
        self.wait(tag, keep=2)
        for p in range(3):
            for dd in range(8): self.perm1(dst + dd * 4, src, dd, p)
        self.wait(tag)
        self.stamp(6)
        for dd in range(8):
            self.perm1(dst + dd * 4, src, dd, 3)
            if dd >= 2: self.mfma(OACC + (dd-2) * 4, dst + (dd-2) * 4, PR, None if first else OACC + (dd-2) * 4)
        self.e("s_nop 0")
        for dd in (6, 7): self.mfma(OACC + dd * 4, dst + dd * 4, PR, None if first else OACC + dd * 4)
    def qk(self, r):
        for jj in range(4):
            self.mfma(SR, r + jj * 4, QR + jj * 4, None if jj == 0 else SR)
            self.mfma(SR + 4, r + 16 + jj * 4, QR + jj * 4, None if jj == 0 else SR + 4)
    def xlane(self, op, t, u, kinds):
        for k in kinds:
            self.e(f"v_mov_b32 v{u}, v{t}"); self.e("s_nop 1")
            self.e(f"v_permlane{k}_swap_b32 v{t}, v{u}")
            self.e(f"{op} v{t}, v{t}, v{u}")
    def dpp(self, op, t, rors):
        for r in rors:
            self.e("s_nop 1")
            self.e(f"{op}_dpp v{t}, v{t}, v{t} row_ror:{r} row_mask:0xf bank_mask:0xf")
    def tilemax(self, first):
        e = self.e; t, u = T[0], T[1]; S = SR
        e(f"v_max3_f32 v{t}, v{S}, v{S+1}, v{S+2}"); e(f"v_max3_f32 v{t}, v{t}, v{S+3}, v{S+4}")
        e(f"v_max3_f32 v{t}, v{t}, v{S+5}, v{S+6}")
        if first: e(f"v_max_f32 v{t}, v{t}, v{S+7}")
        else: e(f"v_max3_f32 v{t}, v{t}, v{S+7}, v{V_M}")
        self.xlane("v_max_f32", t, u, (16, 32))
    def softmax_rest(self, first, V_M=V_M, V_LS=V_LS):
        e = self.e; t, u, mc, al = T[0], T[1], T[2], T[4]; S = SR
        e(f"v_mul_f32 v{mc}, s{S_C}, v{t}")
        if not first:
            e(f"v_fma_f32 v{al}, v{V_M}, s{S_C}, -v{mc}")
            e(f"v_exp_f32 v{al}, v{al}")
        e(f"v_mov_b32 v{V_M}, v{t}")
        for i in range(8): e(f"v_fma_f32 v{S+i}, v{S+i}, s{S_C}, -v{mc}")
        for i in range(8): e(f"v_exp_f32 v{S+i}, v{S+i}")
        if not first:
            for i in range(16):
                e(f"v_pk_mul_f32 v[{OACC+2*i}:{OACC+2*i+1}], v[{OACC+2*i}:{OACC+2*i+1}], v[{al}:{al+1}] op_sel_hi:[1,0]")
        else:
            e("s_nop 0")
        e(f"v_add_f32 v{t}, v{S}, v{S+1}"); e(f"v_add_f32 v{u}, v{S+2}, v{S+3}")
        e(f"v_add_f32 v{t}, v{t}, v{S+4}"); e(f"v_add_f32 v{u}, v{u}, v{S+5}")
        e(f"v_add_f32 v{t}, v{t}, v{S+6}"); e(f"v_add_f32 v{u}, v{u}, v{S+7}")
        for p in range(4): e(f"v_cvt_pk_bf16_f32 v{PR+p}, v{S+2*p}, v{S+2*p+1}")
        e(f"v_add_f32 v{t}, v{t}, v{u}")
        if first: e(f"v_mov_b32 v{V_LS}, v{t}")
        else: e(f"v_fma_f32 v{V_LS}, v{V_LS}, v{al}, v{t}")
    def softmax_common(self, first, br, tmp, hook=None, rescale_only=False):
        e = self.e
        if not rescale_only: self.tilemax(first)
        e("s_mov_b64 exec, 0xff")
        e(f"ds_write_b32 v{V_MLW}, v{T[0]} offset:{CM + br*256}")
        e("s_mov_b64 exec, -1")
        e("s_waitcnt lgkmcnt(0)")
        if not (br == 0 and self.opt("noabar", 0)): e("s_barrier")
        e(f"ds_read_b128 v[{tmp}:{tmp+3}], v{V_U0} offset:{CM + br*256}")
        e(f"ds_read_b128 v[{tmp+4}:{tmp+7}], v{V_U0} offset:{CM + br*256 + 16}")
        e(f"ds_read_b128 v[{tmp+8}:{tmp+11}], v{V_MLR} offset:{CM + br*256}")
        e(f"ds_read_b128 v[{tmp+12}:{tmp+15}], v{V_MLR} offset:{CM + br*256 + 16}")
        if hook: hook()
        e("s_waitcnt lgkmcnt(2)")
        t = T[0]
        e(f"v_max3_f32 v{t}, v{tmp}, v{tmp+1}, v{tmp+2}"); e(f"v_max3_f32 v{t}, v{t}, v{tmp+3}, v{tmp+4}")
        e(f"v_max3_f32 v{t}, v{t}, v{tmp+5}, v{tmp+6}"); e(f"v_max_f32 v{t}, v{t}, v{tmp+7}")
        if rescale_only:
            al = T[4]
            e(f"v_sub_f32 v{al}, v{V_M}, v{t}"); e(f"v_mul_f32 v{al}, s{S_C}, v{al}"); e(f"v_exp_f32 v{al}, v{al}"); e("s_nop 0")
            e(f"v_mul_f32 v{V_LS}, v{V_LS}, v{al}")
            for i in range(16):
                e(f"v_pk_mul_f32 v[{OACC+2*i}:{OACC+2*i+1}], v[{OACC+2*i}:{OACC+2*i+1}], v[{al}:{al+1}] op_sel_hi:[1,0]")
        else:
            self.softmax_rest(first)
            self.xlane("v_add_f32", V_LS, T[1], (16, 32))
        e("s_mov_b64 exec, 0xff")
        e(f"ds_write_b32 v{V_MLW}, v{V_LS} offset:{CL + br*256}")
        e("s_mov_b64 exec, -1")
        e("s_waitcnt lgkmcnt(1)")
        m = tmp + 8
        e(f"v_max3_f32 v{tmp+18}, v{m}, v{m+1}, v{m+2}"); e(f"v_max3_f32 v{tmp+18}, v{tmp+18}, v{m+3}, v{m+4}")
        e(f"v_max3_f32 v{tmp+18}, v{tmp+18}, v{m+5}, v{m+6}"); e(f"v_max_f32 v{tmp+18}, v{tmp+18}, v{m+7}")
        e(f"v_mov_b32 v{tmp+19}, s{S_NONCE}")
        e(f"v_and_b32 v{tmp+16}, 1, v0"); e(f"v_cmp_eq_u32 vcc, 1, v{tmp+16}")
    def write_o(self, br, OACC=OACC):
        e = self.e
        e("s_mov_b32 exec_lo, 0x00ff00ff"); e("s_mov_b32 exec_hi, 0x00ff00ff")
        for dd in range(8):
            e(f"ds_write_b128 v{V_COW}, v[{OACC+dd*4}:{OACC+dd*4+3}] offset:{br*CO_BR + dd*16}")
        e("s_mov_b64 exec, -1")
    def read_q(self, br):
        for jj in range(4):
            self.e(f"ds_read_b128 v[{QR+jj*4}:{QR+jj*4+3}], v{V_QR} offset:{br*2176 + jj*64}")
    def o_publish(self, R):
        e = self.e
        l = R + 20
        e(f"ds_read_b128 v[{l}:{l+3}], v{V_MLR} offset:{CL + 256}"); e(f"ds_read_b128 v[{l+4}:{l+7}], v{V_MLR} offset:{CL + 256 + 16}")
        for w in range(8):
            e(f"ds_read_b64 v[{R+2*w}:{R+2*w+1}], v{V_COR} offset:{CO_BR + w*CO_W}")
        P = R + 16
        pk = lambda d, x, y: e(f"v_pk_add_f32 v[{d}:{d+1}], v[{x}:{x+1}], v[{y}:{y+1}]")
        e("s_waitcnt lgkmcnt(8)")
        pk(l, l, l + 2); pk(l + 4, l + 4, l + 6); pk(l, l, l + 4)
        e("s_waitcnt lgkmcnt(4)")
        pk(R, R, R + 2); pk(R + 4, R + 4, R + 6)
        e(f"v_add_f32 v{l}, v{l}, v{l+1}")
        e("s_waitcnt lgkmcnt(0)")
        pk(R + 8, R + 8, R + 10); pk(R + 12, R + 12, R + 14)
        pk(R, R, R + 4); pk(R + 8, R + 8, R + 12)
        e(f"v_cndmask_b32 v{R+18}, v{R+18}, v{l}, vcc")
        pk(P, R, R + 8)
        self.vm(f"buffer_store_dwordx4 v[{P}:{P+3}], v{V_PO}, s[{WS}:{WS+3}], s{S_POB} offen sc1", "st", paced=False)
    def combine_a(self, R, hoff, P, na):
        e = self.e
        if na == 4: m, l, o = R, R + 4, R + 8
        else: m, l, o = SR, QRX, R
        M, mc = R + 16, T[2]
        for i in range(na // 4):
            e(f"ds_read_b128 v[{m+4*i}:{m+4*i+3}], v{V_MLR} offset:{CM + hoff*32 + 16*i}")
        for i in range(na // 4):
            e(f"ds_read_b128 v[{l+4*i}:{l+4*i+3}], v{V_MLR} offset:{CL + hoff*32 + 16*i}")
        for w in range(na): e(f"ds_read_b64 v[{o+2*w}:{o+2*w+1}], v{V_COR} offset:{w*CO_W + hoff*CO_H}")
        e(f"v_mov_b32 v{P+3}, s{S_NONCE}")
        e(f"v_and_b32 v{M+1}, 1, v0"); e(f"v_cmp_eq_u32 vcc, 1, v{M+1}")
        e(f"s_waitcnt lgkmcnt({na + na//4})")
        e(f"v_max3_f32 v{M}, v{m}, v{m+1}, v{m+2}"); e(f"v_max_f32 v{M}, v{M}, v{m+3}")
        if na == 8:
            e(f"v_max3_f32 v{M}, v{M}, v{m+4}, v{m+5}"); e(f"v_max3_f32 v{M}, v{M}, v{m+6}, v{m+7}")
        e(f"v_mul_f32 v{mc}, s{S_C}, v{M}")
        for w in range(na): e(f"v_fma_f32 v{m+w}, v{m+w}, s{S_C}, -v{mc}")
        for w in range(na): e(f"v_exp_f32 v{m+w}, v{m+w}")
        e("s_waitcnt lgkmcnt(0)")
        e(f"v_mul_f32 v{P}, v{m}, v{o}"); e(f"v_mul_f32 v{P+1}, v{m}, v{o+1}"); e(f"v_mul_f32 v{M+2}, v{m}, v{l}")
        for w in range(1, na):
            e(f"v_fmac_f32 v{P}, v{m+w}, v{o+2*w}"); e(f"v_fmac_f32 v{P+1}, v{m+w}, v{o+2*w+1}"); e(f"v_fmac_f32 v{M+2}, v{m+w}, v{l+w}")
        e(f"v_cndmask_b32 v{P+2}, v{M}, v{M+2}, vcc")
    def a_tile(self, half):
        e = self.e
        uk, uv = ("KH", "VH") if half else ("KA", "VA")
        self.read_q(0)
        self.wait(uk)
        e("s_waitcnt lgkmcnt(0)")
        r = self.slot[uk]
        if half:
            for jj in range(4): self.mfma(SR, r + jj * 4, QR + jj * 4, None if jj == 0 else SR)
            for i in range(4): e(f"v_mov_b32 v{SR+4+i}, 0xff7fffff")
        else:
            self.qk(r)
        acc = r
        self.read_q(1)
        e("s_nop 3")
        self.tilemax(True); self.softmax_rest(True, T[5], T[6])
        self.xlane("v_add_f32", T[6], T[1], (16, 32))
        e("s_mov_b64 exec, 0xff")
        e(f"ds_write_b32 v{V_MLW}, v{T[5]} offset:{CM}")
        e(f"ds_write_b32 v{V_MLW}, v{T[6]} offset:{CL}")
        e("s_mov_b64 exec, -1")
        if half:
            for i in range(16): e(f"v_mov_b32 v{self.slot[uv]+16+i}, 0")
        self.wait(uv)
        self.perm_mfma8(self.slot[uv], PR, True, True, acc); self.release(uv)
        if not self.issue_next(): e("s_nop 3")
        self.write_o(0, acc); self.release(uk)
        e(f"v_mov_b32 v{T[1]}, 1")
        e("s_mov_b64 exec, 1"); e(f"ds_add_u32 v{V_FLG}, v{T[1]} offset:{F_AC - FLG}"); e("s_mov_b64 exec, -1")
        e("s_waitcnt lgkmcnt(0)")
        self.issue_next()
    def pub_addrs(self, with_a):
        e = self.e
        for br, sp, po, ml in ((1, S_SPLIT, S_POB, S_MLB), (0, S_SPLIT, S_POA, S_MLA)):
            if br == 0 and not with_a: continue
            e(f"s_lshl_b32 s{po}, s{S_GRP}, 3"); e(f"s_add_u32 s{po}, s{po}, s3"); e(f"s_lshl_b32 s{po}, s{po}, 15")
            e(f"s_lshl_b32 s{S_T1}, s{sp}, 7"); e(f"s_add_u32 s{po}, s{po}, s{S_T1}"); e(f"s_add_u32 s{po}, s{po}, {hex(PO + br*8*32*8192)}")
    def check(self, tags):
        e = self.e; acc = T[7]
        e(f"v_xor_b32 v{acc}, s{S_NONCE}, v{tags[0]}")
        for t in tags[1:]:
            e(f"v_xor_b32 v{T[6]}, s{S_NONCE}, v{t}"); e(f"v_or_b32 v{acc}, v{acc}, v{T[6]}")
        e(f"v_cmp_ne_u32 vcc, 0, v{acc}")
    def poll(self, loads, tags, sleep=1, pre_issued=False):
        e = self.e
        lp, ok, chk = self.newlab("poll"), self.newlab("ok"), self.newlab("chk")
        e(f"s_mov_b32 s{S_CNT}, 0")
        if pre_issued: e(f"s_branch {chk}")
        self.label(lp)
        for s in loads: e(s)
        e("s_waitcnt vmcnt(0)")
        self.label(chk)
        self.check(tags)
        e(f"s_add_u32 s{S_CNT}, s{S_CNT}, 1")
        e(f"s_cbranch_vccz {ok}")
        e(f"s_cmp_gt_u32 s{S_CNT}, {SPIN_MAX}")
        e(f"s_cbranch_scc1 {ok}")
        if sleep: e(f"s_sleep {sleep}")
        e(f"s_branch {lp}")
        self.label(ok)
    def poll_pipe(self, mk, nreg, sets, first_issued=0):
        e = self.e
        nl = len(mk(sets[0])); ns = len(sets)
        lp, done = self.newlab("pp"), self.newlab("ppdone")
        oks = [self.newlab("ppok") for _ in sets]
        def cp(b):
            if self.resmul is None:
                e(f"v_add_f32 v{self.res}, v{b}, v{b+4}"); e(f"v_add_f32 v{self.res+1}, v{b+2}, v{b+6}")
            else:
                for i, w in enumerate(self.resmul):
                    op = "v_mul_f32" if i == 0 else "v_fmac_f32"
                    e(f"{op} v{self.res}, v{b+4*i}, v{w}"); e(f"{op} v{self.res+1}, v{b+4*i+2}, v{w}")
        e(f"s_mov_b32 s{S_CNT}, 0")
        for i in range(first_issued, ns):
            for s in mk(sets[i]): e(s)
            if i < ns - 1: e(f"s_sleep {self.opt('ppsleep', 2)}")
        self.label(lp)
        for i in range(ns):
            e(f"s_waitcnt vmcnt({(nl + self.opt('ppinv', 0)) * (ns - 1)})")
            self.check([sets[i] + 1 + 2 * k for k in range(nreg // 2)])
            e(f"s_cbranch_vccz {oks[i]}")
            if self.opt("ppinv", 0): e("buffer_inv sc1")
            if self.opt("ppgap", 0): e(f"s_sleep {self.opt('ppgap', 0)}")
            for s in mk(sets[i]): e(s)
        e(f"s_add_u32 s{S_CNT}, s{S_CNT}, 1")
        e(f"s_cmp_gt_u32 s{S_CNT}, {SPIN_MAX}")
        e(f"s_cbranch_scc0 {lp}")
        for i in range(ns - 1, 0, -1):
            self.label(oks[i])
            cp(sets[i])
            e(f"s_branch {done}")
        self.label(oks[0])
        cp(sets[0])
        self.label(done)
    def poll_missing(self, loads, tags, sleep, first=True, hook=None):
        e = self.e
        n = len(loads)
        lp, done = self.newlab("pm"), self.newlab("pmdone")
        MK = [60, 62, 64, 66] if not self.stamps else [40, 42, 36, 38]
        MK = self.mk
        e(f"s_mov_b32 s{S_CNT}, 0")
        if first:
            for s_ in loads: e(s_)
        self.label(lp)
        e("s_waitcnt vmcnt(0)")
        for i in range(n):
            tg = tags[i]
            if len(tg) == 1:
                e(f"v_cmp_ne_u32 s[{MK[i]}:{MK[i]+1}], s{S_NONCE}, v{tg[0]}")
            else:
                e(f"v_xor_b32 v{T[6]}, s{S_NONCE}, v{tg[0]}"); e(f"v_xor_b32 v{T[7]}, s{S_NONCE}, v{tg[1]}"); e(f"v_or_b32 v{T[6]}, v{T[6]}, v{T[7]}")
                e(f"v_cmp_ne_u32 s[{MK[i]}:{MK[i]+1}], 0, v{T[6]}")
        if n == 1: e(f"s_or_b64 vcc, s[{MK[0]}:{MK[0]+1}], s[{MK[0]}:{MK[0]+1}]")
        else:
            e(f"s_or_b64 vcc, s[{MK[0]}:{MK[0]+1}], s[{MK[1]}:{MK[1]+1}]")
            for i in range(2, n): e(f"s_or_b64 vcc, vcc, s[{MK[i]}:{MK[i]+1}]")
        e(f"s_cbranch_scc0 {done}")
        e(f"s_add_u32 s{S_CNT}, s{S_CNT}, 1")
        e(f"s_cmp_gt_u32 s{S_CNT}, {SPIN_MAX}"); e(f"s_cbranch_scc1 {done}")
        if sleep: e(f"s_sleep {sleep}")
        for i in range(n):
            sk = self.newlab("pms")
            e(f"s_mov_b64 exec, s[{MK[i]}:{MK[i]+1}]")
            e(f"s_cbranch_execz {sk}")
            e(loads[i])
            self.label(sk)
        e("s_mov_b64 exec, -1")
        if hook: hook()
        e(f"s_branch {lp}")
        self.label(done)
    def lds_spin(self, off, target=None, dst=S_T3):
        if self.opt("noq", 0): return
        e = self.e
        lp, ok = self.newlab("ls"), self.newlab("lsok")
        e(f"s_mov_b32 s{S_CNT}, 0")
        self.label(lp)
        e(f"ds_read_b32 v{T[7]}, v{V_FLG} offset:{off - FLG}")
        e("s_waitcnt lgkmcnt(0)")
        e(f"v_readfirstlane_b32 s{dst}, v{T[7]}")
        e(f"s_add_u32 s{S_CNT}, s{S_CNT}, 1")
        if target is None: e(f"s_cmp_lg_u32 s{dst}, 0")
        else: e(f"s_cmp_eq_u32 s{dst}, {target}")
        e(f"s_cbranch_scc1 {ok}")
        e(f"s_cmp_gt_u32 s{S_CNT}, {SPIN_MAX*50}")
        e(f"s_cbranch_scc1 {ok}")
        e("s_sleep 1")
        e(f"s_branch {lp}")
        self.label(ok)
    def get_nonce(self):
        e = self.e
        lp, ok = self.newlab("nn"), self.newlab("nnok")
        e(f"s_mov_b32 s{S_CNT}, 0")
        self.label(lp)
        e(f"v_readfirstlane_b32 s{S_NONCE}, v{V_U1}")
        e(f"s_add_u32 s{S_CNT}, s{S_CNT}, 1")
        e(f"s_cmp_lg_u32 s{S_NONCE}, 0")
        e(f"s_cbranch_scc1 {ok}")
        e(f"s_cmp_gt_u32 s{S_CNT}, {SPIN_MAX}")
        e(f"s_cbranch_scc1 {ok}")
        e(f"buffer_load_dword v{V_U1}, off, s[{DBG}:{DBG+3}], 0 sc1")
        e("s_waitcnt vmcnt(0)")
        e(f"s_branch {lp}")
        self.label(ok)
    def qpoll_loads(self):
        return [f"buffer_load_dwordx4 v[{OACC}:{OACC+3}], v{V_L0}, s[{WS}:{WS+3}], s{S_QB} offen sc1",
                f"buffer_load_dwordx4 v[{OACC+4}:{OACC+7}], v{V_L0}, s[{WS}:{WS+3}], s{S_QA} offen sc1"]
    def qcommit(self):
        e = self.e
        e(f"v_mov_b32 v{OACC+1}, v{OACC+2}"); e(f"v_mov_b32 v{OACC+5}, v{OACC+6}")
        e(f"v_mov_b32 v{T[0]}, s{S_NONCE}"); e(f"v_mov_b32 v{T[1]}, 1")
        e(f"ds_write_b64 v{V_QW}, v[{OACC}:{OACC+1}] offset:2176")
        e(f"ds_write_b64 v{V_QW}, v[{OACC+4}:{OACC+5}]")
        e("s_mov_b64 exec, 1")
        e(f"ds_write_b32 v{V_FLG}, v{T[0]} offset:{F_NON - FLG}")
        e(f"ds_add_u32 v{V_FLG}, v{T[1]} offset:{F_QC - FLG}")
        e("s_mov_b64 exec, -1")
        e(f"s_mov_b32 s{S_OK}, 1")
        self.stamp(4)
    def qcheck(self):
        e = self.e
        skip = self.newlab("qskip")
        e(f"s_cmp_eq_u32 s{S_OK}, 1"); e(f"s_cbranch_scc1 {skip}")
        self.check([OACC + 1, OACC + 3, OACC + 5, OACC + 7])
        e(f"s_cbranch_vccnz {skip}")
        self.qcommit()
        self.label(skip)
    def young_prefetch(self, nonce_ready):
        e = self.e
        e(f"s_lshl_b32 s{S_QA}, s{S_GRP}, 12"); e(f"s_and_b32 s{S_T1}, s3, 3"); e(f"s_lshl_b32 s{S_T2}, s{S_T1}, 10"); e(f"s_add_u32 s{S_QA}, s{S_QA}, s{S_T2}")
        if QG: e(f"s_add_u32 s{S_QA}, s{S_QA}, {QG}")
        e(f"s_add_u32 s{S_QB}, s{S_QA}, 32768")
        e(f"s_mul_i32 s{S_T1}, s{S_T1}, 544"); e(f"v_add_u32 v{V_QW}, s{S_T1}, v{V_QW}")
        e(f"s_mov_b32 s{S_OK}, 0")
        first = self.opt("qfirst", 1)
        k = 0
        pend = False
        while True:
            if k >= first:
                if not nonce_ready and k == first:
                    self.vm(f"buffer_load_dword v{V_U1}, off, s[{DBG}:{DBG+3}], 0 sc1", "nn", paced=False)
                for s_ in self.qpoll_loads(): self.vm(s_, f"qp{k}", paced=False)
                pend = True
            ok = self.issue_next()
            if pend:
                self.wait(f"qp{k}")
                if not nonce_ready:
                    self.get_nonce(); nonce_ready = True
                self.qcheck()
                pend = False
            k += 1
            if not ok or not self.free: break
        done = self.newlab("qd")
        e(f"s_cmp_eq_u32 s{S_OK}, 1"); e(f"s_cbranch_scc1 {done}")
        self.poll(self.qpoll_loads(), [OACC + 1, OACC + 3, OACC + 5, OACC + 7], sleep=1)
        self.qcommit()
        self.label(done)
    def wait_q(self):
        e = self.e
        self.lds_spin(F_QC, 4)
        if self.opt("noq", 0): return
        e(f"ds_read_b32 v{T[7]}, v{V_FLG} offset:{F_NON - FLG}")
        e("s_waitcnt lgkmcnt(0)")
        e(f"v_readfirstlane_b32 s{S_NONCE}, v{T[7]}")

    def build(self):
        e = self.e; L = self.L
        L.append(f"; @launch grid=(256,1,1) block=(512,1,1) lds={LDS_SIZE}")
        L.append('.amdgcn_target "amdgcn-amd-amdhsa--gfx950"')
        L.append(".text"); L.append(f".globl {KNAME}"); L.append(".p2align 8"); L.append(f".type {KNAME},@function"); L.append(f"{KNAME}:")
        e("s_cmp_ge_u32 s2, 256"); e("s_cbranch_scc1 L_end")
        e("s_load_dwordx16 s[48:63], s[0:1], 0")
        e("s_load_dwordx8 s[64:71], s[0:1], 64")
        e("s_load_dwordx4 s[72:75], s[0:1], 96")
        e("s_memrealtime s[96:97]")
        e("v_lshrrev_b32 v1, 6, v0")
        e("v_and_b32 v0, 63, v0")
        e("v_readfirstlane_b32 s3, v1")
        e(f"v_mov_b32 v{V_FLG}, {FLG}")
        e("v_mov_b32 v28, 0"); e("v_mov_b32 v29, 0"); e("v_mov_b32 v30, 0"); e("v_mov_b32 v31, 0")
        e("s_cmp_lg_u32 s3, 0"); e("s_cbranch_scc1 L_noinit")
        e(f"ds_write_b128 v{V_FLG}, v[28:31]")
        self.label("L_noinit")
        e("v_and_b32 v24, 15, v0"); e("v_lshrrev_b32 v25, 4, v0")
        col8 = self.o.get("map", "il") == "col8"
        e("v_and_b32 v26, 3, v24"); e(f"v_lshlrev_b32 v26, {13 if col8 else 10}, v26")
        e("v_lshrrev_b32 v27, 2, v24"); e("v_lshl_add_u32 v26, v27, 8, v26")
        e(f"v_lshl_add_u32 v{V_K0}, v25, 4, v26")
        e(f"v_add_u32 v{V_K1}, {32768 if col8 else 4096}, v{V_K0}")
        e(f"v_lshlrev_b32 v{V_L0}, 4, v0"); e(f"v_add_u32 v{V_L1}, 4096, v{V_L0}")
        e(f"s_lshr_b32 s{S_GRP}, s2, 5"); e(f"s_and_b32 s{S_IDX}, s2, 15"); e(f"s_and_b32 s{S_SPLIT}, s2, 31")
        e(f"s_lshl_b32 s{S_J}, s{S_GRP}, 4"); e(f"s_add_u32 s{S_J}, s{S_J}, s{S_IDX}")
        e(f"s_lshl_b32 s{S_T0}, s{S_GRP}, 23")
        if col8:
            e(f"s_lshl_b32 s{S_BB}, s{S_SPLIT}, 16"); e(f"s_lshl_b32 s{S_T1}, s3, 10"); e(f"s_add_u32 s{S_BB}, s{S_BB}, s{S_T1}"); e(f"s_add_u32 s{S_BB}, s{S_BB}, s{S_T0}")
            e(f"s_lshr_b32 s{S_AB}, s{S_SPLIT}, 1"); e(f"s_lshl_b32 s{S_AB}, s{S_AB}, 16"); e(f"s_add_u32 s{S_AB}, s{S_AB}, s{S_T1}")
            e(f"s_and_b32 s{S_T1}, s{S_SPLIT}, 1"); e(f"s_lshl_b32 s{S_T1}, s{S_T1}, 12"); e(f"s_add_u32 s{S_AB}, s{S_AB}, s{S_T1}"); e(f"s_add_u32 s{S_AB}, s{S_AB}, s{S_T0}")
        else:
            e(f"s_lshl_b32 s{S_BB}, s{S_SPLIT}, 3"); e(f"s_add_u32 s{S_BB}, s{S_BB}, s3"); e(f"s_lshl_b32 s{S_BB}, s{S_BB}, 13"); e(f"s_add_u32 s{S_BB}, s{S_BB}, s{S_T0}")
            e(f"s_lshl_b32 s{S_AB}, s{S_SPLIT}, 2"); e(f"s_add_u32 s{S_AB}, s{S_AB}, s3"); e(f"s_lshl_b32 s{S_AB}, s{S_AB}, 13"); e(f"s_add_u32 s{S_AB}, s{S_AB}, s{S_T0}")
        e(f"s_add_u32 s{S_AB}, s{S_AB}, 0x700000")
        e("s_bitcmp1_b32 s2, 4"); e("s_cbranch_scc1 L_roleO")
        self.q = []
        self.roleQ()
        self.label("L_roleO")
        self.q = []
        self.roleO()
        self.label("L_end"); e("s_endpgm"); self.label("L_code_end")
        L.append('.section .rodata,"a"'); L.append(".p2align 6"); L.append(f".amdhsa_kernel {KNAME}")
        for s in ["next_free_vgpr 256", "next_free_sgpr 102", "accum_offset 256", "group_segment_fixed_size 0", "kernarg_size 112",
                  "user_sgpr_count 2", "user_sgpr_kernarg_segment_ptr 1", "system_sgpr_workgroup_id_x 1"]:
            L.append("  .amdhsa_" + s)
        L.append(".end_amdhsa_kernel")
        txt = "\n".join(L) + "\n"
        import re
        if self.opt("ld01", 0): txt = re.sub(r"(buffer_load[^\n]*) sc1", r"\1 sc0 sc1", txt)
        if self.opt("st01", 0): txt = re.sub(r"(buffer_store[^\n]*) sc1", r"\1 sc0 sc1", txt)
        return txt

    def common_setup(self):
        e = self.e
        e(f"s_mov_b32 s{S_SELLO}, 0x05040100"); e(f"s_mov_b32 s{S_SELHI}, 0x07060302")
        e(f"s_mov_b32 s{S_C}, {hex(f2u(math.log2(math.e) / math.sqrt(128.0)))}")
        e(f"s_mul_i32 s{S_T0}, s3, {CO_W}"); e(f"s_add_u32 s{S_T0}, s{S_T0}, {CO}")
        e(f"v_mul_u32_u24 v{V_COW}, {CO_H}, v24"); e(f"v_lshl_add_u32 v{V_COW}, v25, 7, v{V_COW}"); e(f"v_add_u32 v{V_COW}, s{S_T0}, v{V_COW}")
        e(f"s_lshl_b32 s{S_T0}, s3, 2"); e(f"v_lshlrev_b32 v{V_MLW}, 5, v24"); e(f"v_add_u32 v{V_MLW}, s{S_T0}, v{V_MLW}")
        e("v_and_b32 v26, 7, v24"); e(f"v_lshlrev_b32 v{V_U0}, 5, v26")
        e(f"v_mul_u32_u24 v{V_QR}, 272, v26"); e(f"v_lshl_add_u32 v{V_QR}, v25, 4, v{V_QR}"); e(f"v_add_u32 v{V_QR}, {QOP}, v{V_QR}")
        e(f"s_mul_i32 s{S_T0}, s3, {CO_H}"); e(f"s_add_u32 s{S_T0}, s{S_T0}, {CO}"); e(f"v_lshlrev_b32 v{V_COR}, 3, v0"); e(f"v_add_u32 v{V_COR}, s{S_T0}, v{V_COR}")
        e(f"s_lshl_b32 s{S_T0}, s3, 5"); e(f"v_mov_b32 v{V_MLR}, s{S_T0}")
        e("v_lshrrev_b32 v26, 5, v0"); e(f"v_mul_u32_u24 v{V_QW}, 272, v26"); e("v_and_b32 v26, 31, v0"); e(f"v_lshl_add_u32 v{V_QW}, v26, 3, v{V_QW}"); e(f"v_add_u32 v{V_QW}, {QOP}, v{V_QW}")

    def tiles(self, old, pre_tail):
        e = self.e
        self.read_q(1)
        pt = self.opt("pretouch", 0)
        if pt == 1:
            e(f"s_lshl_b32 s{S_T1}, s3, 20"); e(f"s_lshl_b32 s{S_T2}, s2, 7"); e(f"s_add_u32 s{S_T1}, s{S_T1}, s{S_T2}"); e(f"s_add_u32 s{S_T1}, s{S_T1}, 0x80000")
            self.vm(f"buffer_load_dword v{V_U1}, off, s[{WS}:{WS+3}], s{S_T1} nt", "pt", paced=False)
        if pt == 2:
            e(f"s_lshl_b32 s{S_T1}, s3, 20"); e(f"s_lshl_b32 s{S_T2}, s2, 6"); e(f"s_add_u32 s{S_T1}, s{S_T1}, s{S_T2}")
            e(f"v_lshlrev_b32 v{T[0]}, 14, v0")
            self.vm(f"buffer_load_dword v{V_U1}, v{T[0]}, s[{WS}:{WS+3}], s{S_T1} offen nt", "pt", paced=False)
        e(f"v_lshrrev_b32 v{T[0]}, 3, v0"); e(f"v_lshlrev_b32 v{V_PO}, 12, v{T[0]}"); e(f"v_and_b32 v{T[0]}, 7, v0"); e(f"v_lshl_add_u32 v{V_PO}, v{T[0]}, 4, v{V_PO}")
        e("s_waitcnt lgkmcnt(0)")
        if self.amode == "half": self.a_tile(True)
        for t in range(3):
            uk, uv = f"K{t}", f"V{t}"
            self.wait(uk)
            self.qk(self.slot[uk]); self.release(uk)
            if not self.issue_next(): e("s_nop 7")
            self.tilemax(t == 0); self.softmax_rest(t == 0)
            self.wait(uv)
            self.perm_mfma8(self.slot[uv], PR, t == 0, True); self.release(uv)
            self.issue_next()
        if self.amode == "full": self.a_tile(False)
        assert not self.seq, self.seq
        assert len(self.free) >= 1, self.free
        pre_tail()
        R = self.free[0]
        if old:
            if self.amode is None:
                e(f"v_and_b32 v{T[0]}, 1, v0"); e(f"v_cmp_eq_u32 vcc, 1, v{T[0]}"); e(f"v_mov_b32 v{T[1]}, 0xff7fffff")
                for P in (R + 24, R + 28):
                    e(f"v_mov_b32 v{P}, 0"); e(f"v_mov_b32 v{P+1}, 0"); e(f"v_cndmask_b32 v{P+2}, v{T[1]}, v{P}, vcc"); e(f"v_mov_b32 v{P+3}, s{S_NONCE}")
            elif self.isO or not self.opt("rebal", 1):
                self.lds_spin(F_AC, 4)
                self.combine_a(R, 0, R + 24, 4); self.combine_a(R, 4, R + 28, 4)
            else:
                l8, ld = self.newlab("na8"), self.newlab("nad")
                self.lds_spin(F_AC, f"s{S_NA}")
                e(f"s_cmp_eq_u32 s{S_NA}, 8"); e(f"s_cbranch_scc1 {l8}")
                self.combine_a(R, 0, R + 24, 4); self.combine_a(R, 4, R + 28, 4)
                e(f"s_branch {ld}")
                self.label(l8)
                self.combine_a(R, 0, R + 24, 8); self.combine_a(R, 4, R + 28, 8)
                self.label(ld)
            e(f"s_add_u32 s{S_MLA}, s{S_POA}, {4*32768}")
        self.wait("K3")
        self.qk(self.slot["K3"]); self.release("K3")
        R2 = self.free[1]
        e("s_nop 7")
        def after_bm():
            if old:
                self.vm(f"buffer_store_dwordx4 v[{R+24}:{R+27}], v{V_PO}, s[{WS}:{WS+3}], s{S_POA} offen sc1", "st", paced=False)
                self.vm(f"buffer_store_dwordx4 v[{R+28}:{R+31}], v{V_PO}, s[{WS}:{WS+3}], s{S_MLA} offen sc1", "st", paced=False)
        if self.opt("abm", 1) == 0: after_bm()
        hook = after_bm if self.opt("abm", 1) else None
        if old and self.opt("oldfin", 1):
            self.tilemax(False); self.softmax_rest(False)
            self.wait("V3")
            self.perm_mfma8(self.slot["V3"], PR, False, True); self.release("V3")
            self.xlane("v_add_f32", V_LS, T[1], (16, 32))
            e(f"v_mov_b32 v{T[0]}, v{V_M}")
            self.softmax_common(False, 1, R, hook, rescale_only=True)
            self.stamp(2); self.stamp(6)
        else:
            if not old and self.opt("yprio", 1): e("s_setprio 2")
            self.softmax_common(False, 1, R, hook)
            self.stamp(2)
            self.pv_last("V3", self.slot["V3"], R2, False); self.release("V3")
        self.write_o(1)
        e("s_waitcnt lgkmcnt(0)")
        e("s_barrier")
        self.stamp(7)
        self.o_publish(R)
        self.stamp(8)

    def code_prefetch(self, dst):
        e = self.e
        n = self.opt("cpn", 1)
        lab = self.newlab("pc")
        e("s_getpc_b64 s[70:71]" if not self.stamps else "s_getpc_b64 s[74:75]")
        pc = 70 if not self.stamps else 74
        self.label(lab)
        e(f"s_sub_u32 s{pc}, s{pc}, {lab}-{KNAME}"); e(f"s_subb_u32 s{pc+1}, s{pc+1}, 0")
        e(f"s_bfe_u32 s{S_T1}, s2, 0x30003"); e(f"s_lshl_b32 s{S_T1}, s{S_T1}, 2"); e(f"s_add_u32 s{S_T1}, s{S_T1}, s3"); e(f"s_mul_i32 s{S_T1}, s{S_T1}, {1024*n}")
        e(f"v_add_u32 v{T[5]}, s{S_T1}, v{V_L0}")
        e(f"v_min_u32 v{T[5]}, L_code_end-{KNAME}-{16 + 1024*(n-1)}, v{T[5]}")
        for i in range(n):
            self.vm(f"global_load_dword v{V_U1}, v{T[5]}, s[{pc}:{pc+1}] offset:{1024*i}", "cp", paced=False)
    def mkseq(self, old, isO):
        am = self.amode
        q = (["KH", "VH"] if am == "half" else []) + ["K0", "V0", "K1", "V1", "K2", "V2"] + (["KA", "VA"] if am == "full" else [])
        if isO and not old and self.opt("woearly", 1): return q + ["WA", "WB", "K3", "V3"]
        return q + ["K3", "V3"] + (["WA", "WB"] if isO else [])

    def body(self, isO, tail, pre_tail, young_first):
        e = self.e
        p = "o" if isO else "q"
        self.isO = isO
        base_q, base_free = list(self.q), list(self.free)
        reb = (not isO) and self.opt("rebal", 1)
        variants = [(True, "full"), (False, None)] + ([(True, None), (False, "half")] if reb else [])
        if reb:
            e(f"s_and_b32 s{S_T0}, s2, 6"); e(f"s_cmp_eq_u32 s{S_T0}, 0"); e(f"s_cselect_b32 s{S_NA}, 8, 4")
            e(f"s_and_b32 s{S_T0}, s2, 7"); e(f"s_cmp_eq_u32 s{S_T0}, 3"); e(f"s_cselect_b32 s{S_NA}, 0, s{S_NA}")
            e("s_cmp_ge_u32 s3, 4"); e(f"s_cbranch_scc1 L_{p}_ysel")
            e(f"s_cmp_eq_u32 s{S_NA}, 0"); e(f"s_cbranch_scc1 L_{p}_v2")
        else:
            e("s_cmp_ge_u32 s3, 4"); e(f"s_cbranch_scc1 L_{p}_v1")
        for vi, (old, am) in enumerate(variants):
            self.q, self.free, self.slot = list(base_q), list(base_free), dict(self.slot0)
            self.amode = am; self.old = old
            self.seq = self.mkseq(old, isO)
            if vi == 1 and reb:
                self.label(f"L_{p}_ysel")
                e(f"s_cmp_eq_u32 s{S_NA}, 8"); e(f"s_cbranch_scc1 L_{p}_v3")
            self.label(f"L_{p}_v{vi}")
            if am == "half":
                e(f"s_and_b32 s{S_AB}, s2, 8"); e(f"s_add_u32 s{S_AB}, s{S_AB}, 3"); e(f"s_lshl_b32 s{S_AB}, s{S_AB}, 2"); e(f"s_and_b32 s{S_T0}, s3, 3"); e(f"s_add_u32 s{S_AB}, s{S_AB}, s{S_T0}")
                e(f"s_lshl_b32 s{S_AB}, s{S_AB}, 1"); e(f"s_and_b32 s{S_T0}, s2, 1"); e(f"s_add_u32 s{S_AB}, s{S_AB}, s{S_T0}"); e(f"s_lshl_b32 s{S_AB}, s{S_AB}, 12")
                e(f"s_lshl_b32 s{S_T0}, s{S_GRP}, 23"); e(f"s_add_u32 s{S_AB}, s{S_AB}, s{S_T0}"); e(f"s_add_u32 s{S_AB}, s{S_AB}, 0x700000")
            self.pace = self.opt("ppre", 0)
            if old or self.opt("noq", 0):
                while self.issue_next(): pass
            else:
                young_first()
                self.young_prefetch(not isO)
            if isO and not self.opt("gatefirst", 1):
                self.wait("g"); self.gate()
            self.wait_q()
            self.stamp(5)
            self.pace = self.opt("pmain", 0)
            self.tiles(old, pre_tail)
            tail()

    def roleQ(self):
        e = self.e
        e("v_and_b32 v26, 1, v24"); e(f"v_lshlrev_b32 v{V_X}, 11, v26"); e(f"v_lshl_add_u32 v{V_X}, v25, 5, v{V_X}")
        e("v_bfe_u32 v26, v24, 2, 1"); e(f"v_lshl_add_u32 v{V_X}, v26, 4, v{V_X}")
        e("v_lshrrev_b32 v26, 3, v0"); e(f"v_lshlrev_b32 v{V_WA}, 16, v26"); e("v_and_b32 v26, 7, v0"); e(f"v_lshl_add_u32 v{V_WA}, v26, 4, v{V_WA}")
        if self.opt("cgmap", 0):
            e(f"s_and_b32 s99, s2, 7"); e("s_lshl_b32 s99, s99, 3"); e(f"s_and_b32 s{S_T1}, s{S_GRP}, 3"); e(f"s_lshl_b32 s{S_T1}, s{S_T1}, 1"); e(f"s_add_u32 s99, s99, s{S_T1}")
            e(f"s_bfe_u32 s{S_T1}, s2, 0x10003"); e(f"s_add_u32 s99, s99, s{S_T1}")
        else:
            e(f"s_and_b32 s99, s{S_J}, 63")
        e(f"s_lshl_b32 s{S_W}, s99, 7"); e(f"s_lshl_b32 s{S_T1}, s3, 20"); e(f"s_add_u32 s{S_W}, s{S_W}, s{S_T1}")
        e(f"s_lshl_b32 s{S_T1}, s3, 8")
        e("s_waitcnt lgkmcnt(0)")
        e("s_cmp_ge_u32 s2, 128")
        e(f"s_cselect_b32 s{W1}, s64, s54"); e(f"s_cselect_b32 s{W1+1}, s65, s55"); e(f"s_mov_b32 s{W1+2}, 0x800000"); e(f"s_mov_b32 s{W1+3}, 0x20000")
        self.srd(XS, 48, 4096); self.srd(DBG, 72, 256)
        e("s_or_b32 s98, s2, s3"); e("s_cmp_lg_u32 s98, 0"); e("s_cbranch_scc1 L_q_non")
        e("s_or_b32 s98, s96, 1"); e("v_mov_b32 v26, s98")
        e("s_mov_b64 exec, 1")
        e(f"buffer_store_dword v26, off, s[{DBG}:{DBG+3}], 0 sc1")
        e("s_mov_b64 exec, -1")
        self.label("L_q_non")
        self.pace = self.opt("pw", 0)
        self.vm(f"buffer_load_dwordx4 v[{QR}:{QR+3}], v{V_X}, s[{XS}:{XS+3}], s{S_T1} offen", "x")
        self.vm(f"buffer_load_dwordx4 v[{QR+4}:{QR+7}], v{V_X}, s[{XS}:{XS+3}], s{S_T1} offen offset:128", "x")
        for u in range(2):
            for ee in range(8):
                r = RING[u] + ee * 4
                e(f"s_add_u32 s{S_T0}, s{S_W}, {(u*64+ee)*8192}")
                self.vm(f"buffer_load_dwordx4 v[{r}:{r+3}], v{V_WA}, s[{W1}:{W1+3}], s{S_T0} offen nt", u)
        self.vm(f"buffer_load_dword v{V_U1}, off, s[{DBG}:{DBG+3}], 0 sc1", "nn", paced=False)
        self.srd(KB, 60, 0x4000000); self.srd(VB, 62, 0x4000000); self.srd(WS, 74, WS_SIZE); self.srd(OUT, 70, 4096)
        self.common_setup()
        self.pub_addrs(True)
        self.srd(KA, 50, 0x4000000); self.srd(VA, 52, 0x4000000)
        if self.stamps: e("s_mov_b64 s[48:49], s[96:97]")
        e("s_barrier")
        self.wait(0)
        self.perm_mfma8(RING[0], QR, True, False)
        e("v_bfe_u32 v26, v0, 3, 1"); e("v_lshlrev_b32 v27, 9, v26"); e("v_and_b32 v26, 7, v0"); e("v_lshl_add_u32 v27, v26, 6, v27")
        e(f"s_lshl_b32 s{S_T0}, s3, 10"); e(f"s_add_u32 s{S_T0}, s{S_T0}, {CO + CO_BR}"); e(f"v_add_u32 v27, s{S_T0}, v27")
        e("v_mov_b32 v28, 1")
        self.wait(1)
        self.perm_mfma8(RING[1], QR + 4, False, False)
        e("s_mov_b32 exec_lo, 0xff0000ff"); e("s_mov_b32 exec_hi, 0")
        e("s_nop 1")
        for dd in range(8):
            if dd == 6: e("s_nop 0")
            e(f"ds_write_b64 v27, v[{OACC+dd*4}:{OACC+dd*4+1}] offset:{dd*8}")
        e("s_mov_b64 exec, 1")
        e(f"ds_add_u32 v{V_FLG}, v28 offset:{F_CNT - FLG}")
        e("s_mov_b64 exec, -1")
        def w0_first():
            e("s_setprio 3")
            e("v_lshrrev_b32 v26, 5, v0"); e("v_lshlrev_b32 v27, 12, v26"); e("v_lshlrev_b32 v28, 14, v26")
            e("v_and_b32 v26, 31, v0"); e("v_lshl_add_u32 v27, v26, 4, v27"); e(f"v_add_u32 v27, {CO + CO_BR}, v27"); e("v_lshl_add_u32 v28, v26, 3, v28")
            e(f"s_lshr_b32 s{S_T0}, s{S_J}, 6"); e(f"s_lshl_b32 s{S_T0}, s{S_T0}, 15"); e(f"s_lshl_b32 s{S_T1}, s99, 8")
            e(f"s_add_u32 s{S_T2}, s{S_T0}, s{S_T1}")
            if QG: e(f"s_add_u32 s{S_T2}, s{S_T2}, {QG}")
            self.wait("nn")
            self.get_nonce()
            self.lds_spin(F_CNT, 8)
            for p in range(8):
                e(f"ds_read_b128 v[{OACC+p*4}:{OACC+p*4+3}], v27 offset:{p*512}")
            e("s_waitcnt lgkmcnt(0)")
            for p in (4, 2, 1):
                for q in range(p):
                    for i in (0, 2):
                        e(f"v_pk_add_f32 v[{OACC+q*4+i}:{OACC+q*4+i+1}], v[{OACC+q*4+i}:{OACC+q*4+i+1}], v[{OACC+(q+p)*4+i}:{OACC+(q+p)*4+i+1}]")
            e(f"v_mov_b32 v{OACC+5}, s{S_NONCE}")
            e("s_nop 0")
            e(f"v_permlane32_swap_b32 v{OACC}, v{OACC+1}"); e(f"v_permlane32_swap_b32 v{OACC+2}, v{OACC+3}")
            e(f"v_add_f32 v{OACC}, v{OACC}, v{OACC+1}"); e(f"v_add_f32 v{OACC+2}, v{OACC+2}, v{OACC+3}")
            e(f"v_cvt_pk_bf16_f32 v{OACC+4}, v{OACC}, v{OACC+2}")
            e(f"s_and_b32 s{S_T0}, s3, 3"); e(f"s_lshl_b32 s{S_T0}, s{S_T0}, 4"); e(f"s_lshl_b64 exec, 0xffff, s{S_T0}")
            self.vm(f"buffer_store_dwordx2 v[{OACC+4}:{OACC+5}], v28, s[{WS}:{WS+3}], s{S_T2} offen sc1", "st", paced=False)
            e("s_mov_b64 exec, -1")
            e("s_setprio 0")
            self.stamp(3)
        def pre_tail():
            e(f"s_lshl_b32 s72, s{S_J}, 14"); e(f"s_lshl_b32 s{S_T2}, s3, 11"); e(f"s_add_u32 s72, s72, s{S_T2}"); e(f"s_add_u32 s72, s72, {hex(PF)}")
            e(f"v_and_b32 v26, 7, v0"); e(f"v_lshlrev_b32 v{HA[1]}, 3, v26"); e(f"v_bfe_u32 v{HA[2]}, v0, 4, 1"); e(f"v_lshl_add_u32 v{HA[2]}, v{HA[2]}, 2, v{HA[1]}")
            e(f"s_lshl_b32 s73, s3, 6"); e(f"s_add_u32 s73, s73, {FR}"); e(f"v_add_u32 v{HA[2]}, s73, v{HA[2]}")
            e(f"s_lshr_b32 s73, s{S_J}, 3"); e(f"s_lshl_b32 s73, s73, 8")
            e(f"s_and_b32 s{S_T2}, s{S_J}, 1"); e(f"s_lshl_b32 s{S_T2}, s{S_T2}, 7"); e(f"s_add_u32 s73, s73, s{S_T2}")
            e(f"s_bfe_u32 s{S_T2}, s{S_J}, 0x20001"); e(f"s_lshl_b32 s{S_T2}, s{S_T2}, 2"); e(f"s_add_u32 s73, s73, s{S_T2}")
            e(f"v_lshlrev_b32 v{HA[3]}, 4, v26")
        def tail():
            done = self.newlab('qdone'); self.resmul = None
            if self.opt("notail", 0):
                self.stamp(9); self.stamp(10); self.stamp_flush(); e("s_endpgm"); return
            R = self.free[0]
            self.mk = [4, 6, 8, 10]
            lds_ = [f"buffer_load_dwordx4 v[{R+4*i}:{R+4*i+3}], v{V_L0}, s[{WS}:{WS+3}], s72 offen offset:{i*1024} sc1" for i in range(2)]
            gl, gd = self.newlab("gl"), self.newlab("gd")
            e(f"s_and_b32 s{S_T0}, s{S_J}, 15"); e(f"s_lshl_b32 s{S_T0}, s{S_T0}, 7"); e(f"s_add_u32 s{S_T0}, s{S_T0}, s72")
            e(f"s_mov_b32 s{S_CNT}, 0"); e(f"v_mov_b32 v{T[1]}, 1")
            self.label(gl)
            e(f"buffer_load_dword v{R}, off, s[{WS}:{WS+3}], s{S_T0} offset:4 sc1")
            e(f"ds_read_b32 v{T[7]}, v{V_FLG} offset:{F_CNT - FLG}")
            e("s_waitcnt vmcnt(0) lgkmcnt(0)")
            e(f"v_readfirstlane_b32 s{S_T1}, v{R}"); e(f"v_readfirstlane_b32 s{S_T2}, v{T[7]}")
            e(f"s_add_u32 s{S_CNT}, s{S_CNT}, 1")
            e(f"s_cmp_lg_u32 s{S_T2}, 8"); e(f"s_cbranch_scc1 {gd}")
            gs = self.newlab("gs")
            e(f"s_cmp_eq_u32 s{S_T1}, s{S_NONCE}"); e(f"s_cbranch_scc1 {gs}")
            e(f"s_cmp_gt_u32 s{S_CNT}, {SPIN_MAX}"); e(f"s_cbranch_scc1 {gd}")
            e(f"s_sleep {self.opt('presleep', 2)}")
            e(f"s_branch {gl}")
            self.label(gs)
            e("s_mov_b64 exec, 1"); e(f"ds_add_u32 v{V_FLG}, v{T[1]} offset:{F_CNT - FLG}"); e("s_mov_b64 exec, -1")
            self.label(gd)
            self.stamp(1)
            self.poll_missing(lds_, [[R + 1, R + 3], [R + 5, R + 7]], self.opt("pfsleep", 0))
            e(f"v_add_f32 v{OACC}, v{R}, v{R+4}"); e(f"v_add_f32 v{OACC+1}, v{R+2}, v{R+6}")
            self.stamp(9)
            x, y = OACC, OACC + 1
            e("s_nop 0")
            e(f"v_add_f32_dpp v{x}, v{x}, v{x} row_ror:8 row_mask:0xf bank_mask:0xf")
            e(f"v_add_f32_dpp v{y}, v{y}, v{y} row_ror:8 row_mask:0xf bank_mask:0xf")
            e("s_nop 1")
            e(f"v_permlane16_swap_b32 v{x}, v{y}")
            e(f"v_add_f32 v{x}, v{x}, v{y}")
            self.xlane("v_add_f32", x, y, (32,))
            e("s_mov_b64 exec, 0x00ff00ff")
            e(f"ds_write_b32 v{HA[2]}, v{x}")
            e("s_mov_b64 exec, -1")
            e("s_waitcnt lgkmcnt(0)")
            e("s_barrier")
            e("s_cmp_lg_u32 s3, 0"); e(f"s_cbranch_scc1 {done}")
            R = OACC + 8
            for w in range(8):
                e(f"ds_read_b64 v[{R+2*w}:{R+2*w+1}], v{HA[1]} offset:{FR + w*64}")
            e("s_waitcnt lgkmcnt(0)")
            for p in (4, 2, 1):
                for q in range(p):
                    e(f"v_pk_add_f32 v[{R+q*2}:{R+q*2+1}], v[{R+q*2}:{R+q*2+1}], v[{R+(q+p)*2}:{R+(q+p)*2+1}]")
            e(f"v_cvt_pk_bf16_f32 v{R}, v{R}, v{R+1}")
            e("s_mov_b64 exec, 0xff")
            e(f"buffer_store_dword v{R}, v{HA[3]}, s[{OUT}:{OUT+3}], s73 offen")
            e("s_mov_b64 exec, -1")
            self.label(done)
            self.stamp(10)
            self.stamp_flush()
            e("s_endpgm")


        self.free = [RING[2], RING[3], RING[4], RING[0], RING[1]]; self.slot0 = {}
        self.body(False, tail, pre_tail, w0_first)

    def gate(self):
        e = self.e
        acc, a, b, c, d = T[0], T[1], T[2], T[3], T[4]
        e(f"v_mov_b32 v{acc}, 0")
        e(f"s_mov_b32 s{S_T0}, 0xffff0000")
        for i in range(8):
            x, g = QR + i, QR + 8 + i
            e(f"v_lshlrev_b32 v{a}, 16, v{x}"); e(f"v_lshlrev_b32 v{b}, 16, v{g}")
            e(f"v_and_b32 v{c}, s{S_T0}, v{x}"); e(f"v_and_b32 v{d}, s{S_T0}, v{g}")
            e(f"v_mul_f32 v{a}, v{a}, v{b}"); e(f"v_mul_f32 v{c}, v{c}, v{d}")
            e(f"v_cvt_pk_bf16_f32 v{a}, v{a}, v{c}")
            e(f"v_lshlrev_b32 v{b}, 16, v{a}"); e(f"v_and_b32 v{c}, s{S_T0}, v{a}")
            e(f"v_add_f32 v{acc}, v{acc}, v{b}"); e(f"v_add_f32 v{acc}, v{acc}, v{c}")
        self.dpp("v_add_f32", acc, (1, 2, 4, 8))
        self.xlane("v_add_f32", acc, a, (16, 32))
        e(f"v_cvt_pk_bf16_f32 v{acc}, v{acc}, v{acc}"); e(f"v_lshlrev_b32 v{acc}, 16, v{acc}")
        e(f"v_mul_f32 v{acc}, {hex(f2u(-math.log2(math.e)))}, v{acc}")
        e(f"v_exp_f32 v{acc}, v{acc}"); e("s_nop 0")
        e(f"v_add_f32 v{acc}, 1.0, v{acc}")
        e(f"v_rcp_f32 v{acc}, v{acc}"); e("s_nop 0")
        e(f"v_cvt_pk_bf16_f32 v{acc}, v{acc}, v{acc}"); e(f"v_lshlrev_b32 v{V_GA}, 16, v{acc}")
        e(f"v_sub_f32 v{acc}, 1.0, v{V_GA}")
        e(f"v_cvt_pk_bf16_f32 v{acc}, v{acc}, v{acc}"); e(f"v_lshlrev_b32 v{V_GB}, 16, v{acc}")

    def roleO(self):
        e = self.e
        e(f"s_and_b32 s{S_T1}, s3, 1"); e(f"s_lshl_b32 s{S_T1}, s{S_T1}, 11")
        e(f"v_lshlrev_b32 v{V_X}, 5, v0")
        e(f"v_lshlrev_b32 v{V_WA}, 12, v25"); e(f"v_lshl_add_u32 v{V_WA}, v24, 4, v{V_WA}")
        e(f"s_lshl_b32 s{S_W}, s{S_J}, 16"); e(f"s_lshl_b32 s{S_T2}, s3, 8"); e(f"s_add_u32 s{S_W}, s{S_W}, s{S_T2}")
        e("s_waitcnt lgkmcnt(0)")
        self.srd(XS, 48, 4096); self.srd(GT, 68, 2048); self.srd(KA, 50, 0x4000000); self.srd(VA, 52, 0x4000000)
        self.pace = 0
        self.vm(f"buffer_load_dwordx4 v[{QR}:{QR+3}], v{V_X}, s[{XS}:{XS+3}], s{S_T1} offen", "g")
        self.vm(f"buffer_load_dwordx4 v[{QR+4}:{QR+7}], v{V_X}, s[{XS}:{XS+3}], s{S_T1} offen offset:16", "g")
        self.vm(f"buffer_load_dwordx4 v[{QR+8}:{QR+11}], v{V_X}, s[{GT}:{GT+3}], 0 offen", "g")
        self.vm(f"buffer_load_dwordx4 v[{QR+12}:{QR+15}], v{V_X}, s[{GT}:{GT+3}], 0 offen offset:16", "g")
        self.srd(KB, 60, 0x4000000); self.srd(VB, 62, 0x4000000); self.srd(WS, 74, WS_SIZE); self.srd(DBG, 72, 256)
        self.srd(W1, 56, 0x800000); self.srd(W2, 66, 0x800000)
        if self.stamps: e("s_mov_b64 s[48:49], s[96:97]")
        self.common_setup()
        self.pub_addrs(True)
        e("s_barrier")
        if self.opt("gatefirst", 1):
            self.wait("g"); self.gate()
        def w0_first(): pass
        S_HO, S_HM, S_G1, S_PH = 72, 73, 74, S_W
        H = QR
        def pre_tail():
            br = 1 if self.old else 0
            e(f"s_and_b32 s{S_T0}, s3, 1"); e(f"s_lshl_b32 s{S_T0}, s{S_T0}, 2"); e(f"s_lshr_b32 s{S_T1}, s{S_J}, 5"); e(f"s_add_u32 s{S_T0}, s{S_T0}, s{S_T1}")
            e(f"s_lshl_b32 s{S_HO}, s{S_T0}, 18")
            e(f"s_and_b32 s{S_T1}, s{S_J}, 31"); e(f"s_lshl_b32 s{S_T1}, s{S_T1}, 13"); e(f"s_add_u32 s{S_HO}, s{S_HO}, s{S_T1}")
            e(f"s_bfe_u32 s{S_T1}, s3, 0x10001"); e(f"s_lshl_b32 s{S_T1}, s{S_T1}, 12"); e(f"s_add_u32 s{S_HO}, s{S_HO}, s{S_T1}")
            e(f"s_add_u32 s{S_HO}, s{S_HO}, {hex(PO + br*8*32*8192)}")
            e(f"s_and_b32 s{S_T0}, s3, 1"); e(f"s_lshl_b32 s{S_T0}, s{S_T0}, 6"); e(f"s_bfe_u32 s{S_T1}, s3, 0x10001"); e(f"s_lshl_b32 s{S_T1}, s{S_T1}, 5")
            e(f"s_add_u32 s{S_T0}, s{S_T0}, s{S_T1}")
            e("v_and_b32 v26, 7, v0"); e(f"v_lshlrev_b32 v{HA[1]}, 2, v26"); e("v_bfe_u32 v26, v0, 4, 1"); e(f"v_lshl_add_u32 v{HA[1]}, v26, 1, v{HA[1]}"); e(f"v_add_u32 v{HA[1]}, s{S_T0}, v{HA[1]}")
            e("v_bfe_u32 v26, v0, 2, 1"); e(f"v_lshlrev_b32 v{HA[2]}, 6, v26"); e("v_lshrrev_b32 v26, 4, v0"); e(f"v_lshl_add_u32 v{HA[2]}, v26, 4, v{HA[2]}")
            e("v_bfe_u32 v26, v0, 4, 1"); e(f"v_lshlrev_b32 v{HA[3]}, 20, v26"); e("v_bfe_u32 v26, v0, 3, 1"); e(f"v_lshl_add_u32 v{HA[3]}, v26, 14, v{HA[3]}")
            e("v_and_b32 v26, 7, v0"); e(f"v_lshl_add_u32 v{HA[3]}, v26, 4, v{HA[3]}")
            e("v_lshrrev_b32 v26, 5, v0"); e(f"v_lshl_add_u32 v{HA[3]}, v26, 15, v{HA[3]}")
            e(f"s_lshl_b32 s98, s3, 17"); e(f"s_lshl_b32 s{S_T1}, s{S_J}, 7"); e(f"s_add_u32 s98, s98, s{S_T1}"); e(f"s_add_u32 s98, s98, {hex(PF)}")
            e(f"s_add_u32 s99, s98, 65536")
        def tail():
            if self.opt("notail", 0):
                e("s_waitcnt vmcnt(0)"); self.stamp(3); self.stamp(9); self.stamp(10); self.stamp_flush(); e("s_endpgm"); return
            old = self.old
            F0, F1, F2 = self.free[:3]
            PK = F2 + 16
            WAs, WBs = self.slot["WA"], self.slot["WB"]
            OPR = QR + 8
            D = F2
            self.mk = [4, 6, 8, 10]
            mkO = [f"buffer_load_dwordx4 v[{D+4*i}:{D+4*i+3}], v{V_L0}, s[{WS}:{WS+3}], s{S_HO} offen offset:{1024*i} sc1" for i in range(4)]
            for s in mkO: self.vm(s, "po", paced=False)
            for k in range(2):
                e(f"v_mov_b32 v{PK+4*k+1}, s{S_NONCE}"); e(f"v_mov_b32 v{PK+4*k+3}, s{S_NONCE}")
            e("s_mov_b32 s12, 0"); e("s_mov_b32 s13, -1")
            self.wait("WA")
            for dd in range(8): self.perms(F0 + dd * 4, WAs, dd)
            self.wait("WB")
            for dd in range(8): self.perms(F1 + dd * 4, WBs, dd)
            self.stamp(3)
            dp = lambda op, r, ror: e(f"{op}_dpp v{r}, v{r}, v{r} row_ror:{ror} row_mask:0xf bank_mask:0xf")
            gv = V_GB if old else V_GA
            def gather_reduce(off, hook=None):
                self.stamp(4)
                self.poll_missing(mkO, [[D + 4 * i + 3] for i in range(4)], self.opt("posleep", 0), first=False, hook=hook)
                self.stamp(9)
                if self.stamps: e(f"s_mov_b32 s70, s{S_CNT}"); e("s_mov_b32 s71, 0")
                M, u, mc, x0, x1, Ls = T[0], T[1], T[2], T[3], T[4], T[5]
                for i in range(4): e(f"v_mov_b32_dpp v{D+4*i+3}, v{D+4*i+2} quad_perm:[0,0,2,2] row_mask:0xf bank_mask:0xf")
                for i in range(4): e(f"v_mov_b32_dpp v{D+4*i+2}, v{D+4*i+2} quad_perm:[1,1,3,3] row_mask:0xf bank_mask:0xf")
                e(f"v_max3_f32 v{M}, v{D+3}, v{D+7}, v{D+11}"); e(f"v_max_f32 v{M}, v{M}, v{D+15}")
                self.dpp("v_max_f32", M, (8,))
                self.xlane("v_max_f32", M, u, (16, 32))
                e(f"v_mul_f32 v{mc}, s{S_C}, v{M}")
                for i in range(4): e(f"v_fma_f32 v{D+4*i+3}, v{D+4*i+3}, s{S_C}, -v{mc}")
                for i in range(4): e(f"v_exp_f32 v{D+4*i+3}, v{D+4*i+3}")
                for i in range(4):
                    op = "v_mul_f32" if i == 0 else "v_fmac_f32"
                    e(f"{op} v{Ls}, v{D+4*i+2}, v{D+4*i+3}"); e(f"{op} v{x0}, v{D+4*i}, v{D+4*i+3}"); e(f"{op} v{x1}, v{D+4*i+1}, v{D+4*i+3}")
                dp("v_add_f32", Ls, 8); dp("v_add_f32", x0, 8); dp("v_add_f32", x1, 8)
                e(f"v_mov_b32 v{u}, v{Ls}"); e("s_nop 0")
                e(f"v_permlane16_swap_b32 v{x0}, v{x1}"); e(f"v_permlane16_swap_b32 v{Ls}, v{u}")
                e(f"v_add_f32 v{x0}, v{x0}, v{x1}"); e(f"v_add_f32 v{Ls}, v{Ls}, v{u}")
                e(f"v_mov_b32 v{x1}, v{x0}"); e(f"v_mov_b32 v{u}, v{Ls}"); e("s_nop 0")
                e(f"v_permlane32_swap_b32 v{x0}, v{x1}"); e(f"v_permlane32_swap_b32 v{Ls}, v{u}")
                e(f"v_add_f32 v{Ls}, v{Ls}, v{u}"); e(f"v_add_f32 v{x0}, v{x0}, v{x1}")
                e(f"v_rcp_f32 v{Ls}, v{Ls}")
                e(f"v_mul_f32 v{x0}, v{x0}, v{gv}")
                e(f"v_mul_f32 v{x0}, v{x0}, v{Ls}")
                e(f"v_cvt_pk_bf16_f32 v{x0}, v{x0}, v{x0}")
                e("s_mov_b64 exec, 0x00ff00ff")
                e(f"ds_write_b16 v{HA[1]}, v{x0} offset:{off}")
                e("s_mov_b64 exec, -1")
            if self.opt("bs1", 0):
                if not old:
                    gather_reduce(OB)
                    e("s_waitcnt lgkmcnt(0)")
                e("s_barrier")
                e(f"ds_read_b128 v[{OPR}:{OPR+3}], v{HA[2]} offset:{OB}")
                e("s_waitcnt lgkmcnt(0)")
                for dd in range(8): self.mfma(OACC + dd * 4, OPR, F0 + dd * 4, None)
                if old:
                    gather_reduce(OB + 128)
                    e("s_waitcnt lgkmcnt(0)")
                e("s_barrier")
                self.stamp(1)
                e(f"ds_read_b128 v[{OPR}:{OPR+3}], v{HA[2]} offset:{OB+128}")
                e("s_waitcnt lgkmcnt(0)")
                for dd in range(8): self.mfma(OACC + dd * 4, OPR, F1 + dd * 4, OACC + dd * 4)
            else:
                S_AD = 14
                def a_mfma():
                    e(f"ds_read_b128 v[{OPR}:{OPR+3}], v{HA[2]} offset:{OB}")
                    e("s_waitcnt lgkmcnt(0)")
                    for dd in range(8): self.mfma(OACC + dd * 4, OPR, F0 + dd * 4, None)
                if old:
                    e(f"s_mov_b32 s{S_AD}, 0")
                    def hook():
                        sk = self.newlab("ah")
                        e(f"s_cmp_lg_u32 s{S_AD}, 0"); e(f"s_cbranch_scc1 {sk}")
                        e(f"ds_read_b32 v{T[7]}, v{V_FLG} offset:{F_CNT - FLG}")
                        e("s_waitcnt lgkmcnt(0)")
                        e(f"v_readfirstlane_b32 s{S_T3}, v{T[7]}")
                        e("s_nop 0")
                        e(f"s_cmp_lg_u32 s{S_T3}, 4"); e(f"s_cbranch_scc1 {sk}")
                        a_mfma()
                        e(f"s_mov_b32 s{S_AD}, 1")
                        self.label(sk)
                    gather_reduce(OB + 128, hook)
                    sk = self.newlab("ad")
                    e(f"s_cmp_lg_u32 s{S_AD}, 0"); e(f"s_cbranch_scc1 {sk}")
                    self.lds_spin(F_CNT, 4)
                    a_mfma()
                    self.label(sk)
                    e("s_waitcnt lgkmcnt(0)")
                else:
                    gather_reduce(OB)
                    e(f"v_mov_b32 v{T[1]}, 1")
                    e("s_mov_b64 exec, 1"); e(f"ds_add_u32 v{V_FLG}, v{T[1]} offset:{F_CNT - FLG}"); e("s_mov_b64 exec, -1")
                    self.lds_spin(F_CNT, 4)
                    a_mfma()
                e("s_barrier")
                self.stamp(1)
                e(f"ds_read_b128 v[{OPR+4}:{OPR+7}], v{HA[2]} offset:{OB+128}")
                e("s_waitcnt lgkmcnt(0)")
                for dd in range(8): self.mfma(OACC + dd * 4, OPR + 4, F1 + dd * 4, OACC + dd * 4)
                e("s_nop 3")
            for k in range(2):
                if k == 1: e("s_nop 0")
                elif self.opt("bs1", 0): e("s_nop 3")
                e(f"v_cndmask_b32 v{PK+4*k}, v{OACC+16*k}, v{OACC+16*k+8}, s[12:13]"); e(f"v_cndmask_b32 v{PK+4*k+2}, v{OACC+16*k+4}, v{OACC+16*k+12}, s[12:13]")
                e(f"buffer_store_dwordx4 v[{PK+4*k}:{PK+4*k+3}], v{HA[3]}, s[{WS}:{WS+3}], s{98+k} offen sc1")
            self.stamp(10)
            self.stamp_flush()

            e("s_endpgm")
        self.free = list(RING); self.slot0 = {}
        self.body(True, tail, pre_tail, w0_first)

if __name__ == "__main__":
    out = sys.argv[1]
    st = "--stamps" in sys.argv
    opts = dict(a[2:].split("=") for a in sys.argv[2:] if a.startswith("--") and "=" in a)
    open(out, "w").write(G(stamps=st, opts=opts).build())
```

```python
import sys, struct, math
KNAME = "gated_mix__sliding_block_cached__gqa_block_cached__decode_kernel"
def f2u(x): return struct.unpack("<I", struct.pack("<f", x))[0]

QG, PML, H1, H2, PO, PF, STAMP = 0, 0x10000, 0x20000, 0x40000, 0x100000, 0x600000, 0x800000
HREP = 0x1100
WS_SIZE = 0x1000000
CM, CL, OB, FR, FLG, QOP, CO = 0, 512, 1024, 1280, 1792, 2048, 6656
F_CNT, F_QC, F_NON, F_AC = FLG, FLG + 4, FLG + 8, FLG + 12
CO_BR, CO_W, CO_H = 33792, 4224, 528
LDS_SIZE = 74240
KB, VB, KA, VA, W1, W2, WS, XS, GT, OUT, DBG = 4, 8, 12, 16, 20, 24, 28, 32, 36, 40, 44
S_SELLO, S_SELHI, S_C, S_NONCE, S_GRP, S_IDX, S_SPLIT, S_BB, S_AB = 76, 77, 78, 79, 80, 81, 82, 83, 84
S_T0, S_T1, S_T2, S_T3, S_CNT, S_J, S_W = 85, 86, 87, 88, 89, 90, 91
S_POB, S_POA, S_MLB, S_MLA = 92, 93, 94, 95
S_OK, S_QA, S_QB = 99, 100, 101
V_K0, V_K1, V_L0, V_L1 = 1, 2, 3, 4
V_COW, V_MLW, V_QR, V_COR, V_MLR, V_FLG, V_QW, V_X, V_WA, V_GA, V_GB = 5, 6, 7, 8, 9, 10, 11, 12, 13, 14, 15
V_PO = V_X
HA = [1, 1, 2, 4, 13]
V_HR = V_QW
S_H1 = 97
WSET = [16, 20]
T = list(range(24, 32))
OACC, QR, SR, PR, V_M, V_LS, V_U0, V_U1 = 32, 64, 80, 88, 92, 93, 94, 95
RING = [96 + 32 * i for i in range(5)]
QRX = 16
S_NA = 24
S_SRC = 25
S_DX, S_DB, S_CA = 99, 100, 101
CT = 0x50000
SPIN_MAX = 20000

class G:
    def __init__(self, stamps=False, opts=None):
        self.L = []; self.stamps = stamps; self.lab = 0
        self.o = opts or {}
        self.q = []
        self.pace = 0; self.resmul = None
    def opt(self, k, d): return int(self.o.get(k, d))
    def e(self, s): self.L.append("    " + s)
    def label(self, s): self.L.append(s + ":")
    def newlab(self, p):
        self.lab += 1; return f"L_{p}{self.lab}"
    def srd(self, d, b, n):
        self.e(f"s_mov_b32 s{d}, s{b}"); self.e(f"s_mov_b32 s{d+1}, s{b+1}")
        self.e(f"s_mov_b32 s{d+2}, {hex(n)}"); self.e(f"s_mov_b32 s{d+3}, 0x20000")
    def stamp(self, i):
        if self.stamps: self.e(f"s_memrealtime s[{48+2*i}:{49+2*i}]")
    def stamp_flush(self):
        if not self.stamps: return
        e = self.e
        if self.opt("dbgst", 0):
            if self.isO or not self.old: return
            lab = self.newlab("dbg")
            e("s_waitcnt lgkmcnt(0)")
            e("s_cmp_lg_u32 s3, 0"); e(f"s_cbranch_scc1 {lab}")
            e(f"s_mul_i32 s92, s{S_J}, 43"); e("s_lshr_b32 s93, s92, 0")
            e(f"s_cmp_gt_u32 s{S_J}, 3"); e(f"s_cbranch_scc1 {lab}")
            e(f"s_cmp_eq_u32 s{S_J}, 0"); e(f"s_cbranch_scc1 {lab}")
            for k, i in enumerate((5, 8, 9, 10)):
                e(f"s_sub_u32 s92, s{48+2*i}, s48"); e(f"v_mov_b32 v{16+k}, s92")
            e(f"s_lshl_b32 s92, s{S_J}, 4")
            e("s_mov_b64 exec, 1")
            e(f"buffer_store_dwordx4 v[16:19], off, s[{DBG}:{DBG+3}], s92")
            e("s_mov_b64 exec, -1")
            self.label(lab)
            return
        e("s_waitcnt lgkmcnt(0)")
        e("s_lshl_b32 s92, s2, 3"); e("s_add_u32 s92, s92, s3"); e("s_lshl_b32 s92, s92, 7"); e(f"s_add_u32 s92, s92, {hex(STAMP)}")
        e("s_mov_b64 exec, 1")
        for i in range(12):
            e(f"v_mov_b32 v16, s{48+2*i}"); e(f"v_mov_b32 v17, s{49+2*i}")
            e(f"buffer_store_dwordx2 v[16:17], off, s[{WS}:{WS+3}], s92 offset:{i*8}")
            e("s_nop 0")
        e("s_mov_b64 exec, -1")
    def vm(self, s, tag, paced=True):
        if paced and self.pace and len(self.q) >= self.pace:
            self.e(f"s_waitcnt vmcnt({self.pace-1})")
        self.e(s); self.q.append(tag)
    def wait(self, tag, keep=0):
        idx = [i for i, t in enumerate(self.q) if t == tag]
        if not idx: return
        last = idx[len(idx) - 1 - keep]
        n = len([t for t in self.q[last + 1:] if not str(t).startswith("virt_")])
        assert n <= 63
        keepv = [t for t in self.q[:last + 1] if str(t).startswith("virt_")]
        self.e(f"s_waitcnt vmcnt({n})")
        self.q = self.q[last + 1:]
    def k_unit(self, r, srd, soff, tag):
        for j in range(8):
            t, jj = j >> 2, j & 3
            self.vm(f"buffer_load_dwordx4 v[{r+j*4}:{r+j*4+3}], v{V_K1 if t else V_K0}, s[{srd}:{srd+3}], s{soff} offen offset:{self.koff(jj)} nt", tag)
    def koff(self, jj): return ((jj & 1) * 512 + (jj >> 1) * 128) if self.opt("kfull", 0) else jj * 64
    def kfix(self, r, nsub):
        if not self.opt("kfull", 0): return
        e = self.e
        k = 0
        for t in range(nsub):
            for dh in range(2):
                X = r + t * 16 + dh * 8; Y = X + 4; Tm = WSET[k & 1]; k += 1
                for i in range(4): e(f"v_mov_b32 v{Tm+i}, v{X+i}")
                for i in range(4): e(f"v_mov_b32_dpp v{X+i}, v{Y+i} row_ror:8 row_mask:0xf bank_mask:0xc")
                for i in range(4): e(f"v_mov_b32_dpp v{Y+i}, v{Tm+i} row_ror:8 row_mask:0xf bank_mask:0x3")
        e("s_nop 1")
    def v_unit(self, r, srd, soff, tag):
        if self.o.get("map", "il") == "col8":
            for j in range(8):
                if j: self.e(f"s_add_u32 s{S_T1}, s{soff}, {j*8192}")
                self.vm(f"buffer_load_dwordx4 v[{r+j*4}:{r+j*4+3}], v{V_L0}, s[{srd}:{srd+3}], s{S_T1 if j else soff} offen nt", tag)
            return
        for j in range(8):
            self.vm(f"buffer_load_dwordx4 v[{r+j*4}:{r+j*4+3}], v{V_L1 if j >= 4 else V_L0}, s[{srd}:{srd+3}], s{soff} offen offset:{(j&3)*1024} nt", tag)
    def issue_next(self):
        if not self.seq or not self.free: return False
        u = self.seq.pop(0); r = self.free.pop(0); self.slot[u] = r
        if u[0] == "W":
            self.wo_unit(r, W1 if u == "WA" else W2, u)
        elif u[1] in "XYZ":
            if u[0] == "K": self.k_unit(r, KB, S_DX, u)
            else: self.v_unit(r, VB, S_DX, u)
        elif u[1] == "H":
            srd = KA if u[0] == "K" else VA
            for j in range(4):
                if u[0] == "K": self.vm(f"buffer_load_dwordx4 v[{r+j*4}:{r+j*4+3}], v{V_K0}, s[{srd}:{srd+3}], s{S_AB} offen offset:{self.koff(j)} nt", u)
                else: self.vm(f"buffer_load_dwordx4 v[{r+j*4}:{r+j*4+3}], v{V_L0}, s[{srd}:{srd+3}], s{S_AB} offen offset:{j*1024} nt", u)
        elif u[1] == "A":
            if u[0] == "K": self.k_unit(r, KA, S_AB, u)
            else: self.v_unit(r, VA, S_AB, u)
        else:
            t = int(u[1])
            self.e(f"s_add_u32 s{S_T0}, s{S_BB}, {hex(t * 0x200000)}")
            if u[0] == "K": self.k_unit(r, KB, S_T0, u)
            else: self.v_unit(r, VB, S_T0, u)
        return True
    def release(self, u):
        self.free.append(self.slot[u])
    def wo_unit(self, r, srd, tag):
        for ee in range(8):
            off = ((ee & 3) * 8 + (ee >> 2)) * 2048
            self.e(f"s_add_u32 s{S_T0}, s{S_W}, {off & ~4095}")
            self.vm(f"buffer_load_dwordx4 v[{r+ee*4}:{r+ee*4+3}], v{V_WA}, s[{srd}:{srd+3}], s{S_T0} offen offset:{off & 4095} nt", tag)
    def perm1(self, dst, src, dd, p):
        sel = S_SELHI if dd & 1 else S_SELLO
        self.e(f"v_perm_b32 v{dst+p}, v{src+(2*p+1)*4+(dd>>1)}, v{src+(2*p)*4+(dd>>1)}, s{sel}")
    def perms(self, dst, src, dd):
        for p in range(4): self.perm1(dst, src, dd, p)
    def mfma(self, d, a, b, c):
        cs = "0" if c is None else f"v[{c}:{c+3}]"
        self.e(f"v_mfma_f32_16x16x32_bf16 v[{d}:{d+3}], v[{a}:{a+3}], v[{b}:{b+3}], {cs}")
    def perm_mfma8(self, src, other, first, w_is_a, acc=OACC):
        def mm(dd):
            w = WSET[dd & 1]; d = acc + dd * 4
            if w_is_a: self.mfma(d, w, other, None if first else d)
            else: self.mfma(d, other, w, None if first else d)
        self.perms(WSET[0], src, 0)
        for dd in range(1, 8):
            self.perms(WSET[dd & 1], src, dd)
            mm(dd - 1)
        self.e("s_nop 0")
        mm(7)
    def pv_last(self, tag, src, dst, first):
        self.wait(tag, keep=2)
        for p in range(3):
            for dd in range(8): self.perm1(dst + dd * 4, src, dd, p)
        self.wait(tag)
        self.stamp(6)
        for dd in range(8):
            self.perm1(dst + dd * 4, src, dd, 3)
            if dd >= 2: self.mfma(OACC + (dd-2) * 4, dst + (dd-2) * 4, PR, None if first else OACC + (dd-2) * 4)
        self.e("s_nop 0")
        for dd in (6, 7): self.mfma(OACC + dd * 4, dst + dd * 4, PR, None if first else OACC + dd * 4)
    def qk(self, r):
        self.kfix(r, 2)
        for jj in range(4):
            self.mfma(SR, r + jj * 4, QR + jj * 4, None if jj == 0 else SR)
            self.mfma(SR + 4, r + 16 + jj * 4, QR + jj * 4, None if jj == 0 else SR + 4)
    def xlane(self, op, t, u, kinds):
        for k in kinds:
            self.e(f"v_mov_b32 v{u}, v{t}"); self.e("s_nop 1")
            self.e(f"v_permlane{k}_swap_b32 v{t}, v{u}")
            self.e(f"{op} v{t}, v{t}, v{u}")
    def dpp(self, op, t, rors):
        for r in rors:
            self.e("s_nop 1")
            self.e(f"{op}_dpp v{t}, v{t}, v{t} row_ror:{r} row_mask:0xf bank_mask:0xf")
    def tilemax(self, first):
        e = self.e; t, u = T[0], T[1]; S = SR
        e(f"v_max3_f32 v{t}, v{S}, v{S+1}, v{S+2}"); e(f"v_max3_f32 v{t}, v{t}, v{S+3}, v{S+4}")
        e(f"v_max3_f32 v{t}, v{t}, v{S+5}, v{S+6}")
        if first: e(f"v_max_f32 v{t}, v{t}, v{S+7}")
        else: e(f"v_max3_f32 v{t}, v{t}, v{S+7}, v{V_M}")
        self.xlane("v_max_f32", t, u, (16, 32))
    def softmax_rest(self, first, V_M=V_M, V_LS=V_LS):
        e = self.e; t, u, mc, al = T[0], T[1], T[2], T[4]; S = SR
        e(f"v_mul_f32 v{mc}, s{S_C}, v{t}")
        if not first:
            e(f"v_fma_f32 v{al}, v{V_M}, s{S_C}, -v{mc}")
            e(f"v_exp_f32 v{al}, v{al}")
        e(f"v_mov_b32 v{V_M}, v{t}")
        for i in range(8): e(f"v_fma_f32 v{S+i}, v{S+i}, s{S_C}, -v{mc}")
        for i in range(8): e(f"v_exp_f32 v{S+i}, v{S+i}")
        if not first:
            for i in range(16):
                e(f"v_pk_mul_f32 v[{OACC+2*i}:{OACC+2*i+1}], v[{OACC+2*i}:{OACC+2*i+1}], v[{al}:{al+1}] op_sel_hi:[1,0]")
        else:
            e("s_nop 0")
        e(f"v_add_f32 v{t}, v{S}, v{S+1}"); e(f"v_add_f32 v{u}, v{S+2}, v{S+3}")
        e(f"v_add_f32 v{t}, v{t}, v{S+4}"); e(f"v_add_f32 v{u}, v{u}, v{S+5}")
        e(f"v_add_f32 v{t}, v{t}, v{S+6}"); e(f"v_add_f32 v{u}, v{u}, v{S+7}")
        for p in range(4): e(f"v_cvt_pk_bf16_f32 v{PR+p}, v{S+2*p}, v{S+2*p+1}")
        e(f"v_add_f32 v{t}, v{t}, v{u}")
        if first: e(f"v_mov_b32 v{V_LS}, v{t}")
        else: e(f"v_fma_f32 v{V_LS}, v{V_LS}, v{al}, v{t}")
    def softmax_common(self, first, br, tmp, hook=None, rescale_only=False):
        e = self.e
        if not rescale_only: self.tilemax(first)
        e("s_mov_b64 exec, 0xff")
        e(f"ds_write_b32 v{V_MLW}, v{T[0]} offset:{CM + br*256}")
        e("s_mov_b64 exec, -1")
        e("s_waitcnt lgkmcnt(0)")
        if not (br == 0 and self.opt("noabar", 0)): e("s_barrier")
        e(f"ds_read_b128 v[{tmp}:{tmp+3}], v{V_U0} offset:{CM + br*256}")
        e(f"ds_read_b128 v[{tmp+4}:{tmp+7}], v{V_U0} offset:{CM + br*256 + 16}")
        e(f"ds_read_b128 v[{tmp+8}:{tmp+11}], v{V_MLR} offset:{CM + br*256}")
        e(f"ds_read_b128 v[{tmp+12}:{tmp+15}], v{V_MLR} offset:{CM + br*256 + 16}")
        if hook: hook()
        e("s_waitcnt lgkmcnt(2)")
        t = T[0]
        e(f"v_max3_f32 v{t}, v{tmp}, v{tmp+1}, v{tmp+2}"); e(f"v_max3_f32 v{t}, v{t}, v{tmp+3}, v{tmp+4}")
        e(f"v_max3_f32 v{t}, v{t}, v{tmp+5}, v{tmp+6}"); e(f"v_max_f32 v{t}, v{t}, v{tmp+7}")
        if rescale_only:
            al = T[4]
            e(f"v_sub_f32 v{al}, v{V_M}, v{t}"); e(f"v_mul_f32 v{al}, s{S_C}, v{al}"); e(f"v_exp_f32 v{al}, v{al}"); e("s_nop 0")
            e(f"v_mul_f32 v{V_LS}, v{V_LS}, v{al}")
            for i in range(16):
                e(f"v_pk_mul_f32 v[{OACC+2*i}:{OACC+2*i+1}], v[{OACC+2*i}:{OACC+2*i+1}], v[{al}:{al+1}] op_sel_hi:[1,0]")
        else:
            self.softmax_rest(first)
            self.xlane("v_add_f32", V_LS, T[1], (16, 32))
        e("s_mov_b64 exec, 0xff")
        e(f"ds_write_b32 v{V_MLW}, v{V_LS} offset:{CL + br*256}")
        e("s_mov_b64 exec, -1")
        e("s_waitcnt lgkmcnt(1)")
        m = tmp + 8
        e(f"v_max3_f32 v{tmp+18}, v{m}, v{m+1}, v{m+2}"); e(f"v_max3_f32 v{tmp+18}, v{tmp+18}, v{m+3}, v{m+4}")
        e(f"v_max3_f32 v{tmp+18}, v{tmp+18}, v{m+5}, v{m+6}"); e(f"v_max_f32 v{tmp+18}, v{tmp+18}, v{m+7}")
        e(f"v_mov_b32 v{tmp+19}, s{S_NONCE}")
        e(f"v_and_b32 v{tmp+16}, 1, v0"); e(f"v_cmp_eq_u32 vcc, 1, v{tmp+16}")
    def write_o(self, br, OACC=OACC):
        e = self.e
        e("s_mov_b32 exec_lo, 0x00ff00ff"); e("s_mov_b32 exec_hi, 0x00ff00ff")
        for dd in range(8):
            e(f"ds_write_b128 v{V_COW}, v[{OACC+dd*4}:{OACC+dd*4+3}] offset:{br*CO_BR + dd*16}")
        e("s_mov_b64 exec, -1")
    def read_q(self, br):
        for jj in range(4):
            self.e(f"ds_read_b128 v[{QR+jj*4}:{QR+jj*4+3}], v{V_QR} offset:{br*2176 + (((jj >> 1) * 128 + (jj & 1) * 16) if self.opt('kfull', 0) else jj*64)}")
    def o_publish(self, R, R2):
        e = self.e
        l = R + 20
        e(f"ds_read_b128 v[{l}:{l+3}], v{V_MLR} offset:{CL + 256}"); e(f"ds_read_b128 v[{l+4}:{l+7}], v{V_MLR} offset:{CL + 256 + 16}")
        for w in range(8):
            e(f"ds_read_b128 v[{R2+4*w}:{R2+4*w+3}], v{V_COR} offset:{CO_BR + w*CO_W}")
        P = R + 16
        pk = lambda d, x, y: e(f"v_pk_add_f32 v[{d}:{d+1}], v[{x}:{x+1}], v[{y}:{y+1}]")
        pk4 = lambda d, y: (pk(d, d, y), pk(d + 2, d + 2, y + 2))
        e("s_waitcnt lgkmcnt(8)")
        pk(l, l, l + 2); pk(l + 4, l + 4, l + 6); pk(l, l, l + 4)
        e("s_waitcnt lgkmcnt(6)")
        pk4(R2, R2 + 4)
        e(f"v_add_f32 v{l}, v{l}, v{l+1}")
        e("s_waitcnt lgkmcnt(4)")
        pk4(R2 + 8, R2 + 12)
        e(f"v_cndmask_b32 v{R+18}, v{R+18}, v{l}, vcc")
        e("s_waitcnt lgkmcnt(2)")
        pk4(R2 + 16, R2 + 20); pk4(R2, R2 + 8)
        e("s_waitcnt lgkmcnt(0)")
        pk4(R2 + 24, R2 + 28); pk4(R2 + 16, R2 + 24); pk4(R2, R2 + 16)
        e(f"v_cvt_pk_bf16_f32 v{P}, v{R2}, v{R2+1}"); e(f"v_cvt_pk_bf16_f32 v{P+1}, v{R2+2}, v{R2+3}")
        e("s_mov_b32 exec_hi, 0")
        self.vm(f"buffer_store_dwordx4 v[{P}:{P+3}], v{V_PO}, s[{WS}:{WS+3}], s{S_POB} offen sc1", "st", paced=False)
        e("s_mov_b32 exec_hi, -1")
    def combine_a(self, R, hoff, P, na):
        e = self.e
        m, l, o = SR, QRX, R
        M, mc, A = R + 16, T[2], R + 20
        for i in range(na // 4):
            e(f"ds_read_b128 v[{m+4*i}:{m+4*i+3}], v{V_MLR} offset:{CM + hoff*32 + 16*i}")
        for i in range(na // 4):
            e(f"ds_read_b128 v[{l+4*i}:{l+4*i+3}], v{V_MLR} offset:{CL + hoff*32 + 16*i}")
        for w in range(4): e(f"ds_read_b128 v[{o+4*w}:{o+4*w+3}], v{V_COR} offset:{w*CO_W + hoff*CO_H}")
        e(f"v_mov_b32 v{P+3}, s{S_NONCE}")
        e(f"v_and_b32 v{M+1}, 1, v0"); e(f"v_cmp_eq_u32 vcc, 1, v{M+1}")
        e(f"s_waitcnt lgkmcnt({4 + na//4})")
        e(f"v_max3_f32 v{M}, v{m}, v{m+1}, v{m+2}"); e(f"v_max_f32 v{M}, v{M}, v{m+3}")
        if na == 8:
            e(f"v_max3_f32 v{M}, v{M}, v{m+4}, v{m+5}"); e(f"v_max3_f32 v{M}, v{M}, v{m+6}, v{m+7}")
        e(f"v_mul_f32 v{mc}, s{S_C}, v{M}")
        for w in range(na): e(f"v_fma_f32 v{m+w}, v{m+w}, s{S_C}, -v{mc}")
        for w in range(na): e(f"v_exp_f32 v{m+w}, v{m+w}")
        e("s_waitcnt lgkmcnt(0)")
        for w in range(na):
            if w == 4:
                for w2 in range(4): e(f"ds_read_b128 v[{o+4*w2}:{o+4*w2+3}], v{V_COR} offset:{(4+w2)*CO_W + hoff*CO_H}")
                e("s_waitcnt lgkmcnt(0)")
            op = "v_mul_f32" if w == 0 else "v_fmac_f32"
            for i in range(4): e(f"{op} v{A+i}, v{m+w}, v{o+4*(w%4)+i}")
            e(f"{op} v{M+2}, v{m+w}, v{l+w}")
        e(f"v_cvt_pk_bf16_f32 v{P}, v{A}, v{A+1}"); e(f"v_cvt_pk_bf16_f32 v{P+1}, v{A+2}, v{A+3}")
        e(f"v_cndmask_b32 v{P+2}, v{M}, v{M+2}, vcc")
    def a_tile(self, half):
        e = self.e
        uk, uv = ("KH", "VH") if half else ("KA", "VA")
        self.read_q(0)
        self.wait(uk)
        e("s_waitcnt lgkmcnt(0)")
        r = self.slot[uk]
        if half:
            self.kfix(r, 1)
            for jj in range(4): self.mfma(SR, r + jj * 4, QR + jj * 4, None if jj == 0 else SR)
            for i in range(4): e(f"v_mov_b32 v{SR+4+i}, 0xff7fffff")
        else:
            self.qk(r)
        acc = r
        self.read_q(1)
        e("s_nop 3")
        self.tilemax(True); self.softmax_rest(True, T[5], T[6])
        self.xlane("v_add_f32", T[6], T[1], (16, 32))
        e("s_mov_b64 exec, 0xff")
        e(f"ds_write_b32 v{V_MLW}, v{T[5]} offset:{CM}")
        e(f"ds_write_b32 v{V_MLW}, v{T[6]} offset:{CL}")
        e("s_mov_b64 exec, -1")
        if half:
            for i in range(16): e(f"v_mov_b32 v{self.slot[uv]+16+i}, 0")
        self.wait(uv)
        self.perm_mfma8(self.slot[uv], PR, True, True, acc); self.release(uv)
        if not self.issue_next(): e("s_nop 3")
        self.write_o(0, acc); self.release(uk)
        e(f"v_mov_b32 v{T[1]}, 1")
        e("s_mov_b64 exec, 1"); e(f"ds_add_u32 v{V_FLG}, v{T[1]} offset:{F_AC - FLG}"); e("s_mov_b64 exec, -1")
        e("s_waitcnt lgkmcnt(0)")
        self.issue_next()
    def pub_addrs(self, with_a):
        e = self.e
        for br, sp, po, ml in ((1, S_SPLIT, S_POB, S_MLB), (0, S_SPLIT, S_POA, S_MLA)):
            if br == 0 and not with_a: continue
            e(f"s_lshl_b32 s{po}, s{S_GRP}, 3"); e(f"s_add_u32 s{po}, s{po}, s3"); e(f"s_lshl_b32 s{po}, s{po}, 14")
            e(f"s_lshl_b32 s{S_T1}, s{sp}, 7"); e(f"s_add_u32 s{po}, s{po}, s{S_T1}"); e(f"s_add_u32 s{po}, s{po}, {hex(PO + br*0x100000)}")
    def check(self, tags):
        e = self.e; acc = T[7]
        e(f"v_xor_b32 v{acc}, s{S_NONCE}, v{tags[0]}")
        for t in tags[1:]:
            e(f"v_xor_b32 v{T[6]}, s{S_NONCE}, v{t}"); e(f"v_or_b32 v{acc}, v{acc}, v{T[6]}")
        e(f"v_cmp_ne_u32 vcc, 0, v{acc}")
    def poll(self, loads, tags, sleep=1, pre_issued=False):
        e = self.e
        lp, ok, chk = self.newlab("poll"), self.newlab("ok"), self.newlab("chk")
        e(f"s_mov_b32 s{S_CNT}, 0")
        if pre_issued: e(f"s_branch {chk}")
        self.label(lp)
        for s in loads: e(s)
        e("s_waitcnt vmcnt(0)")
        self.label(chk)
        self.check(tags)
        e(f"s_add_u32 s{S_CNT}, s{S_CNT}, 1")
        e(f"s_cbranch_vccz {ok}")
        e(f"s_cmp_gt_u32 s{S_CNT}, {SPIN_MAX}")
        e(f"s_cbranch_scc1 {ok}")
        if sleep: e(f"s_sleep {sleep}")
        e(f"s_branch {lp}")
        self.label(ok)
    def poll_pipe(self, mk, nreg, sets, first_issued=0):
        e = self.e
        nl = len(mk(sets[0])); ns = len(sets)
        lp, done = self.newlab("pp"), self.newlab("ppdone")
        oks = [self.newlab("ppok") for _ in sets]
        def cp(b):
            if self.resmul is None:
                e(f"v_add_f32 v{self.res}, v{b}, v{b+4}"); e(f"v_add_f32 v{self.res+1}, v{b+2}, v{b+6}")
            else:
                for i, w in enumerate(self.resmul):
                    op = "v_mul_f32" if i == 0 else "v_fmac_f32"
                    e(f"{op} v{self.res}, v{b+4*i}, v{w}"); e(f"{op} v{self.res+1}, v{b+4*i+2}, v{w}")
        e(f"s_mov_b32 s{S_CNT}, 0")
        for i in range(first_issued, ns):
            for s in mk(sets[i]): e(s)
            if i < ns - 1: e(f"s_sleep {self.opt('ppsleep', 2)}")
        self.label(lp)
        for i in range(ns):
            e(f"s_waitcnt vmcnt({(nl + self.opt('ppinv', 0)) * (ns - 1)})")
            self.check([sets[i] + 1 + 2 * k for k in range(nreg // 2)])
            e(f"s_cbranch_vccz {oks[i]}")
            if self.opt("ppinv", 0): e("buffer_inv sc1")
            if self.opt("ppgap", 0): e(f"s_sleep {self.opt('ppgap', 0)}")
            for s in mk(sets[i]): e(s)
        e(f"s_add_u32 s{S_CNT}, s{S_CNT}, 1")
        e(f"s_cmp_gt_u32 s{S_CNT}, {SPIN_MAX}")
        e(f"s_cbranch_scc0 {lp}")
        for i in range(ns - 1, 0, -1):
            self.label(oks[i])
            cp(sets[i])
            e(f"s_branch {done}")
        self.label(oks[0])
        cp(sets[0])
        self.label(done)
    def poll_missing(self, loads, tags, sleep, first=True, firstwait=0, watch=False, hook=None):
        e = self.e
        n = len(loads)
        lp, done, chk = self.newlab("pm"), self.newlab("pmdone"), self.newlab("pmchk")
        MK = [4, 6, 8, 10]; hk = self.newlab("pmhk")
        e(f"s_mov_b32 s{S_CNT}, 0")
        watch = watch and self.opt("watch", 1)
        S_PREV, S_N = 16, 17
        if watch: e(f"s_mov_b32 s{S_PREV}, 0")
        if first:
            for s_ in loads: e(s_)
        if firstwait:
            e(f"s_waitcnt vmcnt({firstwait})"); e(f"s_branch {chk}")
        self.label(lp)
        e("s_waitcnt vmcnt(0)")
        self.label(chk)
        for i in range(n):
            tg = tags[i]
            if tg[0] == "emb":
                r = tg[1]
                e(f"v_perm_b32 v{T[6]}, v{r+1}, v{r}, s{S_SELLO}"); e(f"v_perm_b32 v{T[7]}, v{r+3}, v{r+2}, s{S_SELLO}")
                e(f"v_perm_b32 v{T[6]}, v{T[7]}, v{T[6]}, s{S_SELHI}")
                e(f"v_cmp_ne_u32 s[{MK[i]}:{MK[i]+1}], s{S_NONCE}, v{T[6]}")
            elif len(tg) == 1:
                e(f"v_cmp_ne_u32 s[{MK[i]}:{MK[i]+1}], s{S_NONCE}, v{tg[0]}")
            else:
                e(f"v_xor_b32 v{T[6]}, s{S_NONCE}, v{tg[0]}"); e(f"v_xor_b32 v{T[7]}, s{S_NONCE}, v{tg[1]}"); e(f"v_or_b32 v{T[6]}, v{T[6]}, v{T[7]}")
                e(f"v_cmp_ne_u32 s[{MK[i]}:{MK[i]+1}], 0, v{T[6]}")
        e(f"s_or_b64 vcc, s[{MK[0]}:{MK[0]+1}], s[{MK[min(1, n-1)]}:{MK[min(1, n-1)]+1}]")
        for i in range(2, n): e(f"s_or_b64 vcc, vcc, s[{MK[i]}:{MK[i]+1}]")
        e(f"s_cbranch_scc0 {done}")
        e(f"s_add_u32 s{S_CNT}, s{S_CNT}, 1")
        e(f"s_cmp_gt_u32 s{S_CNT}, {SPIN_MAX}"); e(f"s_cbranch_scc1 {done}")
        if watch:
            full = self.newlab("pmfull")
            e(f"s_bcnt1_i32_b64 s{S_N}, s[{MK[0]}:{MK[0]+1}]")
            for i in range(1, n):
                e(f"s_bcnt1_i32_b64 s{S_T3}, s[{MK[i]}:{MK[i]+1}]"); e(f"s_add_u32 s{S_N}, s{S_N}, s{S_T3}")
            e(f"s_cmp_le_u32 s{S_N}, {8 * self.opt('wthr', 4)}"); e(f"s_cbranch_scc1 {full}")
            e(f"s_cmp_lt_u32 s{S_N}, s{S_PREV}"); e(f"s_cbranch_scc1 {full}")
            e(f"s_mov_b32 s{S_PREV}, s{S_N}")
            e(f"s_sleep {self.opt('wsleep', 4)}")
            for i in range(n):
                nx = self.newlab("pmw")
                e(f"s_ff1_i32_b64 s{S_T3}, s[{MK[i]}:{MK[i]+1}]")
                e(f"s_cmp_lt_i32 s{S_T3}, 0"); e(f"s_cbranch_scc1 {nx}")
                e(f"s_and_b32 s{S_T3}, s{S_T3}, 56"); e(f"s_lshl_b64 exec, 0xff, s{S_T3}")
                e(loads[i])
                e(f"s_branch {hk}")
                self.label(nx)
            self.label(full)
            e(f"s_mov_b32 s{S_PREV}, 0")
        if sleep: e(f"s_sleep {sleep}")
        for i in range(n):
            sk = self.newlab("pms")
            e(f"s_mov_b64 exec, s[{MK[i]}:{MK[i]+1}]")
            e(f"s_cbranch_execz {sk}")
            e(loads[i])
            self.label(sk)
        self.label(hk)
        e("s_mov_b64 exec, -1")
        if hook: hook()
        e(f"s_branch {lp}")
        self.label(done)
    def lds_spin(self, off, target=None, dst=S_T3):
        if self.opt("noq", 0): return
        e = self.e
        lp, ok = self.newlab("ls"), self.newlab("lsok")
        e(f"s_mov_b32 s{S_CNT}, 0")
        self.label(lp)
        e(f"ds_read_b32 v{T[7]}, v{V_FLG} offset:{off - FLG}")
        e("s_waitcnt lgkmcnt(0)")
        e(f"v_readfirstlane_b32 s{dst}, v{T[7]}")
        e(f"s_add_u32 s{S_CNT}, s{S_CNT}, 1")
        if target is None: e(f"s_cmp_lg_u32 s{dst}, 0")
        else: e(f"s_cmp_eq_u32 s{dst}, {target}")
        e(f"s_cbranch_scc1 {ok}")
        e(f"s_cmp_gt_u32 s{S_CNT}, {SPIN_MAX*50}")
        e(f"s_cbranch_scc1 {ok}")
        e("s_sleep 1")
        e(f"s_branch {lp}")
        self.label(ok)
    def get_nonce(self):
        e = self.e
        lp, ok = self.newlab("nn"), self.newlab("nnok")
        e(f"s_mov_b32 s{S_CNT}, 0")
        self.label(lp)
        e(f"v_readfirstlane_b32 s{S_NONCE}, v{V_U1}")
        e(f"s_add_u32 s{S_CNT}, s{S_CNT}, 1")
        e(f"s_cmp_lg_u32 s{S_NONCE}, 0")
        e(f"s_cbranch_scc1 {ok}")
        e(f"s_cmp_gt_u32 s{S_CNT}, {SPIN_MAX}")
        e(f"s_cbranch_scc1 {ok}")
        e(f"buffer_load_dword v{V_U1}, off, s[{DBG}:{DBG+3}], 0 sc1")
        e("s_waitcnt vmcnt(0)")
        e(f"s_branch {lp}")
        self.label(ok)
    def qpoll_loads(self, OACC=OACC):
        l = [f"buffer_load_dwordx4 v[{OACC}:{OACC+3}], v{V_L0}, s[{WS}:{WS+3}], s{S_QB} offen sc1"]
        if True: l.append(f"buffer_load_dwordx4 v[{OACC+4}:{OACC+7}], v{V_L0}, s[{WS}:{WS+3}], s{S_QA} offen sc1")
        return l
    def qtags(self, OACC=OACC): return [OACC + 1, OACC + 3] + [OACC + 5, OACC + 7]
    def qcommit(self, OACC=OACC):
        e = self.e
        e(f"v_mov_b32 v{OACC+1}, v{OACC+2}")
        e(f"v_mov_b32 v{OACC+5}, v{OACC+6}")
        e(f"v_mov_b32 v{T[0]}, s{S_NONCE}"); e(f"v_mov_b32 v{T[1]}, 1")
        e(f"ds_write_b64 v{V_QW}, v[{OACC}:{OACC+1}] offset:2176")
        e(f"ds_write_b64 v{V_QW}, v[{OACC+4}:{OACC+5}]")
        e("s_mov_b64 exec, 1")
        e(f"ds_write_b32 v{V_FLG}, v{T[0]} offset:{F_NON - FLG}")
        e(f"ds_add_u32 v{V_FLG}, v{T[1]} offset:{F_QC - FLG}")
        e("s_mov_b64 exec, -1")
        e(f"s_mov_b32 s{S_OK}, 1")
        self.stamp(4)
    def young_prefetch(self, _nr):
        e = self.e
        nonce_ready = not self.isO
        e(f"s_lshl_b32 s{S_QA}, s{S_GRP}, 12"); e(f"s_and_b32 s{S_T1}, s3, 3"); e(f"s_lshl_b32 s{S_T2}, s{S_T1}, 10"); e(f"s_add_u32 s{S_QA}, s{S_QA}, s{S_T2}")
        e(f"s_add_u32 s{S_QB}, s{S_QA}, 32768")
        e(f"s_mul_i32 s{S_T1}, s{S_T1}, 544"); e(f"v_add_u32 v{V_QW}, s{S_T1}, v{V_QW}")
        e(f"s_mov_b32 s{S_OK}, 0")
        lagk = self.opt("qlag", 0)
        first = self.opt("qfirsto" if self.isO else "qfirstq", 2 if self.isO else 1)
        k = 0; pend = []
        if not nonce_ready:
            pass
        def chk(k, mark):
            nonlocal nonce_ready
            B = OACC + 8 * (k % 4)
            skip = self.newlab("qskip")
            if nonce_ready:
                e(f"s_cmp_eq_u32 s{S_OK}, 1"); e(f"s_cbranch_scc1 {skip}")
            e(f"s_waitcnt vmcnt({len(self.q) - mark})")
            if not nonce_ready:
                self.get_nonce(); nonce_ready = True
            self.check(self.qtags(B))
            e(f"s_cbranch_vccnz {skip}")
            self.qcommit(B)
            self.label(skip)
        while True:
            if k >= first:
                sk = self.newlab("qps")
                if not nonce_ready and k == first:
                    e(f"buffer_load_dword v{V_U1}, off, s[{DBG}:{DBG+3}], 0 sc1")
                if k > first: e(f"s_cmp_eq_u32 s{S_OK}, 1"); e(f"s_cbranch_scc1 {sk}")
                for s_ in self.qpoll_loads(OACC + 8 * (k % 4)): e(s_)
                self.label(sk)
                pend.append((k, len(self.q)))
            ok = self.issue_next()
            if len(pend) > lagk: chk(*pend.pop(0))
            k += 1
            if not ok or not self.free: break
        for kk, mark in pend: chk(kk, mark)
        done = self.newlab("qd")
        e(f"s_cmp_eq_u32 s{S_OK}, 1"); e(f"s_cbranch_scc1 {done}")
        self.poll(self.qpoll_loads(), self.qtags(), sleep=1)
        self.qcommit()
        self.label(done)
    def wait_q(self):
        e = self.e
        self.lds_spin(F_QC, 4)
        if self.opt("noq", 0): return
        e(f"ds_read_b32 v{T[7]}, v{V_FLG} offset:{F_NON - FLG}")
        e("s_waitcnt lgkmcnt(0)")
        e(f"v_readfirstlane_b32 s{S_NONCE}, v{T[7]}")

    def build(self):
        e = self.e; L = self.L
        L.append(f"; @launch grid=(256,1,1) block=(512,1,1) lds={LDS_SIZE}")
        L.append('.amdgcn_target "amdgcn-amd-amdhsa--gfx950"')
        L.append(".text"); L.append(f".globl {KNAME}"); L.append(".p2align 8"); L.append(f".type {KNAME},@function"); L.append(f"{KNAME}:")
        e("s_cmp_ge_u32 s2, 256"); e("s_cbranch_scc1 L_end")
        e("s_load_dwordx16 s[48:63], s[0:1], 0")
        e("s_load_dwordx8 s[64:71], s[0:1], 64")
        e("s_load_dwordx4 s[72:75], s[0:1], 96")
        e("s_memrealtime s[96:97]")
        e("v_lshrrev_b32 v1, 6, v0")
        e("v_and_b32 v0, 63, v0")
        e("v_readfirstlane_b32 s3, v1")
        e(f"v_mov_b32 v{V_FLG}, {FLG}")
        e("v_mov_b32 v28, 0"); e("v_mov_b32 v29, 0"); e("v_mov_b32 v30, 0"); e("v_mov_b32 v31, 0")
        e("s_cmp_lg_u32 s3, 0"); e("s_cbranch_scc1 L_noinit")
        e(f"ds_write_b128 v{V_FLG}, v[28:31]"); e(f"ds_write_b128 v{V_FLG}, v[28:31] offset:16")
        self.label("L_noinit")
        e("v_and_b32 v24, 15, v0"); e("v_lshrrev_b32 v25, 4, v0")
        col8 = self.o.get("map", "il") == "col8"
        e("v_and_b32 v26, 3, v24"); e(f"v_lshlrev_b32 v26, {13 if col8 else 10}, v26")
        e("v_lshrrev_b32 v27, 2, v24"); e("v_lshl_add_u32 v26, v27, 8, v26")
        if self.opt("kfull", 0):
            e("v_and_b32 v26, 3, v0"); e("v_lshlrev_b32 v26, 10, v26"); e("v_bfe_u32 v27, v0, 2, 1"); e("v_lshl_add_u32 v26, v27, 8, v26")
            e("v_lshrrev_b32 v27, 3, v0"); e(f"v_lshl_add_u32 v{V_K0}, v27, 4, v26")
        else:
            e(f"v_lshl_add_u32 v{V_K0}, v25, 4, v26")
        e(f"v_add_u32 v{V_K1}, {32768 if col8 else 4096}, v{V_K0}")
        e(f"v_lshlrev_b32 v{V_L0}, 4, v0"); e(f"v_add_u32 v{V_L1}, 4096, v{V_L0}")
        e(f"s_lshr_b32 s{S_GRP}, s2, 5"); e(f"s_and_b32 s{S_IDX}, s2, 15"); e(f"s_and_b32 s{S_SPLIT}, s2, 31")
        e(f"s_lshl_b32 s{S_J}, s{S_GRP}, 4"); e(f"s_add_u32 s{S_J}, s{S_J}, s{S_IDX}")
        e(f"s_lshl_b32 s{S_T0}, s{S_GRP}, 23")
        if col8:
            e(f"s_lshl_b32 s{S_BB}, s{S_SPLIT}, 16"); e(f"s_lshl_b32 s{S_T1}, s3, 10"); e(f"s_add_u32 s{S_BB}, s{S_BB}, s{S_T1}"); e(f"s_add_u32 s{S_BB}, s{S_BB}, s{S_T0}")
            e(f"s_lshr_b32 s{S_AB}, s{S_SPLIT}, 1"); e(f"s_lshl_b32 s{S_AB}, s{S_AB}, 16"); e(f"s_add_u32 s{S_AB}, s{S_AB}, s{S_T1}")
            e(f"s_and_b32 s{S_T1}, s{S_SPLIT}, 1"); e(f"s_lshl_b32 s{S_T1}, s{S_T1}, 12"); e(f"s_add_u32 s{S_AB}, s{S_AB}, s{S_T1}"); e(f"s_add_u32 s{S_AB}, s{S_AB}, s{S_T0}")
        else:
            e(f"s_lshl_b32 s{S_BB}, s{S_SPLIT}, 3"); e(f"s_add_u32 s{S_BB}, s{S_BB}, s3"); e(f"s_lshl_b32 s{S_BB}, s{S_BB}, 13"); e(f"s_add_u32 s{S_BB}, s{S_BB}, s{S_T0}")
            e(f"s_lshl_b32 s{S_AB}, s{S_SPLIT}, 2"); e(f"s_add_u32 s{S_AB}, s{S_AB}, s3"); e(f"s_lshl_b32 s{S_AB}, s{S_AB}, 13"); e(f"s_add_u32 s{S_AB}, s{S_AB}, s{S_T0}")
        e(f"s_add_u32 s{S_AB}, s{S_AB}, 0x700000")
        e("s_bitcmp1_b32 s2, 4"); e("s_cbranch_scc1 L_roleO")
        self.q = []
        self.roleQ()
        self.label("L_roleO")
        self.q = []
        self.roleO()
        self.label("L_end"); e("s_endpgm"); self.label("L_code_end")
        L.append('.section .rodata,"a"'); L.append(".p2align 6"); L.append(f".amdhsa_kernel {KNAME}")
        for s in ["next_free_vgpr 256", "next_free_sgpr 102", "accum_offset 256", "group_segment_fixed_size 0", "kernarg_size 112",
                  "user_sgpr_count 2", "user_sgpr_kernarg_segment_ptr 1", "system_sgpr_workgroup_id_x 1"]:
            L.append("  .amdhsa_" + s)
        L.append(".end_amdhsa_kernel")
        txt = "\n".join(L) + "\n"
        import re
        if self.opt("ld01", 0): txt = re.sub(r"(buffer_load[^\n]*) sc1", r"\1 sc0 sc1", txt)
        if self.opt("st01", 0): txt = re.sub(r"(buffer_store[^\n]*) sc1", r"\1 sc0 sc1", txt)
        return txt

    def common_setup(self):
        e = self.e
        e(f"s_mov_b32 s{S_SELLO}, 0x05040100"); e(f"s_mov_b32 s{S_SELHI}, 0x07060302")
        e(f"s_mov_b32 s{S_C}, {hex(f2u(math.log2(math.e) / math.sqrt(128.0)))}")
        e(f"s_mul_i32 s{S_T0}, s3, {CO_W}"); e(f"s_add_u32 s{S_T0}, s{S_T0}, {CO}")
        e(f"v_mul_u32_u24 v{V_COW}, {CO_H}, v24"); e(f"v_lshl_add_u32 v{V_COW}, v25, 7, v{V_COW}"); e(f"v_add_u32 v{V_COW}, s{S_T0}, v{V_COW}")
        e(f"s_lshl_b32 s{S_T0}, s3, 2"); e(f"v_lshlrev_b32 v{V_MLW}, 5, v24"); e(f"v_add_u32 v{V_MLW}, s{S_T0}, v{V_MLW}")
        e("v_and_b32 v26, 7, v24"); e(f"v_lshlrev_b32 v{V_U0}, 5, v26")
        e(f"v_mul_u32_u24 v{V_QR}, 272, v26"); e(f"v_lshl_add_u32 v{V_QR}, v25, {5 if self.opt('kfull', 0) else 4}, v{V_QR}"); e(f"v_add_u32 v{V_QR}, {QOP}, v{V_QR}")
        e(f"s_mul_i32 s{S_T0}, s3, {CO_H}"); e(f"s_add_u32 s{S_T0}, s{S_T0}, {CO}"); e("v_and_b32 v26, 31, v0"); e(f"v_lshlrev_b32 v{V_COR}, 4, v26"); e(f"v_add_u32 v{V_COR}, s{S_T0}, v{V_COR}")
        e(f"s_lshl_b32 s{S_T0}, s3, 5"); e(f"v_mov_b32 v{V_MLR}, s{S_T0}")
        e("v_lshrrev_b32 v26, 5, v0"); e(f"v_mul_u32_u24 v{V_QW}, 272, v26"); e("v_and_b32 v26, 31, v0"); e(f"v_lshl_add_u32 v{V_QW}, v26, 3, v{V_QW}"); e(f"v_add_u32 v{V_QW}, {QOP}, v{V_QW}")

    def tiles(self, old, pre_tail):
        e = self.e
        self.read_q(1)
        pt = self.opt("pretouch", 0)
        if pt == 1:
            e(f"s_lshl_b32 s{S_T1}, s3, 20"); e(f"s_lshl_b32 s{S_T2}, s2, 7"); e(f"s_add_u32 s{S_T1}, s{S_T1}, s{S_T2}"); e(f"s_add_u32 s{S_T1}, s{S_T1}, 0x80000")
            self.vm(f"buffer_load_dword v{V_U1}, off, s[{WS}:{WS+3}], s{S_T1} nt", "pt", paced=False)
        if pt == 2:
            e(f"s_lshl_b32 s{S_T1}, s3, 20"); e(f"s_lshl_b32 s{S_T2}, s2, 6"); e(f"s_add_u32 s{S_T1}, s{S_T1}, s{S_T2}")
            e(f"v_lshlrev_b32 v{T[0]}, 14, v0")
            self.vm(f"buffer_load_dword v{V_U1}, v{T[0]}, s[{WS}:{WS+3}], s{S_T1} offen nt", "pt", paced=False)
        e(f"v_lshrrev_b32 v{T[0]}, 3, v0"); e(f"v_lshlrev_b32 v{V_PO}, 12, v{T[0]}"); e(f"v_and_b32 v{T[0]}, 7, v0"); e(f"v_lshl_add_u32 v{V_PO}, v{T[0]}, 4, v{V_PO}")
        e("s_waitcnt lgkmcnt(0)")
        if self.amode == "half": self.a_tile(True)
        dyn = (not old) and self.opt("dyn", 1)
        wgc = self.opt("wgclaim", 0); lead = self.opt("clead", 0)
        def do_claim(tag):
            if wgc:
                sk = self.newlab("cl")
                e("s_cmp_lg_u32 s3, 4"); e(f"s_cbranch_scc1 {sk}")
                e(f"v_mov_b32 v{V_U1}, 1"); e("s_mov_b64 exec, 1")
                e(f"buffer_atomic_add v{V_U1}, off, s[{WS}:{WS+3}], s{S_CA} sc0")
                e("s_mov_b64 exec, -1")
                self.label(sk)
                self.cmark = len(self.q); self.cq = self.q
                self.q.append("virt_" + tag); self.virt = True
            else:
                e(f"v_mov_b32 v{V_U1}, 1"); e("s_mov_b64 exec, 1")
                self.vm(f"buffer_atomic_add v{V_U1}, off, s[{WS}:{WS+3}], s{S_CA} sc0", tag, paced=False)
                e("s_mov_b64 exec, -1")
        def btile(t, first, claim=None, claim_end=None):
            uk, uv = f"K{t}", f"V{t}"
            self.wait(uk)
            self.qk(self.slot[uk]); self.release(uk)
            ok = self.issue_next()
            if claim: do_claim(claim)
            if not ok: e("s_nop 7")
            self.tilemax(first); self.softmax_rest(first)
            self.wait(uv)
            self.perm_mfma8(self.slot[uv], PR, first, True); self.release(uv)
            self.issue_next()
            if claim_end: do_claim(claim_end)
        if not dyn:
            for t in range(3): btile(t, t == 0)
            if self.amode == "full": self.a_tile(False)
            self.last_tile(old, pre_tail, "3"); self.tail_fn(); return
        e(f"s_lshl_b32 s{S_DB}, s{S_GRP}, 23"); e(f"s_lshl_b32 s{S_T0}, s3, 13"); e(f"s_add_u32 s{S_DB}, s{S_DB}, s{S_T0}"); e(f"s_add_u32 s{S_DB}, s{S_DB}, 0x600000")
        e(f"s_lshl_b32 s{S_CA}, s{S_GRP}, 2"); e(f"s_and_b32 s{S_T0}, s3, {0 if wgc else 3}"); e(f"s_add_u32 s{S_CA}, s{S_CA}, s{S_T0}"); e(f"s_lshl_b32 s{S_CA}, s{S_CA}, 8"); e(f"s_add_u32 s{S_CA}, s{S_CA}, {hex(CT)}")
        names = ["X", "Y", "Z"][:self.opt("maxdyn", 2)]
        if lead == 0: btile(0, True); btile(1, False, "c0")
        elif lead == 1: btile(0, True, None, "c0"); btile(1, False)
        else: btile(0, True, "c0"); btile(1, False)
        prev = "2"; ends = []
        for i, nm in enumerate(names):
            lab = self.newlab("dend")
            if wgc:
                sk = self.newlab("cw")
                e("s_cmp_lg_u32 s3, 4"); e(f"s_cbranch_scc1 {sk}")
                idx = [k for k, t_ in enumerate(self.q) if t_ == f"virt_c{i}"]
                if idx: e(f"s_waitcnt vmcnt({len([t_ for t_ in self.q[idx[0]+1:] if not str(t_).startswith('virt_')])})")
                e(f"v_add_u32 v{V_U1}, 1, v{V_U1}")
                e("s_mov_b64 exec, 1"); e(f"ds_write_b32 v{V_FLG}, v{V_U1} offset:{16 + 4*i}"); e("s_mov_b64 exec, -1")
                self.label(sk)
                self.q = [t_ for t_ in self.q if t_ != f"virt_c{i}"]
                self.lds_spin(FLG + 16 + 4 * i, None, S_DX)
                e(f"s_sub_u32 s{S_DX}, s{S_DX}, 1")
            else:
                self.wait(f"c{i}")
                e(f"v_readfirstlane_b32 s{S_DX}, v{V_U1}")
                e("s_nop 0")
            e(f"s_cmp_ge_u32 s{S_DX}, 32"); e(f"s_cbranch_scc1 {lab}")
            ends.append((lab, prev, list(self.q), list(self.free), dict(self.slot)))
            e(f"s_lshl_b32 s{S_DX}, s{S_DX}, 16"); e(f"s_add_u32 s{S_DX}, s{S_DX}, s{S_DB}")
            assert not self.seq
            self.seq = ["K" + nm, "V" + nm]
            assert self.issue_next()
            nxt = f"c{i+1}" if i + 1 < len(names) else None
            if lead >= 1 and nxt:
                do_claim(nxt); btile(prev, False)
            else: btile(prev, False, nxt)
            prev = nm
        self.last_tile(old, pre_tail, prev); self.tail_fn()
        for lab, t, q, free, slot in ends:
            self.label(lab)
            self.q, self.free, self.slot, self.seq = q, free, slot, []
            self.last_tile(old, pre_tail, t); self.tail_fn()

    def last_tile(self, old, pre_tail, tl):
        e = self.e
        K3, V3 = "K" + tl, "V" + tl
        assert not self.seq, self.seq
        assert len(self.free) >= 1, self.free
        pre_tail()
        R = self.free[0]
        if old:
            if self.amode is None:
                e(f"v_and_b32 v{T[0]}, 1, v0"); e(f"v_cmp_eq_u32 vcc, 1, v{T[0]}"); e(f"v_mov_b32 v{T[1]}, 0xff7fffff")
                for P in (R + 24, R + 28):
                    e(f"v_mov_b32 v{P}, 0"); e(f"v_mov_b32 v{P+1}, 0"); e(f"v_cndmask_b32 v{P+2}, v{T[1]}, v{P}, vcc"); e(f"v_mov_b32 v{P+3}, s{S_NONCE}")
            elif self.isO or not self.opt("rebal", 1):
                self.lds_spin(F_AC, 4)
                self.combine_a(R, 0, R + 24, 4); self.combine_a(R, 4, R + 28, 4)
            else:
                l8, ld = self.newlab("na8"), self.newlab("nad")
                self.lds_spin(F_AC, f"s{S_NA}")
                e(f"s_cmp_eq_u32 s{S_NA}, 8"); e(f"s_cbranch_scc1 {l8}")
                self.combine_a(R, 0, R + 24, 4); self.combine_a(R, 4, R + 28, 4)
                e(f"s_branch {ld}")
                self.label(l8)
                self.combine_a(R, 0, R + 24, 8); self.combine_a(R, 4, R + 28, 8)
                self.label(ld)
            e(f"s_add_u32 s{S_MLA}, s{S_POA}, {4*16384}")
        self.wait(K3)
        self.qk(self.slot[K3]); self.release(K3)
        R2 = self.free[1]
        e("s_nop 7")
        def after_bm():
            if old:
                e("s_mov_b32 exec_hi, 0")
                self.vm(f"buffer_store_dwordx4 v[{R+24}:{R+27}], v{V_PO}, s[{WS}:{WS+3}], s{S_POA} offen sc1", "st", paced=False)
                self.vm(f"buffer_store_dwordx4 v[{R+28}:{R+31}], v{V_PO}, s[{WS}:{WS+3}], s{S_MLA} offen sc1", "st", paced=False)
                e("s_mov_b32 exec_hi, -1")
        if self.opt("abm", 1) == 0: after_bm()
        hook = after_bm if self.opt("abm", 1) else None
        if old and self.opt("oldfin", 1):
            self.tilemax(False); self.softmax_rest(False)
            self.wait(V3)
            self.perm_mfma8(self.slot[V3], PR, False, True); self.release(V3)
            self.xlane("v_add_f32", V_LS, T[1], (16, 32))
            e(f"v_mov_b32 v{T[0]}, v{V_M}")
            self.softmax_common(False, 1, R, hook, rescale_only=True)
            self.stamp(2); self.stamp(6)
        else:
            if not old and self.opt("yprio", 1): e("s_setprio 2")
            self.softmax_common(False, 1, R, hook)
            self.stamp(2)
            self.pv_last(V3, self.slot[V3], R2, False); self.release(V3)
        self.write_o(1)
        e("s_waitcnt lgkmcnt(0)")
        e("s_barrier")
        self.stamp(7)
        self.o_publish(R, R2)
        self.stamp(8)

    def code_prefetch(self, dst):
        e = self.e
        n = self.opt("cpn", 1)
        lab = self.newlab("pc")
        e("s_getpc_b64 s[70:71]" if not self.stamps else "s_getpc_b64 s[74:75]")
        pc = 70 if not self.stamps else 74
        self.label(lab)
        e(f"s_sub_u32 s{pc}, s{pc}, {lab}-{KNAME}"); e(f"s_subb_u32 s{pc+1}, s{pc+1}, 0")
        e(f"s_bfe_u32 s{S_T1}, s2, 0x30003"); e(f"s_lshl_b32 s{S_T1}, s{S_T1}, 2"); e(f"s_add_u32 s{S_T1}, s{S_T1}, s3"); e(f"s_mul_i32 s{S_T1}, s{S_T1}, {1024*n}")
        e(f"v_add_u32 v{T[5]}, s{S_T1}, v{V_L0}")
        e(f"v_min_u32 v{T[5]}, L_code_end-{KNAME}-{16 + 1024*(n-1)}, v{T[5]}")
        for i in range(n):
            self.vm(f"global_load_dword v{V_U1}, v{T[5]}, s[{pc}:{pc+1}] offset:{1024*i}", "cp", paced=False)
    def mkseq(self, old, isO):
        am = self.amode
        q = (["KH", "VH"] if am == "half" else []) + ["K0", "V0", "K1", "V1", "K2", "V2"] + (["KA", "VA"] if am == "full" else [])
        if not old and self.opt("dyn", 1):
            if not isO: return q
            wp = self.opt("wpos", 2)
            return q[:wp] + ["WA", "WB"] + q[wp:]
        if isO and not old and self.opt("woearly", 1): return q + ["WA", "WB", "K3", "V3"]
        return q + ["K3", "V3"] + (["WA", "WB"] if isO else [])

    def body(self, isO, tail, pre_tail, young_first):
        e = self.e
        p = "o" if isO else "q"
        self.isO = isO
        base_q, base_free = list(self.q), list(self.free)
        reb = (not isO) and self.opt("rebal", 1)
        variants = [(True, "full"), (False, None)] + ([(True, None), (False, "half")] if reb else [])
        if reb:
            e(f"s_and_b32 s{S_T0}, s2, 6"); e(f"s_cmp_eq_u32 s{S_T0}, {self.opt('recv', 0)}"); e(f"s_cselect_b32 s{S_NA}, 8, 4")
            e(f"s_and_b32 s{S_T0}, s2, 7"); e(f"s_cmp_eq_u32 s{S_T0}, 3"); e(f"s_cselect_b32 s{S_NA}, 0, s{S_NA}")
            e(f"s_and_b32 s{S_SRC}, s2, 8"); e(f"s_add_u32 s{S_SRC}, s{S_SRC}, 3")
            if self.opt("c63", 1):
                e(f"s_and_b32 s{S_T0}, s2, 0x6f"); e(f"s_cmp_eq_u32 s{S_T0}, 0x6f"); e(f"s_cselect_b32 s{S_NA}, 0, s{S_NA}")
                e(f"s_and_b32 s{S_T0}, s2, 0x6e"); e(f"s_cmp_eq_u32 s{S_T0}, 0x64"); e(f"s_cselect_b32 s{S_NA}, 8, s{S_NA}"); e(f"s_cselect_b32 s{S_SRC}, 15, s{S_SRC}")
            e("s_cmp_ge_u32 s3, 4"); e(f"s_cbranch_scc1 L_{p}_ysel")
            e(f"s_cmp_eq_u32 s{S_NA}, 0"); e(f"s_cbranch_scc1 L_{p}_v2")
        else:
            e("s_cmp_ge_u32 s3, 4"); e(f"s_cbranch_scc1 L_{p}_v1")
        for vi, (old, am) in enumerate(variants):
            self.q, self.free, self.slot = list(base_q), list(base_free), dict(self.slot0)
            self.amode = am; self.old = old
            self.seq = self.mkseq(old, isO)
            if vi == 1 and reb:
                self.label(f"L_{p}_ysel")
                e(f"s_cmp_eq_u32 s{S_NA}, 8"); e(f"s_cbranch_scc1 L_{p}_v3")
            self.label(f"L_{p}_v{vi}")
            if am == "half":
                e(f"s_lshl_b32 s{S_AB}, s{S_SRC}, 2"); e(f"s_and_b32 s{S_T0}, s3, 3"); e(f"s_add_u32 s{S_AB}, s{S_AB}, s{S_T0}")
                e(f"s_lshl_b32 s{S_AB}, s{S_AB}, 1"); e(f"s_and_b32 s{S_T0}, s2, 1"); e(f"s_add_u32 s{S_AB}, s{S_AB}, s{S_T0}"); e(f"s_lshl_b32 s{S_AB}, s{S_AB}, 12")
                e(f"s_lshl_b32 s{S_T0}, s{S_GRP}, 23"); e(f"s_add_u32 s{S_AB}, s{S_AB}, s{S_T0}"); e(f"s_add_u32 s{S_AB}, s{S_AB}, 0x700000")
            self.pace = self.opt("ppre", 0)
            if old or self.opt("noq", 0):
                while self.issue_next(): pass
            else:
                young_first()
                self.young_prefetch(not isO)
            if isO and not self.opt("gatefirst", 1):
                self.wait("g"); self.gate()
            self.wait_q()
            self.stamp(5)
            self.pace = self.opt("pmain", 0)
            self.tail_fn = tail
            self.tiles(old, pre_tail)

    def roleQ(self):
        e = self.e
        e("v_and_b32 v26, 1, v24"); e(f"v_lshlrev_b32 v{V_X}, 11, v26"); e(f"v_lshl_add_u32 v{V_X}, v25, 5, v{V_X}")
        e("v_bfe_u32 v26, v24, 2, 1"); e(f"v_lshl_add_u32 v{V_X}, v26, 4, v{V_X}")
        e("v_lshrrev_b32 v26, 3, v0"); e(f"v_lshlrev_b32 v{V_WA}, 16, v26"); e("v_and_b32 v26, 7, v0"); e(f"v_lshl_add_u32 v{V_WA}, v26, 4, v{V_WA}")
        if self.opt("cgmap", 0):
            e(f"s_and_b32 s99, s2, 7"); e("s_lshl_b32 s99, s99, 3"); e(f"s_and_b32 s{S_T1}, s{S_GRP}, 3"); e(f"s_lshl_b32 s{S_T1}, s{S_T1}, 1"); e(f"s_add_u32 s99, s99, s{S_T1}")
            e(f"s_bfe_u32 s{S_T1}, s2, 0x10003"); e(f"s_add_u32 s99, s99, s{S_T1}")
        else:
            e(f"s_and_b32 s99, s{S_J}, 63")
        e(f"s_lshl_b32 s{S_W}, s99, 7"); e(f"s_lshl_b32 s{S_T1}, s3, 20"); e(f"s_add_u32 s{S_W}, s{S_W}, s{S_T1}")
        e(f"s_lshl_b32 s{S_T1}, s3, 8")
        e("s_waitcnt lgkmcnt(0)")
        e("s_cmp_ge_u32 s2, 128")
        e(f"s_cselect_b32 s{W1}, s64, s54"); e(f"s_cselect_b32 s{W1+1}, s65, s55"); e(f"s_mov_b32 s{W1+2}, 0x800000"); e(f"s_mov_b32 s{W1+3}, 0x20000")
        self.srd(XS, 48, 4096); self.srd(DBG, 72, 256)

        self.pace = self.opt("pw", 0)
        self.vm(f"buffer_load_dwordx4 v[{QR}:{QR+3}], v{V_X}, s[{XS}:{XS+3}], s{S_T1} offen", "x")
        self.vm(f"buffer_load_dwordx4 v[{QR+4}:{QR+7}], v{V_X}, s[{XS}:{XS+3}], s{S_T1} offen offset:128", "x")
        for u in range(2):
            for ee in range(8):
                r = RING[u] + ee * 4
                e(f"s_add_u32 s{S_T0}, s{S_W}, {(u*64+ee)*8192}")
                self.vm(f"buffer_load_dwordx4 v[{r}:{r+3}], v{V_WA}, s[{W1}:{W1+3}], s{S_T0} offen nt", u)
        self.vm(f"buffer_load_dword v{V_U1}, off, s[{DBG}:{DBG+3}], 0 sc1", "nn", paced=False)
        self.srd(KB, 60, 0x4000000); self.srd(VB, 62, 0x4000000); self.srd(WS, 74, WS_SIZE); self.srd(OUT, 70, 4096)
        self.common_setup()
        self.pub_addrs(True)
        self.srd(KA, 50, 0x4000000); self.srd(VA, 52, 0x4000000)
        if self.stamps: e("s_mov_b64 s[48:49], s[96:97]")
        e("s_barrier")
        self.wait(0)
        self.perm_mfma8(RING[0], QR, True, False)
        e("v_bfe_u32 v26, v0, 3, 1"); e("v_lshlrev_b32 v27, 9, v26"); e("v_and_b32 v26, 7, v0"); e("v_lshl_add_u32 v27, v26, 6, v27")
        e(f"s_lshl_b32 s{S_T0}, s3, 10"); e(f"s_add_u32 s{S_T0}, s{S_T0}, {CO + CO_BR}"); e(f"v_add_u32 v27, s{S_T0}, v27")
        e("v_mov_b32 v28, 1")
        self.wait(1)
        self.perm_mfma8(RING[1], QR + 4, False, False)
        e("s_mov_b32 exec_lo, 0xff0000ff"); e("s_mov_b32 exec_hi, 0")
        e("s_nop 1")
        for dd in range(8):
            if dd == 6: e("s_nop 0")
            e(f"ds_write_b64 v27, v[{OACC+dd*4}:{OACC+dd*4+1}] offset:{dd*8}")
        e("s_mov_b64 exec, 1")
        e(f"ds_add_u32 v{V_FLG}, v28 offset:{F_CNT - FLG}")
        e("s_mov_b64 exec, -1")
        def w0_first():
            e("s_setprio 3")
            e("v_lshrrev_b32 v26, 5, v0"); e("v_lshlrev_b32 v27, 12, v26"); e("v_lshlrev_b32 v28, 14, v26")
            e("v_and_b32 v26, 31, v0"); e("v_lshl_add_u32 v27, v26, 4, v27"); e(f"v_add_u32 v27, {CO + CO_BR}, v27"); e("v_lshl_add_u32 v28, v26, 3, v28")
            e(f"s_lshr_b32 s{S_T0}, s{S_J}, 6"); e(f"s_lshl_b32 s{S_T0}, s{S_T0}, 15"); e(f"s_lshl_b32 s{S_T1}, s99, 8")
            e(f"s_add_u32 s{S_T2}, s{S_T0}, s{S_T1}")
            if QG: e(f"s_add_u32 s{S_T2}, s{S_T2}, {QG}")
            self.wait("nn")
            self.get_nonce()
            self.lds_spin(F_CNT, 8)
            for p in range(8):
                e(f"ds_read_b128 v[{OACC+p*4}:{OACC+p*4+3}], v27 offset:{p*512}")
            e("s_waitcnt lgkmcnt(0)")
            for p in (4, 2, 1):
                for q in range(p):
                    for i in (0, 2):
                        e(f"v_pk_add_f32 v[{OACC+q*4+i}:{OACC+q*4+i+1}], v[{OACC+q*4+i}:{OACC+q*4+i+1}], v[{OACC+(q+p)*4+i}:{OACC+(q+p)*4+i+1}]")
            e(f"v_mov_b32 v{OACC+5}, s{S_NONCE}")
            e("s_nop 0")
            e(f"v_permlane32_swap_b32 v{OACC}, v{OACC+1}"); e(f"v_permlane32_swap_b32 v{OACC+2}, v{OACC+3}")
            e(f"v_add_f32 v{OACC}, v{OACC}, v{OACC+1}"); e(f"v_add_f32 v{OACC+2}, v{OACC+2}, v{OACC+3}")
            e(f"v_cvt_pk_bf16_f32 v{OACC+4}, v{OACC}, v{OACC+2}")
            e(f"s_and_b32 s{S_T0}, s3, 3"); e(f"s_lshl_b32 s{S_T0}, s{S_T0}, 4"); e(f"s_lshl_b64 exec, 0xffff, s{S_T0}")
            self.vm(f"buffer_store_dwordx2 v[{OACC+4}:{OACC+5}], v28, s[{WS}:{WS+3}], s{S_T2} offen sc1", "st", paced=False)
            e("s_mov_b64 exec, -1")
            e("s_setprio 0")
            self.stamp(3)
        def pre_tail():
            e(f"s_lshr_b32 s72, s{S_J}, 1"); e("s_lshl_b32 s72, s72, 14"); e(f"s_lshl_b32 s{S_T2}, s3, 11"); e(f"s_add_u32 s72, s72, s{S_T2}")
            e(f"s_and_b32 s{S_T2}, s{S_J}, 1"); e(f"s_lshl_b32 s{S_T2}, s{S_T2}, 6"); e(f"s_add_u32 s72, s72, s{S_T2}"); e(f"s_add_u32 s72, s72, {hex(PF)}")
            e("v_lshrrev_b32 v26, 2, v0"); e(f"v_lshlrev_b32 v{HA[4]}, 7, v26"); e("v_and_b32 v26, 3, v0"); e(f"v_lshl_add_u32 v{HA[4]}, v26, 4, v{HA[4]}")
            e(f"v_lshlrev_b32 v{HA[2]}, 4, v26"); e("v_lshrrev_b32 v27, 4, v0"); e(f"v_lshl_add_u32 v{HA[2]}, v27, 2, v{HA[2]}")
            e(f"s_lshl_b32 s73, s3, 6"); e(f"s_add_u32 s73, s73, {FR}"); e(f"v_add_u32 v{HA[2]}, s73, v{HA[2]}")
            e("v_and_b32 v26, 7, v0"); e(f"v_lshlrev_b32 v{HA[1]}, 3, v26")
            e("v_lshrrev_b32 v27, 1, v26"); e(f"v_lshlrev_b32 v{HA[3]}, 4, v27"); e("v_and_b32 v27, 1, v0"); e(f"v_lshl_add_u32 v{HA[3]}, v27, 2, v{HA[3]}")
            e(f"s_lshr_b32 s73, s{S_J}, 3"); e("s_lshl_b32 s73, s73, 8")
            e(f"s_and_b32 s{S_T2}, s{S_J}, 3"); e(f"s_lshl_b32 s{S_T2}, s{S_T2}, 6"); e(f"s_add_u32 s73, s73, s{S_T2}")
            e(f"s_bfe_u32 s{S_T2}, s{S_J}, 0x10002"); e(f"s_lshl_b32 s{S_T2}, s{S_T2}, 3"); e(f"s_add_u32 s73, s73, s{S_T2}")
        def tail():
            done = self.newlab('qdone')
            if self.opt("notail", 0):
                self.stamp(9); self.stamp(10); self.stamp_flush(); e("s_endpgm"); return
            R = self.free[0]
            e(f"s_mov_b32 s{S_SELLO}, 0x0c0c0400"); e(f"s_mov_b32 s{S_SELHI}, 0x05040100")
            ld = [f"buffer_load_dwordx4 v[{R}:{R+3}], v{HA[4]}, s[{WS}:{WS+3}], s72 offen sc1"]
            gl, gd, gs = self.newlab("gl"), self.newlab("gd"), self.newlab("gs")
            e(f"s_and_b32 s{S_T0}, s{S_J}, 15"); e(f"s_lshl_b32 s{S_T0}, s{S_T0}, 2"); e(f"s_lshl_b64 s[12:13], 0xf, s{S_T0}")
            e(f"s_mov_b32 s{S_CNT}, 0"); e(f"v_mov_b32 v{T[1]}, 1")
            self.label(gl)
            e("s_mov_b64 exec, s[12:13]")
            e(ld[0])
            e(f"ds_read_b32 v{T[5]}, v{V_FLG} offset:{F_CNT - FLG}")
            e("s_waitcnt vmcnt(0) lgkmcnt(0)")
            e(f"v_perm_b32 v{T[6]}, v{R+1}, v{R}, s{S_SELLO}"); e(f"v_perm_b32 v{T[7]}, v{R+3}, v{R+2}, s{S_SELLO}")
            e(f"v_perm_b32 v{T[6]}, v{T[7]}, v{T[6]}, s{S_SELHI}")
            e(f"v_readfirstlane_b32 s{S_T2}, v{T[5]}"); e(f"v_readfirstlane_b32 s{S_T1}, v{T[6]}")
            e("s_mov_b64 exec, -1")
            e(f"s_add_u32 s{S_CNT}, s{S_CNT}, 1")
            e(f"s_cmp_lg_u32 s{S_T2}, 8"); e(f"s_cbranch_scc1 {gd}")
            e(f"s_cmp_eq_u32 s{S_T1}, s{S_NONCE}"); e(f"s_cbranch_scc1 {gs}")
            e(f"s_cmp_gt_u32 s{S_CNT}, {SPIN_MAX}"); e(f"s_cbranch_scc1 {gd}")
            e(f"s_sleep {self.opt('presleep', 4)}")
            e(f"s_branch {gl}")
            self.label(gs)
            e("s_mov_b64 exec, 1"); e(f"ds_add_u32 v{V_FLG}, v{T[1]} offset:{F_CNT - FLG}"); e("s_mov_b64 exec, -1")
            self.label(gd)
            self.stamp(1)
            self.poll_missing(ld, [["emb", R]], self.opt("pfsleep", 0))
            self.stamp(9)
            for i in range(4): e(f"v_and_b32 v{R+i}, 0xffffff00, v{R+i}")
            dp = lambda r, ror: e(f"v_add_f32_dpp v{r}, v{r}, v{r} row_ror:{ror} row_mask:0xf bank_mask:0xf")
            for ror in (4, 8):
                for i in range(4): dp(R + i, ror)
            e("s_nop 0")
            e(f"v_permlane16_swap_b32 v{R}, v{R+1}"); e(f"v_permlane16_swap_b32 v{R+2}, v{R+3}")
            e(f"v_add_f32 v{R}, v{R}, v{R+1}"); e(f"v_add_f32 v{R+2}, v{R+2}, v{R+3}")
            e("s_nop 1")
            e(f"v_permlane32_swap_b32 v{R}, v{R+2}")
            e(f"v_add_f32 v{R}, v{R}, v{R+2}")
            e("s_mov_b32 exec_lo, 0x000f000f"); e("s_mov_b32 exec_hi, 0x000f000f")
            e(f"ds_write_b32 v{HA[2]}, v{R}")
            e("s_mov_b64 exec, -1")
            e("s_waitcnt lgkmcnt(0)")
            e("s_barrier")
            e("s_cmp_lg_u32 s3, 0"); e(f"s_cbranch_scc1 {done}")
            R = OACC + 8
            for w in range(8):
                e(f"ds_read_b64 v[{R+2*w}:{R+2*w+1}], v{HA[1]} offset:{FR + w*64}")
            e("s_waitcnt lgkmcnt(0)")
            for p in (4, 2, 1):
                for q in range(p):
                    e(f"v_pk_add_f32 v[{R+q*2}:{R+q*2+1}], v[{R+q*2}:{R+q*2+1}], v[{R+(q+p)*2}:{R+(q+p)*2+1}]")
            e(f"v_cvt_pk_bf16_f32 v{R}, v{R}, v{R+1}")
            e("s_mov_b64 exec, 0xff")
            e(f"buffer_store_dword v{R}, v{HA[3]}, s[{OUT}:{OUT+3}], s73 offen")
            e("s_mov_b64 exec, -1")
            self.label(done)
            self.stamp(10)
            self.stamp_flush()
            e("s_endpgm")

        self.free = [RING[2], RING[3], RING[4], RING[0], RING[1]]; self.slot0 = {}
        self.body(False, tail, pre_tail, w0_first)

    def gate(self):
        e = self.e
        acc, a, b, c, d = T[0], T[1], T[2], T[3], T[4]
        e(f"v_mov_b32 v{acc}, 0")
        e(f"s_mov_b32 s{S_T0}, 0xffff0000")
        for i in range(8):
            x, g = QR + i, QR + 8 + i
            e(f"v_lshlrev_b32 v{a}, 16, v{x}"); e(f"v_lshlrev_b32 v{b}, 16, v{g}")
            e(f"v_and_b32 v{c}, s{S_T0}, v{x}"); e(f"v_and_b32 v{d}, s{S_T0}, v{g}")
            e(f"v_mul_f32 v{a}, v{a}, v{b}"); e(f"v_mul_f32 v{c}, v{c}, v{d}")
            e(f"v_cvt_pk_bf16_f32 v{a}, v{a}, v{c}")
            e(f"v_lshlrev_b32 v{b}, 16, v{a}"); e(f"v_and_b32 v{c}, s{S_T0}, v{a}")
            e(f"v_add_f32 v{acc}, v{acc}, v{b}"); e(f"v_add_f32 v{acc}, v{acc}, v{c}")
        self.dpp("v_add_f32", acc, (1, 2, 4, 8))
        self.xlane("v_add_f32", acc, a, (16, 32))
        e(f"v_cvt_pk_bf16_f32 v{acc}, v{acc}, v{acc}"); e(f"v_lshlrev_b32 v{acc}, 16, v{acc}")
        e(f"v_mul_f32 v{acc}, {hex(f2u(-math.log2(math.e)))}, v{acc}")
        e(f"v_exp_f32 v{acc}, v{acc}"); e("s_nop 0")
        e(f"v_add_f32 v{acc}, 1.0, v{acc}")
        e(f"v_rcp_f32 v{acc}, v{acc}"); e("s_nop 0")
        e(f"v_cvt_pk_bf16_f32 v{acc}, v{acc}, v{acc}"); e(f"v_lshlrev_b32 v{V_GA}, 16, v{acc}")
        e(f"v_sub_f32 v{acc}, 1.0, v{V_GA}")
        e(f"v_cvt_pk_bf16_f32 v{acc}, v{acc}, v{acc}"); e(f"v_lshlrev_b32 v{V_GB}, 16, v{acc}")

    def roleO(self):
        e = self.e
        e(f"s_and_b32 s{S_T1}, s3, 1"); e(f"s_lshl_b32 s{S_T1}, s{S_T1}, 11")
        e(f"v_lshlrev_b32 v{V_X}, 5, v0")
        e(f"v_lshlrev_b32 v{V_WA}, 12, v25"); e(f"v_lshl_add_u32 v{V_WA}, v24, 4, v{V_WA}")
        e(f"s_lshl_b32 s{S_W}, s{S_J}, 16"); e(f"s_lshl_b32 s{S_T2}, s3, 8"); e(f"s_add_u32 s{S_W}, s{S_W}, s{S_T2}")
        e("s_waitcnt lgkmcnt(0)")
        self.srd(XS, 48, 4096); self.srd(GT, 68, 2048); self.srd(KA, 50, 0x4000000); self.srd(VA, 52, 0x4000000)
        self.pace = 0
        self.vm(f"buffer_load_dwordx4 v[{QR}:{QR+3}], v{V_X}, s[{XS}:{XS+3}], s{S_T1} offen", "g")
        self.vm(f"buffer_load_dwordx4 v[{QR+4}:{QR+7}], v{V_X}, s[{XS}:{XS+3}], s{S_T1} offen offset:16", "g")
        self.vm(f"buffer_load_dwordx4 v[{QR+8}:{QR+11}], v{V_X}, s[{GT}:{GT+3}], 0 offen", "g")
        self.vm(f"buffer_load_dwordx4 v[{QR+12}:{QR+15}], v{V_X}, s[{GT}:{GT+3}], 0 offen offset:16", "g")
        self.srd(KB, 60, 0x4000000); self.srd(VB, 62, 0x4000000); self.srd(WS, 74, WS_SIZE); self.srd(DBG, 72, 256)
        self.srd(W1, 56, 0x800000); self.srd(W2, 66, 0x800000)
        if self.stamps: e("s_mov_b64 s[48:49], s[96:97]")
        self.common_setup()
        self.pub_addrs(True)
        e("s_xor_b32 s98, s2, 16"); e("s_or_b32 s98, s98, s3"); e("s_cmp_lg_u32 s98, 0"); e("s_cbranch_scc1 L_o_non")
        if self.opt("dyn", 1):
            e("v_lshlrev_b32 v26, 8, v0"); e("v_mov_b32 v27, 0"); e(f"s_mov_b32 s98, {hex(CT)}")
            e("s_mov_b32 exec_hi, 0")
            e(f"buffer_store_dword v27, v26, s[{WS}:{WS+3}], s98 offen sc1")
            e("s_waitcnt vmcnt(0)")
        e("s_or_b32 s98, s96, 1"); e("v_mov_b32 v26, s98")
        e("s_mov_b64 exec, 1")
        e(f"buffer_store_dword v26, off, s[{DBG}:{DBG+3}], 0 sc1")
        e("s_mov_b64 exec, -1")
        self.label("L_o_non")
        e("s_barrier")
        if self.opt("gatefirst", 1):
            self.wait("g"); self.gate()
        def w0_first(): pass
        S_HO, S_HM, S_G1, S_PH = 72, 73, 74, S_W
        H = QR
        def pre_tail():
            br = 1 if self.old else 0
            e(f"s_and_b32 s{S_T0}, s3, 1"); e(f"s_lshl_b32 s{S_T0}, s{S_T0}, 2"); e(f"s_lshr_b32 s{S_T1}, s{S_J}, 5"); e(f"s_add_u32 s{S_T0}, s{S_T0}, s{S_T1}")
            e(f"s_lshl_b32 s{S_HO}, s{S_T0}, 17")
            e(f"s_and_b32 s{S_T1}, s{S_J}, 31"); e(f"s_lshl_b32 s{S_T1}, s{S_T1}, 12"); e(f"s_add_u32 s{S_HO}, s{S_HO}, s{S_T1}")
            e(f"s_add_u32 s{S_HO}, s{S_HO}, {hex(PO + br*0x100000)}")
            e(f"s_and_b32 s{S_T0}, s3, 1"); e(f"s_lshl_b32 s{S_T0}, s{S_T0}, 6")
            e("v_and_b32 v26, 7, v0"); e(f"v_lshlrev_b32 v{HA[1]}, 3, v26"); e("v_lshrrev_b32 v26, 4, v0"); e(f"v_lshl_add_u32 v{HA[1]}, v26, 1, v{HA[1]}"); e(f"v_add_u32 v{HA[1]}, s{S_T0}, v{HA[1]}")
            e("v_bfe_u32 v26, v0, 2, 1"); e(f"v_lshlrev_b32 v{HA[2]}, 6, v26"); e("v_lshrrev_b32 v26, 4, v0"); e(f"v_lshl_add_u32 v{HA[2]}, v26, 4, v{HA[2]}")
            e("v_bfe_u32 v26, v0, 4, 1"); e(f"v_lshlrev_b32 v{HA[3]}, 19, v26"); e("v_bfe_u32 v26, v0, 3, 1"); e(f"v_lshl_add_u32 v{HA[3]}, v26, 14, v{HA[3]}")
            e("v_and_b32 v26, 7, v0"); e(f"v_lshl_add_u32 v{HA[3]}, v26, 4, v{HA[3]}")
            e("v_lshrrev_b32 v26, 5, v0"); e(f"v_lshl_add_u32 v{HA[3]}, v26, 15, v{HA[3]}")
            e(f"s_lshl_b32 s98, s3, 16"); e(f"s_lshl_b32 s{S_T1}, s{S_J}, 7"); e(f"s_add_u32 s98, s98, s{S_T1}"); e(f"s_add_u32 s98, s98, {hex(PF)}")
        def tail():
            if self.opt("notail", 0):
                e("s_waitcnt vmcnt(0)"); self.stamp(3); self.stamp(9); self.stamp(10); self.stamp_flush(); e("s_endpgm"); return
            old = self.old
            F0, F1, F2 = self.free[:3]
            PK = F2 + 16
            WAs, WBs = self.slot["WA"], self.slot["WB"]
            OPR = QR + 8
            D = F2
            self.mk = [4, 6, 8, 10]
            mkO = [f"buffer_load_dwordx4 v[{D+4*i}:{D+4*i+3}], v{V_L0}, s[{WS}:{WS+3}], s{S_HO} offen offset:{1024*i} sc1" for i in range(4)]
            self.stamp(9)
            ng = self.newlab("ng")
            e("s_bitcmp1_b32 s3, 1"); e(f"s_cbranch_scc1 {ng}")
            for s in mkO: e(s)
            self.label(ng)
            e(f"v_mov_b32 v{PK+4}, s{S_NONCE}")
            e("s_mov_b32 s12, 0"); e("s_mov_b32 s13, -1")
            for i in range(4): e(f"s_mov_b32 s{18+i}, {hex(0x07060500 + i)}")
            self.wait("WA")
            for dd in range(8): self.perms(F0 + dd * 4, WAs, dd)
            self.wait("WB")
            for dd in range(8): self.perms(F1 + dd * 4, WBs, dd)
            self.stamp(3)
            dp = lambda op, r, ror: e(f"{op}_dpp v{r}, v{r}, v{r} row_ror:{ror} row_mask:0xf bank_mask:0xf")
            gv = V_GB if old else V_GA
            def gather_reduce(off, hook=None):
                self.stamp(4)
                self.poll_missing(mkO, [[D + 4 * i + 3] for i in range(4)], self.opt("posleep", 2), first=False, hook=hook, watch=True)
                self.stamp(9)
                if self.stamps: e(f"s_mov_b32 s70, s{S_CNT}"); e("s_mov_b32 s71, 0")
                M, u, mc, Ls = T[0], T[1], T[2], T[3]
                X = WSET[0]; U = WSET[1]
                e(f"s_mov_b32 s{S_T0}, 0xffff0000")
                for i in range(4): e(f"v_mov_b32_dpp v{D+4*i+3}, v{D+4*i+2} quad_perm:[0,0,2,2] row_mask:0xf bank_mask:0xf")
                for i in range(4): e(f"v_mov_b32_dpp v{D+4*i+2}, v{D+4*i+2} quad_perm:[1,1,3,3] row_mask:0xf bank_mask:0xf")
                e(f"v_max3_f32 v{M}, v{D+3}, v{D+7}, v{D+11}"); e(f"v_max_f32 v{M}, v{M}, v{D+15}")
                UP = PK
                up = [QR, QR + 4, SR, SR + 4]
                def unp(i):
                    r = up[i]
                    e(f"v_lshlrev_b32 v{r}, 16, v{D+4*i}"); e(f"v_and_b32 v{r+1}, s{S_T0}, v{D+4*i}")
                    e(f"v_lshlrev_b32 v{r+2}, 16, v{D+4*i+1}"); e(f"v_and_b32 v{r+3}, s{S_T0}, v{D+4*i+1}")
                unp(0)
                dp("v_max_f32", M, 8)
                e(f"v_lshlrev_b32 v{up[1]}, 16, v{D+4}"); e(f"v_mov_b32 v{u}, v{M}"); e(f"v_and_b32 v{up[1]+1}, s{S_T0}, v{D+4}"); e(f"v_lshlrev_b32 v{up[1]+2}, 16, v{D+5}")
                e(f"v_permlane16_swap_b32 v{M}, v{u}"); e(f"v_max_f32 v{M}, v{M}, v{u}")
                e(f"v_mov_b32 v{u}, v{M}"); e(f"v_and_b32 v{up[1]+3}, s{S_T0}, v{D+5}"); e(f"v_lshlrev_b32 v{up[2]}, 16, v{D+8}")
                e(f"v_permlane32_swap_b32 v{M}, v{u}"); e(f"v_max_f32 v{M}, v{M}, v{u}")
                e(f"v_mul_f32 v{mc}, s{S_C}, v{M}")
                for i in range(4): e(f"v_fma_f32 v{D+4*i+3}, v{D+4*i+3}, s{S_C}, -v{mc}")
                for i in range(4): e(f"v_exp_f32 v{D+4*i}, v{D+4*i+3}") if i < 2 else e(f"v_exp_f32 v{D+4*i+3}, v{D+4*i+3}")
                e(f"v_and_b32 v{up[2]+1}, s{S_T0}, v{D+8}"); e(f"v_lshlrev_b32 v{up[2]+2}, 16, v{D+9}"); e(f"v_and_b32 v{up[2]+3}, s{S_T0}, v{D+9}")
                unp(3)
                e(f"v_mov_b32 v{D+8}, v{D+11}"); e(f"v_mov_b32 v{D+12}, v{D+15}")
                for i in range(4):
                    ee = D + 4 * i
                    for h in range(2):
                        if i == 0: e(f"v_pk_mul_f32 v[{X+2*h}:{X+2*h+1}], v[{up[i]+2*h}:{up[i]+2*h+1}], v[{ee}:{ee+1}] op_sel_hi:[1,0]")
                        else: e(f"v_pk_fma_f32 v[{X+2*h}:{X+2*h+1}], v[{up[i]+2*h}:{up[i]+2*h+1}], v[{ee}:{ee+1}], v[{X+2*h}:{X+2*h+1}] op_sel_hi:[1,0,1]")
                    e(f"{'v_mul_f32' if i == 0 else 'v_fmac_f32'} v{Ls}, v{D+4*i+2}, v{ee}")
                for r in (X, X + 1, X + 2, X + 3, Ls): dp("v_add_f32", r, 8)
                e(f"v_mov_b32 v{u}, v{Ls}")
                e(f"v_permlane16_swap_b32 v{X}, v{X+1}"); e(f"v_permlane16_swap_b32 v{X+2}, v{X+3}"); e(f"v_permlane16_swap_b32 v{Ls}, v{u}")
                e(f"v_add_f32 v{Ls}, v{Ls}, v{u}"); e(f"v_add_f32 v{X}, v{X}, v{X+1}"); e(f"v_add_f32 v{X+2}, v{X+2}, v{X+3}")
                e(f"v_mov_b32 v{u}, v{Ls}"); e("s_nop 0")
                e(f"v_permlane32_swap_b32 v{X}, v{X+2}"); e(f"v_permlane32_swap_b32 v{Ls}, v{u}")
                e(f"v_add_f32 v{Ls}, v{Ls}, v{u}"); e(f"v_add_f32 v{X}, v{X}, v{X+2}")
                e(f"v_rcp_f32 v{Ls}, v{Ls}")
                e(f"v_mul_f32 v{X}, v{X}, v{gv}")
                e(f"v_mul_f32 v{X}, v{X}, v{Ls}")
                e(f"v_cvt_pk_bf16_f32 v{X}, v{X}, v{X}")
                e("s_mov_b32 exec_lo, 0x00ff00ff"); e("s_mov_b32 exec_hi, 0x00ff00ff")
                e(f"ds_write_b16 v{HA[1]}, v{X} offset:{off}")
                e("s_mov_b64 exec, -1")
            if self.opt("bs1", 0):
                if not old:
                    gather_reduce(OB)
                    e("s_waitcnt lgkmcnt(0)")
                e("s_barrier")
                e(f"ds_read_b128 v[{OPR}:{OPR+3}], v{HA[2]} offset:{OB}")
                e("s_waitcnt lgkmcnt(0)")
                for dd in range(8): self.mfma(OACC + dd * 4, OPR, F0 + dd * 4, None)
                if old:
                    gather_reduce(OB + 128)
                    e("s_waitcnt lgkmcnt(0)")
                e("s_barrier")
                self.stamp(1)
                e(f"ds_read_b128 v[{OPR}:{OPR+3}], v{HA[2]} offset:{OB+128}")
                e("s_waitcnt lgkmcnt(0)")
                for dd in range(8): self.mfma(OACC + dd * 4, OPR, F1 + dd * 4, OACC + dd * 4)
            else:
                S_AD = 14
                def a_mfma():
                    e(f"ds_read_b128 v[{OPR}:{OPR+3}], v{HA[2]} offset:{OB}")
                    e("s_waitcnt lgkmcnt(0)")
                    for dd in range(8): self.mfma(OACC + dd * 4, OPR, F0 + dd * 4, None)
                if old:
                    e(f"s_mov_b32 s{S_AD}, 0")
                    def hook():
                        sk = self.newlab("ah")
                        e(f"s_cmp_lg_u32 s{S_AD}, 0"); e(f"s_cbranch_scc1 {sk}")
                        e(f"ds_read_b32 v{T[7]}, v{V_FLG} offset:{F_CNT - FLG}")
                        e("s_waitcnt lgkmcnt(0)")
                        e(f"v_readfirstlane_b32 s{S_T3}, v{T[7]}")
                        e("s_nop 0")
                        e(f"s_cmp_lg_u32 s{S_T3}, 2"); e(f"s_cbranch_scc1 {sk}")
                        a_mfma()
                        e(f"s_mov_b32 s{S_AD}, 1")
                        self.label(sk)
                    ng2 = self.newlab("ng2")
                    e("s_bitcmp1_b32 s3, 1"); e(f"s_cbranch_scc1 {ng2}")
                    gather_reduce(OB + 128, hook)
                    self.label(ng2)
                    sk = self.newlab("ad")
                    e(f"s_cmp_lg_u32 s{S_AD}, 0"); e(f"s_cbranch_scc1 {sk}")
                    self.lds_spin(F_CNT, 2)
                    a_mfma()
                    self.label(sk)
                    e("s_waitcnt lgkmcnt(0)")
                else:
                    ng2 = self.newlab("ng2")
                    e("s_bitcmp1_b32 s3, 1"); e(f"s_cbranch_scc1 {ng2}")
                    gather_reduce(OB)
                    e(f"v_mov_b32 v{T[1]}, 1")
                    e("s_mov_b64 exec, 1"); e(f"ds_add_u32 v{V_FLG}, v{T[1]} offset:{F_CNT - FLG}"); e("s_mov_b64 exec, -1")
                    self.label(ng2)
                    self.lds_spin(F_CNT, 2)
                    a_mfma()
                e("s_barrier")
                self.stamp(1)
                e(f"ds_read_b128 v[{OPR+4}:{OPR+7}], v{HA[2]} offset:{OB+128}")
                e("s_waitcnt lgkmcnt(0)")
                for dd in (0, 4, 1, 5, 2, 6, 3, 7): self.mfma(OACC + dd * 4, OPR + 4, F1 + dd * 4, OACC + dd * 4)
                e("s_nop 4")
            for i in range(4):
                e(f"v_cndmask_b32 v{PK+i}, v{OACC+4*i}, v{OACC+16+4*i}, s[12:13]")
            for i in range(4):
                e(f"v_perm_b32 v{PK+i}, v{PK+i}, v{PK+4}, s{18+i}")
            e(f"buffer_store_dwordx4 v[{PK}:{PK+3}], v{HA[3]}, s[{WS}:{WS+3}], s98 offen sc1")
            self.stamp(10)
            self.stamp_flush()

            e("s_endpgm")
        self.free = list(RING); self.slot0 = {}
        self.body(True, tail, pre_tail, w0_first)

if __name__ == "__main__":
    out = sys.argv[1]
    st = "--stamps" in sys.argv
    opts = dict(a[2:].split("=") for a in sys.argv[2:] if a.startswith("--") and "=" in a)
    open(out, "w").write(G(stamps=st, opts=opts).build())
```

```python
import sys, struct, math
KNAME = "gated_mix__sliding_block_cached__gqa_block_cached__decode_kernel"
def f2u(x): return struct.unpack("<I", struct.pack("<f", x))[0]

QG, PO, PF, STAMP = 0, 0x100000, 0x600000, 0x800000
PO_BR = 0x100000
CT = 0x50000
WS_SIZE = 0x1000000
CM, CL, OB, FR, FLG, QOP, CO = 0, 512, 1024, 1280, 1792, 2048, 6656
F_CNT, F_QC, F_NON, F_AC, F_OA, F_G, F_FR = [FLG + 4 * i for i in range(7)]
CO_BR, CO_W, CO_H = 33792, 4224, 528
LDS_SIZE = 74240
KB, VB, KA, VA, W1, W2, WS, XS, GT, OUT, DBG = 4, 8, 12, 16, 20, 24, 28, 32, 36, 40, 44
S_SELLO, S_SELHI, S_C, S_NONCE, S_GRP, S_IDX, S_SPLIT, S_BB, S_AB = 76, 77, 78, 79, 80, 81, 82, 83, 84
S_T0, S_T1, S_T2, S_T3, S_CNT, S_J, S_W = 85, 86, 87, 88, 89, 90, 91
S_POB, S_POA, S_POA2, S_CG = 92, 93, 94, 95
S_OK, S_QA, S_QB = 99, 100, 101
S_DX, S_DB, S_CA = 99, 100, 101
S_BIAS = {'X': 70, 'Y': 71, 'Z': 75, 'U': 97}
V_K0, V_K1, V_L0, V_L1 = 1, 2, 3, 4
V_COW, V_MLW, V_QR, V_COR, V_MLR, V_FLG, V_QW, V_X, V_WA, V_GA, V_GB = 5, 6, 7, 8, 9, 10, 11, 12, 13, 14, 15
V_PO = V_X
HA = [None, 1, 2, 4, 11]
WSET = [16, 20]
T = list(range(24, 32))
OACC, QR, SR, PR, V_M, V_LS, V_U0, V_U1 = 32, 64, 80, 88, 92, 93, 94, 95
RING = [96 + 32 * i for i in range(5)]
SPIN_MAX = 20000
NEGMAX = "0xff7fffff"

class G:
    def __init__(self, stamps=False, opts=None):
        self.L = []; self.stamps = stamps; self.lab = 0
        self.o = opts or {}
        self.q = []
    def opt(self, k, d): return int(self.o.get(k, d))
    def e(self, s): self.L.append("    " + s)
    def label(self, s): self.L.append(s + ":")
    def newlab(self, p):
        self.lab += 1; return f"L_{p}{self.lab}"
    def srd(self, d, b, n):
        self.e(f"s_mov_b32 s{d}, s{b}"); self.e(f"s_mov_b32 s{d+1}, s{b+1}")
        self.e(f"s_mov_b32 s{d+2}, {hex(n)}"); self.e(f"s_mov_b32 s{d+3}, 0x20000")
    def stamp(self, i):
        if self.stamps: self.e(f"s_memrealtime s[{48+2*i}:{49+2*i}]")
    def stamp_flush(self):
        if not self.stamps: return
        e = self.e
        e("s_waitcnt lgkmcnt(0)")
        e("s_lshl_b32 s92, s2, 3"); e("s_add_u32 s92, s92, s3"); e("s_lshl_b32 s92, s92, 7"); e(f"s_add_u32 s92, s92, {hex(STAMP)}")
        e("s_mov_b64 exec, 1")
        for i in range(12):
            e(f"v_mov_b32 v16, s{48+2*i}"); e(f"v_mov_b32 v17, s{49+2*i}")
            e(f"buffer_store_dwordx2 v[16:17], off, s[{WS}:{WS+3}], s92 offset:{i*8}")
            e("s_nop 0")
        e("s_mov_b64 exec, -1")
    def vm(self, s, tag):
        self.e(s); self.q.append(tag)
    def wait(self, tag, keep=0):
        idx = [i for i, t in enumerate(self.q) if t == tag]
        if not idx: return
        last = idx[len(idx) - 1 - keep]
        n = len(self.q) - 1 - last
        assert n <= 63
        self.e(f"s_waitcnt vmcnt({n})")
        self.q = self.q[last + 1:]
    def lds_inc(self, off):
        e = self.e
        e(f"v_mov_b32 v{T[1]}, 1")
        e("s_mov_b64 exec, 1"); e(f"ds_add_u32 v{V_FLG}, v{T[1]} offset:{off - FLG}"); e("s_mov_b64 exec, -1")
    def issue_next(self):
        if not self.seq or not self.free: return False
        if self.seq[0] == "HOLD": return False
        u = self.seq.pop(0); r = self.free.pop(0); self.slot[u] = r
        ld = lambda j, v, srd, so, off: self.vm(f"buffer_load_dwordx4 v[{r+j*4}:{r+j*4+3}], v{v}, s[{srd}:{srd+3}], s{so} offen offset:{off} nt", u)
        if u[0] == "W":
            srd = self.WOA if u == "WA" else W2
            for ee in range(8):
                off = ((ee & 3) * 8 + (ee >> 2)) * 2048
                self.e(f"s_add_u32 s{S_T0}, s{S_W}, {off & ~4095}")
                pw = self.opt("pwb", 0) if (u == "WB" or self.opt("whold", 1) == 2) else 0
                if pw: self.e(f"s_waitcnt vmcnt({pw - 1})")
                ld(ee, V_WA, srd, S_T0, off & 4095)
            return True
        n = 4 if u[1] in "Ha" else 8
        if u[1] in "Aa": srd, so = (KA if u[0] == "K" else VA), S_AB
        elif u[1] in "XYZU": srd, so = (KB if u[0] == "K" else VB), S_DX
        else:
            srd, so = (KB if u[0] == "K" else VB), S_T0
            self.e(f"s_add_u32 s{S_T0}, s{S_BB}, {hex(int(u[1]) * 0x200000)}")
        for j in range(n):
            dy = u[1] in "XYZU"
            if u[0] == "K": ld(j, (V_GA if dy else V_K1) if j >= 4 else V_K0, srd, so, (j & 3) * 64)
            else: ld(j, (V_GB if dy else V_L1) if j >= 4 else V_L0, srd, so, (j & 3) * 1024)
        return True
    def release(self, u): self.free.append(self.slot[u])
    def perm1(self, dst, src, dd, p):
        sel = S_SELHI if dd & 1 else S_SELLO
        self.e(f"v_perm_b32 v{dst+p}, v{src+(2*p+1)*4+(dd>>1)}, v{src+(2*p)*4+(dd>>1)}, s{sel}")
    def perms(self, dst, src, dd):
        for p in range(4): self.perm1(dst, src, dd, p)
    def mfma(self, d, a, b, c):
        cs = "0" if c is None else f"v[{c}:{c+3}]"
        self.e(f"v_mfma_f32_16x16x32_bf16 v[{d}:{d+3}], v[{a}:{a+3}], v[{b}:{b+3}], {cs}")
    def perm_mfma8(self, src, other, first, w_is_a, acc=OACC):
        def mm(dd):
            w = WSET[dd & 1]; d = acc + dd * 4
            if w_is_a: self.mfma(d, w, other, None if first else d)
            else: self.mfma(d, other, w, None if first else d)
        self.perms(WSET[0], src, 0)
        for dd in range(1, 8):
            self.perms(WSET[dd & 1], src, dd)
            mm(dd - 1)
        self.e("s_nop 0")
        mm(7)
    def pv_last(self, tag, src, dst):
        self.wait(tag, keep=2)
        for p in range(3):
            for dd in range(8): self.perm1(dst + dd * 4, src, dd, p)
        self.wait(tag)
        self.stamp(6)
        for dd in range(8):
            self.perm1(dst + dd * 4, src, dd, 3)
            if dd >= 2: self.mfma(OACC + (dd-2) * 4, dst + (dd-2) * 4, PR, OACC + (dd-2) * 4)
        self.e("s_nop 0")
        for dd in (6, 7): self.mfma(OACC + dd * 4, dst + dd * 4, PR, OACC + dd * 4)
    def qk(self, r, half=False, bias=None):
        if bias is not None:
            for i in range(4): self.e(f"v_mov_b32 v{SR+4+i}, s{bias}")
            self.e("s_nop 0")
        for jj in range(4):
            self.mfma(SR, r + jj * 4, QR + jj * 4, None if jj == 0 else SR)
            if not half: self.mfma(SR + 4, r + 16 + jj * 4, QR + jj * 4, None if (jj == 0 and bias is None) else SR + 4)
        if half:
            for i in range(4): self.e(f"v_mov_b32 v{SR+4+i}, {NEGMAX}")
    def xlane(self, op, t, u, kinds):
        for k in kinds:
            self.e(f"v_mov_b32 v{u}, v{t}"); self.e("s_nop 1")
            self.e(f"v_permlane{k}_swap_b32 v{t}, v{u}")
            self.e(f"{op} v{t}, v{t}, v{u}")
    def dp(self, op, r, ror): self.e(f"{op}_dpp v{r}, v{r}, v{r} row_ror:{ror} row_mask:0xf bank_mask:0xf")
    def dpp(self, op, t, rors):
        for r in rors:
            self.e("s_nop 1"); self.dp(op, t, r)
    def tilemax(self, first):
        e = self.e; t, u = T[0], T[1]; S = SR
        e(f"v_max3_f32 v{t}, v{S}, v{S+1}, v{S+2}"); e(f"v_max3_f32 v{t}, v{t}, v{S+3}, v{S+4}")
        e(f"v_max3_f32 v{t}, v{t}, v{S+5}, v{S+6}")
        if first: e(f"v_max_f32 v{t}, v{t}, v{S+7}")
        else: e(f"v_max3_f32 v{t}, v{t}, v{S+7}, v{V_M}")
        self.xlane("v_max_f32", t, u, (16, 32))
    def rescale(self, al):
        for i in range(16):
            self.e(f"v_pk_mul_f32 v[{OACC+2*i}:{OACC+2*i+1}], v[{OACC+2*i}:{OACC+2*i+1}], v[{al}:{al+1}] op_sel_hi:[1,0]")
    def softmax_rest(self, first, V_M=V_M, V_LS=V_LS):
        e = self.e; t, u, mc, al = T[0], T[1], T[2], T[4]; S = SR
        e(f"v_mul_f32 v{mc}, s{S_C}, v{t}")
        if not first:
            e(f"v_fma_f32 v{al}, v{V_M}, s{S_C}, -v{mc}")
            e(f"v_exp_f32 v{al}, v{al}")
        e(f"v_mov_b32 v{V_M}, v{t}")
        for i in range(8): e(f"v_fma_f32 v{S+i}, v{S+i}, s{S_C}, -v{mc}")
        for i in range(8): e(f"v_exp_f32 v{S+i}, v{S+i}")
        if not first: self.rescale(al)
        else: e("s_nop 0")
        e(f"v_add_f32 v{t}, v{S}, v{S+1}"); e(f"v_add_f32 v{u}, v{S+2}, v{S+3}")
        e(f"v_add_f32 v{t}, v{t}, v{S+4}"); e(f"v_add_f32 v{u}, v{u}, v{S+5}")
        e(f"v_add_f32 v{t}, v{t}, v{S+6}"); e(f"v_add_f32 v{u}, v{u}, v{S+7}")
        for p in range(4): e(f"v_cvt_pk_bf16_f32 v{PR+p}, v{S+2*p}, v{S+2*p+1}")
        e(f"v_add_f32 v{t}, v{t}, v{u}")
        if first: e(f"v_mov_b32 v{V_LS}, v{t}")
        else: e(f"v_fma_f32 v{V_LS}, v{V_LS}, v{al}, v{t}")
    def common_scale(self, tmp, hook, rescale_only):
        e = self.e
        e("s_mov_b64 exec, 0xff")
        e(f"ds_write_b32 v{V_MLW}, v{T[0]} offset:{CM + 256}")
        e("s_mov_b64 exec, -1")
        e("s_waitcnt lgkmcnt(0)")
        e("s_barrier")
        e(f"ds_read_b128 v[{tmp}:{tmp+3}], v{V_U0} offset:{CM + 256}")
        e(f"ds_read_b128 v[{tmp+4}:{tmp+7}], v{V_U0} offset:{CM + 256 + 16}")
        e(f"ds_read_b128 v[{tmp+8}:{tmp+11}], v{V_MLR} offset:{CM + 256}")
        e(f"ds_read_b128 v[{tmp+12}:{tmp+15}], v{V_MLR} offset:{CM + 256 + 16}")
        if hook: hook()
        e("s_waitcnt lgkmcnt(2)")
        t = T[0]
        e(f"v_max3_f32 v{t}, v{tmp}, v{tmp+1}, v{tmp+2}"); e(f"v_max3_f32 v{t}, v{t}, v{tmp+3}, v{tmp+4}")
        e(f"v_max3_f32 v{t}, v{t}, v{tmp+5}, v{tmp+6}"); e(f"v_max_f32 v{t}, v{t}, v{tmp+7}")
        if rescale_only:
            al = T[4]
            e(f"v_sub_f32 v{al}, v{V_M}, v{t}"); e(f"v_mul_f32 v{al}, s{S_C}, v{al}"); e(f"v_exp_f32 v{al}, v{al}"); e("s_nop 0")
            e(f"v_mul_f32 v{V_LS}, v{V_LS}, v{al}")
            self.rescale(al)
        else:
            self.softmax_rest(False)
            self.xlane("v_add_f32", V_LS, T[1], (16, 32))
        e("s_mov_b64 exec, 0xff")
        e(f"ds_write_b32 v{V_MLW}, v{V_LS} offset:{CL + 256}")
        e("s_mov_b64 exec, -1")
        e("s_waitcnt lgkmcnt(1)")
        m = tmp + 8
        e(f"v_max3_f32 v{tmp+18}, v{m}, v{m+1}, v{m+2}"); e(f"v_max3_f32 v{tmp+18}, v{tmp+18}, v{m+3}, v{m+4}")
        e(f"v_max3_f32 v{tmp+18}, v{tmp+18}, v{m+5}, v{m+6}"); e(f"v_max_f32 v{tmp+18}, v{tmp+18}, v{m+7}")
        e(f"v_mov_b32 v{tmp+19}, s{S_NONCE}")
        e(f"v_and_b32 v{tmp+16}, 1, v0"); e(f"v_cmp_eq_u32 vcc, 1, v{tmp+16}")
    def write_o(self, br, acc=OACC):
        e = self.e
        e("s_mov_b32 exec_lo, 0x00ff00ff"); e("s_mov_b32 exec_hi, 0x00ff00ff")
        for dd in range(8):
            e(f"ds_write_b128 v{V_COW}, v[{acc+dd*4}:{acc+dd*4+3}] offset:{br*CO_BR + dd*16}")
        e("s_mov_b64 exec, -1")
    def read_q(self, br):
        for jj in range(4):
            self.e(f"ds_read_b128 v[{QR+jj*4}:{QR+jj*4+3}], v{V_QR} offset:{br*2176 + jj*64}")
    def o_publish(self, R, R2):
        e = self.e
        l = R + 20
        e(f"ds_read_b128 v[{l}:{l+3}], v{V_MLR} offset:{CL + 256}"); e(f"ds_read_b128 v[{l+4}:{l+7}], v{V_MLR} offset:{CL + 256 + 16}")
        for w in range(8):
            e(f"ds_read_b128 v[{R2+4*w}:{R2+4*w+3}], v{V_COR} offset:{CO_BR + w*CO_W}")
        P = R + 16
        pk = lambda d, x, y: e(f"v_pk_add_f32 v[{d}:{d+1}], v[{x}:{x+1}], v[{y}:{y+1}]")
        pk4 = lambda d, y: (pk(d, d, y), pk(d + 2, d + 2, y + 2))
        e("s_waitcnt lgkmcnt(8)")
        pk(l, l, l + 2); pk(l + 4, l + 4, l + 6); pk(l, l, l + 4)
        e("s_waitcnt lgkmcnt(6)")
        pk4(R2, R2 + 4)
        e(f"v_add_f32 v{l}, v{l}, v{l+1}")
        e("s_waitcnt lgkmcnt(4)")
        pk4(R2 + 8, R2 + 12)
        e(f"v_cndmask_b32 v{R+18}, v{R+18}, v{l}, vcc")
        e("s_waitcnt lgkmcnt(2)")
        pk4(R2 + 16, R2 + 20); pk4(R2, R2 + 8)
        e("s_waitcnt lgkmcnt(0)")
        pk4(R2 + 24, R2 + 28); pk4(R2 + 16, R2 + 24); pk4(R2, R2 + 16)
        e(f"v_cvt_pk_bf16_f32 v{P}, v{R2}, v{R2+1}"); e(f"v_cvt_pk_bf16_f32 v{P+1}, v{R2+2}, v{R2+3}")
        e("s_mov_b32 exec_hi, 0")
        self.vm(f"buffer_store_dwordx4 v[{P}:{P+3}], v{V_PO}, s[{WS}:{WS+3}], s{S_POB} offen sc1", "st")
        e("s_mov_b32 exec_hi, -1")
    def combine_a(self, R, hoff, P, na):
        e = self.e
        m, l, o = SR, WSET[0], R
        M, mc, A = R + 16, T[2], R + 20
        for i in range(na // 4):
            e(f"ds_read_b128 v[{m+4*i}:{m+4*i+3}], v{V_MLR} offset:{CM + hoff*32 + 16*i}")
        for i in range(na // 4):
            e(f"ds_read_b128 v[{l+4*i}:{l+4*i+3}], v{V_MLR} offset:{CL + hoff*32 + 16*i}")
        for w in range(4): e(f"ds_read_b128 v[{o+4*w}:{o+4*w+3}], v{V_COR} offset:{w*CO_W + hoff*CO_H}")
        e(f"v_mov_b32 v{P+3}, s{S_NONCE}")
        e(f"v_and_b32 v{M+1}, 1, v0"); e(f"v_cmp_eq_u32 vcc, 1, v{M+1}")
        e(f"s_waitcnt lgkmcnt({4 + na//4})")
        e(f"v_max3_f32 v{M}, v{m}, v{m+1}, v{m+2}"); e(f"v_max_f32 v{M}, v{M}, v{m+3}")
        if na == 8:
            e(f"v_max3_f32 v{M}, v{M}, v{m+4}, v{m+5}"); e(f"v_max3_f32 v{M}, v{M}, v{m+6}, v{m+7}")
        e(f"v_mul_f32 v{mc}, s{S_C}, v{M}")
        for w in range(na): e(f"v_fma_f32 v{m+w}, v{m+w}, s{S_C}, -v{mc}")
        for w in range(na): e(f"v_exp_f32 v{m+w}, v{m+w}")
        e("s_waitcnt lgkmcnt(0)")
        for w in range(na):
            if w == 4:
                for w2 in range(4): e(f"ds_read_b128 v[{o+4*w2}:{o+4*w2+3}], v{V_COR} offset:{(4+w2)*CO_W + hoff*CO_H}")
                e("s_waitcnt lgkmcnt(0)")
            op = "v_mul_f32" if w == 0 else "v_fmac_f32"
            for i in range(4): e(f"{op} v{A+i}, v{m+w}, v{o+4*(w%4)+i}")
            e(f"{op} v{M+2}, v{m+w}, v{l+w}")
        e(f"v_cvt_pk_bf16_f32 v{P}, v{A}, v{A+1}"); e(f"v_cvt_pk_bf16_f32 v{P+1}, v{A+2}, v{A+3}")
        e(f"v_cndmask_b32 v{P+2}, v{M}, v{M+2}, vcc")
    def a_tile(self, t):
        e = self.e
        uk, uv = "K" + t, "V" + t
        half = t == "a"
        self.read_q(0)
        self.wait(uk)
        e("s_waitcnt lgkmcnt(0)")
        acc = self.slot[uk]
        self.qk(acc, half)
        self.read_q(1)
        e("s_nop 3")
        self.tilemax(True); self.softmax_rest(True, T[5], T[6])
        self.xlane("v_add_f32", T[6], T[1], (16, 32))
        e("s_mov_b64 exec, 0xff")
        e(f"ds_write_b32 v{V_MLW}, v{T[5]} offset:{CM}")
        e(f"ds_write_b32 v{V_MLW}, v{T[6]} offset:{CL}")
        e("s_mov_b64 exec, -1")
        if half:
            for i in range(16): e(f"v_mov_b32 v{self.slot[uv]+16+i}, 0")
        self.wait(uv)
        self.perm_mfma8(self.slot[uv], PR, True, True, acc); self.release(uv)
        if not self.issue_next(): e("s_nop 3")
        self.write_o(0, acc); self.release(uk)
        self.lds_inc(F_AC)
        e("s_waitcnt lgkmcnt(0)")
        self.issue_next()
    def b_tile(self, t, first):
        e = self.e
        uk, uv = f"K{t}", f"V{t}"
        half = t == "H"
        self.wait(uk)
        self.qk(self.slot[uk], half, S_BIAS.get(t)); self.release(uk)
        if not self.issue_next(): e("s_nop 7")
        self.tilemax(first); self.softmax_rest(first)
        if half:
            for i in range(16): e(f"v_mov_b32 v{self.slot[uv]+16+i}, 0")
        self.wait(uv)
        self.perm_mfma8(self.slot[uv], PR, first, True); self.release(uv)
        self.issue_next()
    def check(self, tags):
        e = self.e; acc = T[7]
        e(f"v_xor_b32 v{acc}, s{S_NONCE}, v{tags[0]}")
        for t in tags[1:]:
            e(f"v_xor_b32 v{T[6]}, s{S_NONCE}, v{t}"); e(f"v_or_b32 v{acc}, v{acc}, v{T[6]}")
        e(f"v_cmp_ne_u32 vcc, 0, v{acc}")
    def poll(self, loads, tags, sleep=1):
        e = self.e
        lp, ok = self.newlab("poll"), self.newlab("ok")
        e(f"s_mov_b32 s{S_CNT}, 0")
        self.label(lp)
        for s in loads: e(s)
        e("s_waitcnt vmcnt(0)")
        self.check(tags)
        e(f"s_add_u32 s{S_CNT}, s{S_CNT}, 1")
        e(f"s_cbranch_vccz {ok}")
        e(f"s_cmp_gt_u32 s{S_CNT}, {SPIN_MAX}")
        e(f"s_cbranch_scc1 {ok}")
        if sleep: e(f"s_sleep {sleep}")
        e(f"s_branch {lp}")
        self.label(ok)
    def poll_missing(self, loads, tags, sleep, first=True, firstwait=0, watch=False, lpl=8):
        e = self.e
        n = len(loads)
        lp, done, chk = self.newlab("pm"), self.newlab("pmdone"), self.newlab("pmchk")
        MK = [4, 6, 8, 10]
        e(f"s_mov_b32 s{S_CNT}, 0")
        watch = watch and self.opt("watch", 1)
        S_PREV, S_N = 12, 13
        if watch: e(f"s_mov_b32 s{S_PREV}, 0")
        if first:
            for s_ in loads: e(s_)
        if firstwait:
            e(f"s_waitcnt vmcnt({firstwait})"); e(f"s_branch {chk}")
        self.label(lp)
        e("s_waitcnt vmcnt(0)")
        self.label(chk)
        for i in range(n):
            tg = tags[i]
            if tg[0] == "emb":
                r = tg[1]
                e(f"v_perm_b32 v{T[6]}, v{r+1}, v{r}, s{S_SELLO}"); e(f"v_perm_b32 v{T[7]}, v{r+3}, v{r+2}, s{S_SELLO}")
                e(f"v_perm_b32 v{T[6]}, v{T[7]}, v{T[6]}, s{S_SELHI}")
                e(f"v_cmp_ne_u32 s[{MK[i]}:{MK[i]+1}], s{S_NONCE}, v{T[6]}")
            elif len(tg) == 1:
                e(f"v_cmp_ne_u32 s[{MK[i]}:{MK[i]+1}], s{S_NONCE}, v{tg[0]}")
            else:
                e(f"v_xor_b32 v{T[6]}, s{S_NONCE}, v{tg[0]}"); e(f"v_xor_b32 v{T[7]}, s{S_NONCE}, v{tg[1]}"); e(f"v_or_b32 v{T[6]}, v{T[6]}, v{T[7]}")
                e(f"v_cmp_ne_u32 s[{MK[i]}:{MK[i]+1}], 0, v{T[6]}")
        e(f"s_or_b64 vcc, s[{MK[0]}:{MK[0]+1}], s[{MK[1]}:{MK[1]+1}]")
        for i in range(2, n): e(f"s_or_b64 vcc, vcc, s[{MK[i]}:{MK[i]+1}]")
        e(f"s_cbranch_scc0 {done}")
        e(f"s_add_u32 s{S_CNT}, s{S_CNT}, 1")
        e(f"s_cmp_gt_u32 s{S_CNT}, {SPIN_MAX}"); e(f"s_cbranch_scc1 {done}")
        if watch:
            full = self.newlab("pmfull")
            e(f"s_bcnt1_i32_b64 s{S_N}, s[{MK[0]}:{MK[0]+1}]")
            for i in range(1, n):
                e(f"s_bcnt1_i32_b64 s{S_T3}, s[{MK[i]}:{MK[i]+1}]"); e(f"s_add_u32 s{S_N}, s{S_N}, s{S_T3}")
            e(f"s_cmp_le_u32 s{S_N}, {lpl * self.opt('wthr', 8)}"); e(f"s_cbranch_scc1 {full}")
            e(f"s_cmp_lt_u32 s{S_N}, s{S_PREV}"); e(f"s_cbranch_scc1 {full}")
            e(f"s_mov_b32 s{S_PREV}, s{S_N}")
            e(f"s_sleep {self.opt('wsleep', 2)}")
            for i in range(n):
                nx = self.newlab("pmw")
                e(f"s_ff1_i32_b64 s{S_T3}, s[{MK[i]}:{MK[i]+1}]")
                e(f"s_cmp_lt_i32 s{S_T3}, 0"); e(f"s_cbranch_scc1 {nx}")
                e(f"s_and_b32 s{S_T3}, s{S_T3}, {64 - lpl}"); e(f"s_lshl_b64 exec, {hex((1 << lpl) - 1)}, s{S_T3}")
                e(loads[i])
                e("s_mov_b64 exec, -1")
                e(f"s_branch {lp}")
                self.label(nx)
            self.label(full)
            e(f"s_mov_b32 s{S_PREV}, 0")
        if sleep: e(f"s_sleep {sleep}")
        for i in range(n):
            sk = self.newlab("pms")
            e(f"s_mov_b64 exec, s[{MK[i]}:{MK[i]+1}]")
            e(f"s_cbranch_execz {sk}")
            e(loads[i])
            self.label(sk)
        e("s_mov_b64 exec, -1")
        e(f"s_branch {lp}")
        self.label(done)
    def lds_spin(self, off, target):
        if self.opt("noq", 0): return
        e = self.e
        lp, ok = self.newlab("ls"), self.newlab("lsok")
        e(f"s_mov_b32 s{S_CNT}, 0")
        self.label(lp)
        e(f"ds_read_b32 v{T[7]}, v{V_FLG} offset:{off - FLG}")
        e("s_waitcnt lgkmcnt(0)")
        e(f"v_readfirstlane_b32 s{S_T3}, v{T[7]}")
        e(f"s_add_u32 s{S_CNT}, s{S_CNT}, 1")
        e(f"s_cmp_eq_u32 s{S_T3}, {target}")
        e(f"s_cbranch_scc1 {ok}")
        e(f"s_cmp_gt_u32 s{S_CNT}, {SPIN_MAX*50}")
        e(f"s_cbranch_scc1 {ok}")
        e("s_sleep 1")
        e(f"s_branch {lp}")
        self.label(ok)
    def get_nonce(self):
        e = self.e
        lp, ok = self.newlab("nn"), self.newlab("nnok")
        e(f"s_mov_b32 s{S_CNT}, 0")
        self.label(lp)
        e(f"v_readfirstlane_b32 s{S_NONCE}, v{V_U1}")
        e(f"s_add_u32 s{S_CNT}, s{S_CNT}, 1")
        e(f"s_cmp_lg_u32 s{S_NONCE}, 0")
        e(f"s_cbranch_scc1 {ok}")
        e(f"s_cmp_gt_u32 s{S_CNT}, {SPIN_MAX}")
        e(f"s_cbranch_scc1 {ok}")
        e(f"buffer_load_dword v{V_U1}, off, s[{DBG}:{DBG+3}], 0 sc1")
        e("s_waitcnt vmcnt(0)")
        e(f"s_branch {lp}")
        self.label(ok)
    def qpoll_loads(self, OACC=OACC):
        l = [f"buffer_load_dwordx4 v[{OACC}:{OACC+3}], v{V_L0}, s[{WS}:{WS+3}], s{S_QB} offen sc1"]
        if self.isO: l.append(f"buffer_load_dwordx4 v[{OACC+4}:{OACC+7}], v{V_L0}, s[{WS}:{WS+3}], s{S_QA} offen sc1")
        return l
    def qtags(self, OACC=OACC): return [OACC + 1, OACC + 3] + ([OACC + 5, OACC + 7] if self.isO else [])
    def qcommit(self, OACC=OACC):
        e = self.e
        e(f"v_mov_b32 v{OACC+1}, v{OACC+2}")
        if self.isO: e(f"v_mov_b32 v{OACC+5}, v{OACC+6}")
        e(f"v_mov_b32 v{T[0]}, s{S_NONCE}"); e(f"v_mov_b32 v{T[1]}, 1")
        e(f"ds_write_b64 v{V_QW}, v[{OACC}:{OACC+1}] offset:2176")
        if self.isO: e(f"ds_write_b64 v{V_QW}, v[{OACC+4}:{OACC+5}]")
        e("s_mov_b64 exec, 1")
        e(f"ds_write_b32 v{V_FLG}, v{T[0]} offset:{F_NON - FLG}")
        e(f"ds_add_u32 v{V_FLG}, v{T[1]} offset:{F_QC - FLG}")
        e("s_mov_b64 exec, -1")
        e(f"s_mov_b32 s{S_OK}, 1")
        self.stamp(4)
    def young_prefetch(self):
        e = self.e
        nonce_ready = not self.isO
        e(f"s_lshl_b32 s{S_QA}, s{S_GRP}, 12"); e(f"s_and_b32 s{S_T1}, s3, 3"); e(f"s_lshl_b32 s{S_T2}, s{S_T1}, 10"); e(f"s_add_u32 s{S_QA}, s{S_QA}, s{S_T2}")
        e(f"s_add_u32 s{S_QB}, s{S_QA}, 32768")
        e(f"s_mul_i32 s{S_T1}, s{S_T1}, 544"); e(f"v_add_u32 v{V_QW}, s{S_T1}, v{V_QW}")
        e(f"s_mov_b32 s{S_OK}, 0")
        lagk = self.opt("qlag", 0)
        first = self.opt("qfirsto" if self.isO else "qfirstq", 2 if self.isO else 1)
        k = 0; pend = []
        if not nonce_ready:
            pass
        def chk(k, mark):
            nonlocal nonce_ready
            B = OACC + 8 * (k % 4)
            skip = self.newlab("qskip")
            if nonce_ready:
                e(f"s_cmp_eq_u32 s{S_OK}, 1"); e(f"s_cbranch_scc1 {skip}")
            e(f"s_waitcnt vmcnt({len(self.q) - mark})")
            if not nonce_ready:
                self.get_nonce(); nonce_ready = True
            self.check(self.qtags(B))
            e(f"s_cbranch_vccnz {skip}")
            self.qcommit(B)
            self.label(skip)
        while True:
            if k >= first:
                sk = self.newlab("qps")
                if not nonce_ready and k == first:
                    e(f"buffer_load_dword v{V_U1}, off, s[{DBG}:{DBG+3}], 0 sc1")
                if k > first: e(f"s_cmp_eq_u32 s{S_OK}, 1"); e(f"s_cbranch_scc1 {sk}")
                for s_ in self.qpoll_loads(OACC + 8 * (k % 4)): e(s_)
                self.label(sk)
                pend.append((k, len(self.q)))
            ok = self.issue_next()
            if len(pend) > lagk: chk(*pend.pop(0))
            k += 1
            if not ok or not self.free: break
        for kk, mark in pend: chk(kk, mark)
        done = self.newlab("qd")
        e(f"s_cmp_eq_u32 s{S_OK}, 1"); e(f"s_cbranch_scc1 {done}")
        self.poll(self.qpoll_loads(), self.qtags(), sleep=1)
        self.qcommit()
        self.label(done)
    def wait_q(self):
        e = self.e
        self.lds_spin(F_QC, 4)
        if self.opt("noq", 0): return
        e(f"ds_read_b32 v{T[7]}, v{V_FLG} offset:{F_NON - FLG}")
        e("s_waitcnt lgkmcnt(0)")
        e(f"v_readfirstlane_b32 s{S_NONCE}, v{T[7]}")
    def gate_loads(self):
        e = self.e
        e(f"s_and_b32 s{S_T1}, s3, 1"); e(f"s_lshl_b32 s{S_T1}, s{S_T1}, 11")
        e(f"v_lshlrev_b32 v{V_X}, 5, v0")
        self.vm(f"buffer_load_dwordx4 v[{QR}:{QR+3}], v{V_X}, s[{XS}:{XS+3}], s{S_T1} offen", "g")
        self.vm(f"buffer_load_dwordx4 v[{QR+4}:{QR+7}], v{V_X}, s[{XS}:{XS+3}], s{S_T1} offen offset:16", "g")
        self.vm(f"buffer_load_dwordx4 v[{QR+8}:{QR+11}], v{V_X}, s[{GT}:{GT+3}], 0 offen", "g")
        self.vm(f"buffer_load_dwordx4 v[{QR+12}:{QR+15}], v{V_X}, s[{GT}:{GT+3}], 0 offen offset:16", "g")
    def gate(self):
        e = self.e
        self.wait("g")
        acc, a, b, c, d = T[0], T[1], T[2], T[3], T[4]
        e(f"v_mov_b32 v{acc}, 0")
        e(f"s_mov_b32 s{S_T0}, 0xffff0000")
        for i in range(8):
            x, g = QR + i, QR + 8 + i
            e(f"v_lshlrev_b32 v{a}, 16, v{x}"); e(f"v_lshlrev_b32 v{b}, 16, v{g}")
            e(f"v_and_b32 v{c}, s{S_T0}, v{x}"); e(f"v_and_b32 v{d}, s{S_T0}, v{g}")
            e(f"v_mul_f32 v{a}, v{a}, v{b}"); e(f"v_mul_f32 v{c}, v{c}, v{d}")
            e(f"v_cvt_pk_bf16_f32 v{a}, v{a}, v{c}")
            e(f"v_lshlrev_b32 v{b}, 16, v{a}"); e(f"v_and_b32 v{c}, s{S_T0}, v{a}")
            e(f"v_add_f32 v{acc}, v{acc}, v{b}"); e(f"v_add_f32 v{acc}, v{acc}, v{c}")
        self.dpp("v_add_f32", acc, (1, 2, 4, 8))
        self.xlane("v_add_f32", acc, a, (16, 32))
        e(f"v_cvt_pk_bf16_f32 v{acc}, v{acc}, v{acc}"); e(f"v_lshlrev_b32 v{acc}, 16, v{acc}")
        e(f"v_mul_f32 v{acc}, {hex(f2u(-math.log2(math.e)))}, v{acc}")
        e(f"v_exp_f32 v{acc}, v{acc}"); e("s_nop 0")
        e(f"v_add_f32 v{acc}, 1.0, v{acc}")
        e(f"v_rcp_f32 v{acc}, v{acc}"); e("s_nop 0")
        e(f"v_cvt_pk_bf16_f32 v{acc}, v{acc}, v{acc}"); e(f"v_lshlrev_b32 v{V_GA}, 16, v{acc}")
        e(f"v_sub_f32 v{acc}, 1.0, v{V_GA}")
        e(f"v_cvt_pk_bf16_f32 v{acc}, v{acc}, v{acc}"); e(f"v_lshlrev_b32 v{V_GB}, 16, v{acc}")

    def build(self):
        e = self.e; L = self.L
        L.append(f"; @launch grid=(256,1,1) block=(512,1,1) lds={LDS_SIZE}")
        L.append('.amdgcn_target "amdgcn-amd-amdhsa--gfx950"')
        L += [".text", f".globl {KNAME}", ".p2align 8", f".type {KNAME},@function", f"{KNAME}:"]
        e("s_cmp_ge_u32 s2, 256"); e("s_cbranch_scc1 L_end")
        e("s_load_dwordx16 s[48:63], s[0:1], 0")
        e("s_load_dwordx8 s[64:71], s[0:1], 64")
        e("s_load_dwordx4 s[72:75], s[0:1], 96")
        e("s_memrealtime s[96:97]")
        e("v_lshrrev_b32 v1, 6, v0")
        e("v_and_b32 v0, 63, v0")
        e("v_readfirstlane_b32 s3, v1")
        e(f"v_mov_b32 v{V_FLG}, {FLG}")
        e("v_mov_b32 v28, 0"); e("v_mov_b32 v29, 0"); e("v_mov_b32 v30, 0"); e("v_mov_b32 v31, 0")
        e("s_cmp_lg_u32 s3, 0"); e("s_cbranch_scc1 L_noinit")
        e(f"ds_write_b128 v{V_FLG}, v[28:31]"); e(f"ds_write_b128 v{V_FLG}, v[28:31] offset:16")
        self.label("L_noinit")
        e("v_and_b32 v24, 15, v0"); e("v_lshrrev_b32 v25, 4, v0")
        e("v_and_b32 v26, 3, v24"); e("v_lshlrev_b32 v26, 10, v26")
        e("v_lshrrev_b32 v27, 2, v24"); e("v_lshl_add_u32 v26, v27, 8, v26")
        e(f"v_lshl_add_u32 v{V_K0}, v25, 4, v26")
        e(f"v_add_u32 v{V_K1}, 4096, v{V_K0}")
        e(f"v_lshlrev_b32 v{V_L0}, 4, v0"); e(f"v_add_u32 v{V_L1}, 4096, v{V_L0}")
        e(f"s_lshr_b32 s{S_GRP}, s2, 5"); e(f"s_and_b32 s{S_IDX}, s2, 15"); e(f"s_and_b32 s{S_SPLIT}, s2, 31")
        e(f"s_lshl_b32 s{S_J}, s{S_GRP}, 4"); e(f"s_add_u32 s{S_J}, s{S_J}, s{S_IDX}")
        e(f"s_lshl_b32 s{S_T0}, s{S_GRP}, 23")
        e(f"s_lshl_b32 s{S_BB}, s{S_SPLIT}, 3"); e(f"s_add_u32 s{S_BB}, s{S_BB}, s3"); e(f"s_lshl_b32 s{S_BB}, s{S_BB}, 13"); e(f"s_add_u32 s{S_BB}, s{S_BB}, s{S_T0}")
        e("s_bitcmp1_b32 s2, 4"); e("s_cbranch_scc1 L_roleO")
        self.q = []; self.isO = False; self.WOA = GT
        self.roleQ()
        self.label("L_roleO")
        self.q = []; self.isO = True; self.WOA = W1
        self.roleO()
        self.label("L_end"); e("s_endpgm")
        L += ['.section .rodata,"a"', ".p2align 6", f".amdhsa_kernel {KNAME}"]
        for s in ["next_free_vgpr 256", "next_free_sgpr 102", "accum_offset 256", "group_segment_fixed_size 0", "kernarg_size 112",
                  "user_sgpr_count 2", "user_sgpr_kernarg_segment_ptr 1", "system_sgpr_workgroup_id_x 1"]:
            L.append("  .amdhsa_" + s)
        L.append(".end_amdhsa_kernel")
        return "\n".join(L) + "\n"

    def common_setup(self):
        e = self.e
        e(f"s_mov_b32 s{S_SELLO}, 0x05040100"); e(f"s_mov_b32 s{S_SELHI}, 0x07060302")
        e(f"s_mov_b32 s{S_C}, {hex(f2u(math.log2(math.e) / math.sqrt(128.0)))}")
        e(f"s_mul_i32 s{S_T0}, s3, {CO_W}"); e(f"s_add_u32 s{S_T0}, s{S_T0}, {CO}")
        e(f"v_mul_u32_u24 v{V_COW}, {CO_H}, v24"); e(f"v_lshl_add_u32 v{V_COW}, v25, 7, v{V_COW}"); e(f"v_add_u32 v{V_COW}, s{S_T0}, v{V_COW}")
        e(f"s_lshl_b32 s{S_T0}, s3, 2"); e(f"v_lshlrev_b32 v{V_MLW}, 5, v24"); e(f"v_add_u32 v{V_MLW}, s{S_T0}, v{V_MLW}")
        e("v_and_b32 v26, 7, v24"); e(f"v_lshlrev_b32 v{V_U0}, 5, v26")
        e(f"v_mul_u32_u24 v{V_QR}, 272, v26"); e(f"v_lshl_add_u32 v{V_QR}, v25, 4, v{V_QR}"); e(f"v_add_u32 v{V_QR}, {QOP}, v{V_QR}")
        e(f"s_mul_i32 s{S_T0}, s3, {CO_H}"); e(f"s_add_u32 s{S_T0}, s{S_T0}, {CO}"); e("v_and_b32 v26, 31, v0"); e(f"v_lshlrev_b32 v{V_COR}, 4, v26"); e(f"v_add_u32 v{V_COR}, s{S_T0}, v{V_COR}")
        e(f"s_lshl_b32 s{S_T0}, s3, 5"); e(f"v_mov_b32 v{V_MLR}, s{S_T0}")
        e("v_lshrrev_b32 v26, 5, v0"); e(f"v_mul_u32_u24 v{V_QW}, 272, v26"); e("v_and_b32 v26, 31, v0"); e(f"v_lshl_add_u32 v{V_QW}, v26, 3, v{V_QW}"); e(f"v_add_u32 v{V_QW}, {QOP}, v{V_QW}")
        e(f"s_lshl_b32 s{S_POB}, s{S_GRP}, 3"); e(f"s_add_u32 s{S_POB}, s{S_POB}, s3"); e(f"s_lshl_b32 s{S_POB}, s{S_POB}, 14"); e(f"s_add_u32 s{S_POB}, s{S_POB}, {hex(PO)}")
        e(f"s_lshl_b32 s{S_T1}, s{S_IDX}, 7"); e(f"s_add_u32 s{S_POA}, s{S_POB}, s{S_T1}"); e(f"s_add_u32 s{S_POA2}, s{S_POA}, {4*16384}")
        e(f"s_lshl_b32 s{S_T1}, s{S_SPLIT}, 7"); e(f"s_add_u32 s{S_POB}, s{S_POB}, s{S_T1}"); e(f"s_add_u32 s{S_POB}, s{S_POB}, {hex(PO_BR)}")

    def late_setup(self):
        e = self.e
        e(f"v_lshrrev_b32 v{T[0]}, 3, v0"); e(f"v_lshlrev_b32 v{V_PO}, 12, v{T[0]}"); e(f"v_and_b32 v{T[0]}, 7, v0"); e(f"v_lshl_add_u32 v{V_PO}, v{T[0]}, 4, v{V_PO}")
        if not self.old:
            e(f"v_lshrrev_b32 v{T[0]}, 4, v0"); e(f"v_lshlrev_b32 v{V_WA}, 12, v{T[0]}"); e(f"v_and_b32 v{T[0]}, 15, v0"); e(f"v_lshl_add_u32 v{V_WA}, v{T[0]}, 4, v{V_WA}")
            e(f"s_lshl_b32 s{S_W}, s{S_J}, 16"); e(f"s_and_b32 s{S_T1}, s3, 3"); e(f"s_lshl_b32 s{S_T1}, s{S_T1}, 8"); e(f"s_add_u32 s{S_W}, s{S_W}, s{S_T1}")
            if self.isO: e(f"s_add_u32 s{S_W}, s{S_W}, 1024")

    S_HO, S_PFR, S_OUT = 72, 74, 75
    def pre_tail(self):
        e = self.e
        if self.old:
            h = self.S_HO
            e(f"s_and_b32 s{S_T0}, s3, 1"); e(f"s_lshl_b32 s{S_T0}, s{S_T0}, 2"); e(f"s_lshr_b32 s{S_T1}, s{S_J}, 5"); e(f"s_add_u32 s{S_T0}, s{S_T0}, s{S_T1}")
            e(f"s_lshl_b32 s{h}, s{S_T0}, 17")
            e(f"s_and_b32 s{S_T1}, s{S_J}, 31"); e(f"s_lshl_b32 s{S_T1}, s{S_T1}, 12"); e(f"s_add_u32 s{h}, s{h}, s{S_T1}")
            e(f"s_add_u32 s{h}, s{h}, {hex(PO)}")
            e(f"s_and_b32 s{S_T0}, s3, 1"); e(f"s_lshl_b32 s{S_T0}, s{S_T0}, 6")
            e("v_and_b32 v26, 7, v0"); e(f"v_lshlrev_b32 v{HA[1]}, 3, v26"); e("v_lshrrev_b32 v26, 4, v0"); e(f"v_lshl_add_u32 v{HA[1]}, v26, 1, v{HA[1]}"); e(f"v_add_u32 v{HA[1]}, s{S_T0}, v{HA[1]}")
            if not self.isO:
                p = self.S_PFR
                e(f"s_lshr_b32 s{p}, s{S_J}, 1"); e(f"s_lshl_b32 s{p}, s{p}, 14"); e(f"s_lshl_b32 s{S_T2}, s3, 12"); e(f"s_add_u32 s{p}, s{p}, s{S_T2}")
                e(f"s_and_b32 s{S_T2}, s{S_J}, 1"); e(f"s_lshl_b32 s{S_T2}, s{S_T2}, 6"); e(f"s_add_u32 s{p}, s{p}, s{S_T2}"); e(f"s_add_u32 s{p}, s{p}, {hex(PF)}")
                e("v_lshrrev_b32 v26, 2, v0"); e(f"v_lshlrev_b32 v{HA[4]}, 7, v26"); e("v_and_b32 v26, 3, v0"); e(f"v_lshl_add_u32 v{HA[4]}, v26, 4, v{HA[4]}")
                e(f"v_lshlrev_b32 v{HA[2]}, 4, v26"); e("v_lshrrev_b32 v27, 4, v0"); e(f"v_lshl_add_u32 v{HA[2]}, v27, 2, v{HA[2]}")
                e(f"s_lshl_b32 s{S_T0}, s3, 6"); e(f"s_add_u32 s{S_T0}, s{S_T0}, {FR}"); e(f"v_add_u32 v{HA[2]}, s{S_T0}, v{HA[2]}")
                e("v_and_b32 v26, 7, v0"); e(f"v_lshlrev_b32 v{HA[3]}, 3, v26")
                e("v_lshrrev_b32 v27, 1, v26"); e(f"v_lshlrev_b32 v{V_WA}, 4, v27"); e("v_and_b32 v27, 1, v0"); e(f"v_lshl_add_u32 v{V_WA}, v27, 2, v{V_WA}")
                o = self.S_OUT
                e(f"s_lshr_b32 s{o}, s{S_J}, 3"); e(f"s_lshl_b32 s{o}, s{o}, 8")
                e(f"s_and_b32 s{S_T2}, s{S_J}, 3"); e(f"s_lshl_b32 s{S_T2}, s{S_T2}, 6"); e(f"s_add_u32 s{o}, s{o}, s{S_T2}")
                e(f"s_bfe_u32 s{S_T2}, s{S_J}, 0x10002"); e(f"s_lshl_b32 s{S_T2}, s{S_T2}, 3"); e(f"s_add_u32 s{o}, s{o}, s{S_T2}")
        else:
            e("v_bfe_u32 v26, v0, 2, 1"); e(f"v_lshlrev_b32 v{HA[2]}, 6, v26"); e("v_lshrrev_b32 v26, 4, v0"); e(f"v_lshl_add_u32 v{HA[2]}, v26, 4, v{HA[2]}")
            e("v_bfe_u32 v26, v0, 4, 1"); e(f"v_lshlrev_b32 v{HA[3]}, 19, v26"); e("v_bfe_u32 v26, v0, 3, 1"); e(f"v_lshl_add_u32 v{HA[3]}, v26, 14, v{HA[3]}")
            e("v_and_b32 v26, 7, v0"); e(f"v_lshl_add_u32 v{HA[3]}, v26, 4, v{HA[3]}")
            e("v_lshrrev_b32 v26, 5, v0"); e(f"v_lshl_add_u32 v{HA[3]}, v26, 15, v{HA[3]}")
            e(f"s_and_b32 s98, s3, 3"); e("s_lshl_b32 s98, s98, 16"); e(f"s_lshl_b32 s{S_T1}, s{S_J}, 7"); e(f"s_add_u32 s98, s98, s{S_T1}")
            e(f"s_add_u32 s98, s98, {hex(PF + (4 << 16 if self.isO else 0))}")
            e("s_mov_b32 s100, 0"); e("s_mov_b32 s101, -1")
            for i in range(4): e(f"s_mov_b32 s{4+i}, {hex(0x07060500 + i)}")

    def claim(self, tag):
        e = self.e
        e(f"v_mov_b32 v{V_U1}, 1"); e("s_mov_b64 exec, 1")
        self.vm(f"buffer_atomic_add v{V_U1}, off, s[{WS}:{WS+3}], s{S_CA} sc0", tag)
        e("s_mov_b64 exec, -1")

    def tiles(self):
        e = self.e; old = self.old
        self.read_q(1)
        self.late_setup()
        e("s_waitcnt lgkmcnt(0)")
        if old:
            for t in range(3): self.b_tile(str(t), t == 0)
            if self.isO: self.a_tile("A")
            self.last_tile("3"); return
        if self.isO: self.a_tile("A")
        e(f"s_lshl_b32 s{S_DB}, s{S_GRP}, 23"); e(f"s_lshl_b32 s{S_T0}, s3, 13"); e(f"s_add_u32 s{S_DB}, s{S_DB}, s{S_T0}"); e(f"s_add_u32 s{S_DB}, s{S_DB}, 0x600000")
        e(f"s_lshl_b32 s{S_CA}, s{S_GRP}, 2"); e(f"s_and_b32 s{S_T0}, s3, 3"); e(f"s_add_u32 s{S_CA}, s{S_CA}, s{S_T0}"); e(f"s_lshl_b32 s{S_CA}, s{S_CA}, 8"); e(f"s_add_u32 s{S_CA}, s{S_CA}, {hex(CT)}")
        names = ["X", "Y", "Z", "U"][:self.opt("maxdyn", 2)]; NF = self.opt("nf", 32)
        self.b_tile("0", True); self.claim("c0"); self.b_tile("1", False)
        prev = "2"; ends = []
        for i, nm in enumerate(names):
            lab = self.newlab("dend")
            self.wait(f"c{i}")
            e(f"v_readfirstlane_b32 s{S_DX}, v{V_U1}"); e("s_nop 0")
            e(f"s_cmp_ge_u32 s{S_DX}, {NF + 2*(32-NF)}"); e(f"s_cbranch_scc1 {lab}")
            ends.append((lab, prev, list(self.q), list(self.free), dict(self.slot)))
            e(f"s_sub_u32 s{S_T0}, s{S_DX}, {NF}"); e(f"s_lshr_b32 s{S_T1}, s{S_T0}, 1"); e(f"s_add_u32 s{S_T1}, s{S_T1}, {NF}"); e(f"s_lshl_b32 s{S_T1}, s{S_T1}, 16")
            e(f"s_and_b32 s{S_T0}, s{S_T0}, 1"); e(f"s_lshl_b32 s{S_T0}, s{S_T0}, 12"); e(f"s_add_u32 s{S_T1}, s{S_T1}, s{S_T0}")
            e(f"s_lshl_b32 s{S_T0}, s{S_DX}, 16")
            e(f"s_cmp_lt_u32 s{S_DX}, {NF}")
            e(f"s_cselect_b32 s{S_DX}, s{S_T0}, s{S_T1}"); e(f"s_cselect_b32 s{S_BIAS[nm]}, 0, 0xff7fffff"); e(f"s_cselect_b32 s{S_T0}, 0, 0x40000000")
            e(f"s_add_u32 s{S_DX}, s{S_DX}, s{S_DB}"); e(f"v_add_u32 v{V_GA}, s{S_T0}, v{V_K1}"); e(f"v_add_u32 v{V_GB}, s{S_T0}, v{V_L1}")
            assert not self.seq
            self.seq = ["K" + nm, "V" + nm]
            assert self.issue_next()
            if i + 1 < len(names): self.claim(f"c{i+1}")
            self.seq = ["HOLD"] + self.seq if False else self.seq
            self.b_tile(prev, False)
            prev = nm
        self.last_tile(prev)
        for lab, t, q, free, slot in ends:
            self.label(lab)
            self.q, self.free, self.slot, self.seq = q, free, slot, []
            self.last_tile(t)

    def last_tile(self, tl):
        e = self.e; old = self.old
        uk, uv = f"K{tl}", f"V{tl}"
        assert not self.seq
        if not old:
            wh = self.opt("whold", 1)
            self.seq = {0: ["WA", "WB"], 1: ["WA", "HOLD", "WB"], 2: ["HOLD", "WA", "WB"]}[wh]
            while self.issue_next(): pass
        self.pre_tail()
        R = self.free[0]
        if old and self.isO:
            self.lds_spin(F_AC, 8)
            self.combine_a(R, 0, R + 24, 8); self.combine_a(R, 4, R + 28, 8)
        self.wait(uk)
        self.qk(self.slot[uk], False, S_BIAS.get(tl)); self.release(uk)
        R2 = self.free[1]
        e("s_nop 7")
        def hook():
            e("s_mov_b32 exec_hi, 0")
            self.vm(f"buffer_store_dwordx4 v[{R+24}:{R+27}], v{V_PO}, s[{WS}:{WS+3}], s{S_POA} offen sc1", "st")
            self.vm(f"buffer_store_dwordx4 v[{R+28}:{R+31}], v{V_PO}, s[{WS}:{WS+3}], s{S_POA2} offen sc1", "st")
            e("s_mov_b32 exec_hi, -1")
        hk = hook if (old and self.isO) else None
        self.tilemax(False)
        if old:
            self.softmax_rest(False)
            self.wait(uv)
            self.perm_mfma8(self.slot[uv], PR, False, True); self.release(uv)
            self.xlane("v_add_f32", V_LS, T[1], (16, 32))
            e(f"v_mov_b32 v{T[0]}, v{V_M}")
            self.common_scale(R, hk, True)
            self.stamp(2); self.stamp(6)
        else:
            if self.opt("yprio", 1): e("s_setprio 2")
            self.common_scale(R, None, False)
            self.stamp(2)
            self.pv_last(uv, self.slot[uv], R2); self.release(uv)
        self.write_o(1)
        e("s_waitcnt lgkmcnt(0)")
        e("s_barrier")
        self.stamp(7)
        if old and self.opt("oprio", 0): e("s_setprio 3")
        self.o_publish(R, R2)
        self.stamp(8)
        if self.opt("notail", 0):
            if not old:
                if self.seq and self.seq[0] == "HOLD": self.seq.pop(0)
                while self.issue_next(): pass
            e("s_waitcnt vmcnt(0)"); self.stamp(9); self.stamp(11); self.stamp(10); self.stamp_flush(); e("s_endpgm")
        elif old: self.tail_old()
        else: self.tail_young()

    def gather_reduce(self, D, n, gv, off):
        e = self.e; dp = self.dp
        M, u, mc, Ls = T[0], T[1], T[2], T[3]
        X = WSET[0]; E = RING[1]
        e(f"s_mov_b32 s{S_T0}, 0xffff0000")
        for i in range(n): e(f"v_mov_b32_dpp v{E+4*i}, v{D+4*i+2} quad_perm:[0,0,2,2] row_mask:0xf bank_mask:0xf")
        if n == 4: e(f"v_max3_f32 v{M}, v{E}, v{E+4}, v{E+8}"); e(f"v_max_f32 v{M}, v{M}, v{E+12}")
        else: e(f"v_max_f32 v{M}, v{E}, v{E+4}")
        up = [E + 16, E + 20, E + 24, E + 28]
        fill = []
        for i in range(n):
            r = up[i]
            fill += [f"v_lshlrev_b32 v{r}, 16, v{D+4*i}", f"v_and_b32 v{r+1}, s{S_T0}, v{D+4*i}", f"v_lshlrev_b32 v{r+2}, 16, v{D+4*i+1}", f"v_and_b32 v{r+3}, s{S_T0}, v{D+4*i+1}"]
        fill += [f"v_mov_b32_dpp v{E+4*i+2}, v{D+4*i+2} quad_perm:[1,1,3,3] row_mask:0xf bank_mask:0xf" for i in range(n)]
        def fl(k):
            for _ in range(k): e(fill.pop(0))
        fl(2)
        dp("v_max_f32", M, 8)
        e(f"v_mov_b32 v{u}, v{M}"); fl(2)
        e(f"v_permlane16_swap_b32 v{M}, v{u}"); e(f"v_max_f32 v{M}, v{M}, v{u}")
        e(f"v_mov_b32 v{u}, v{M}"); fl(2)
        e(f"v_permlane32_swap_b32 v{M}, v{u}"); e(f"v_max_f32 v{M}, v{M}, v{u}")
        e(f"v_mul_f32 v{mc}, s{S_C}, v{M}")
        for i in range(n): e(f"v_fma_f32 v{E+4*i}, v{E+4*i}, s{S_C}, -v{mc}")
        for i in range(n): e(f"v_exp_f32 v{E+4*i}, v{E+4*i}")
        fl(len(fill))
        for i in range(n):
            ee = E + 4 * i
            for h in range(2):
                if i == 0: e(f"v_pk_mul_f32 v[{X+2*h}:{X+2*h+1}], v[{up[i]+2*h}:{up[i]+2*h+1}], v[{ee}:{ee+1}] op_sel_hi:[1,0]")
                else: e(f"v_pk_fma_f32 v[{X+2*h}:{X+2*h+1}], v[{up[i]+2*h}:{up[i]+2*h+1}], v[{ee}:{ee+1}], v[{X+2*h}:{X+2*h+1}] op_sel_hi:[1,0,1]")
            e(f"{'v_mul_f32' if i == 0 else 'v_fmac_f32'} v{Ls}, v{E+4*i+2}, v{ee}")
        for r in (X, X + 1, X + 2, X + 3, Ls): dp("v_add_f32", r, 8)
        e(f"v_mov_b32 v{u}, v{Ls}")
        e(f"v_permlane16_swap_b32 v{X}, v{X+1}"); e(f"v_permlane16_swap_b32 v{X+2}, v{X+3}"); e(f"v_permlane16_swap_b32 v{Ls}, v{u}")
        e(f"v_add_f32 v{Ls}, v{Ls}, v{u}"); e(f"v_add_f32 v{X}, v{X}, v{X+1}"); e(f"v_add_f32 v{X+2}, v{X+2}, v{X+3}")
        e(f"v_mov_b32 v{u}, v{Ls}"); e("s_nop 0")
        e(f"v_permlane32_swap_b32 v{X}, v{X+2}"); e(f"v_permlane32_swap_b32 v{Ls}, v{u}")
        e(f"v_add_f32 v{Ls}, v{Ls}, v{u}"); e(f"v_add_f32 v{X}, v{X}, v{X+2}")
        e(f"v_rcp_f32 v{Ls}, v{Ls}")
        e(f"v_mul_f32 v{X}, v{X}, v{gv}")
        e(f"v_mul_f32 v{X}, v{X}, v{Ls}")
        e(f"v_cvt_pk_bf16_f32 v{X}, v{X}, v{X}")
        e("s_mov_b32 exec_lo, 0x00ff00ff"); e("s_mov_b32 exec_hi, 0x00ff00ff")
        e(f"ds_write_b16 v{HA[1]}, v{X} offset:{off}")
        e("s_mov_b64 exec, -1")

    def tail_old(self):
        e = self.e
        D = OACC
        mk = lambda D, v, sa, n, st: [f"buffer_load_dwordx4 v[{D+4*i}:{D+4*i+3}], v{v}, s[{WS}:{WS+3}], s{sa} offen offset:{st*i} sc1" for i in range(n)]
        la_, jn = self.newlab("ga"), self.newlab("gj")
        ps = self.opt("posleep", 0)
        e("s_cmp_ge_u32 s3, 2"); e(f"s_cbranch_scc1 {la_}")
        e(f"s_add_u32 s{self.S_HO}, s{self.S_HO}, {hex(PO_BR)}")
        self.poll_missing(mk(D, V_L0, self.S_HO, 4, 1024), [[D + 4 * i + 3] for i in range(4)], ps, watch=True)
        self.stamp(9)
        self.gather_reduce(D, 4, V_GB, OB + 128)
        e(f"s_branch {jn}")
        self.label(la_)
        self.poll_missing(mk(D, V_L0, self.S_HO, 2, 1024), [[D + 4 * i + 3] for i in range(2)], ps, watch=True)
        self.stamp(9)
        self.gather_reduce(D, 2, V_GA, OB)
        self.lds_inc(F_OA)
        self.label(jn)
        e("s_waitcnt lgkmcnt(0)")
        e("s_barrier")
        if self.isO:
            self.stamp(10); self.stamp_flush(); e("s_endpgm"); return
        R = RING[0]
        e(f"s_mov_b32 s{S_SELLO}, 0x0c0c0400"); e(f"s_mov_b32 s{S_SELHI}, 0x05040100")
        self.stamp(1)
        lf = mk(R, HA[4], self.S_PFR, 2, 2048)
        if self.opt("fsleep0", 0): e(f"s_sleep {self.opt('fsleep0', 0)}")
        self.poll_missing(lf, [["emb", R], ["emb", R + 4]], self.opt("pfsleep", 0), watch=True, lpl=4)
        self.stamp(11)
        for i in range(8): e(f"v_and_b32 v{R+i}, 0xffffff00, v{R+i}")
        e(f"v_pk_add_f32 v[{R}:{R+1}], v[{R}:{R+1}], v[{R+4}:{R+5}]"); e(f"v_pk_add_f32 v[{R+2}:{R+3}], v[{R+2}:{R+3}], v[{R+6}:{R+7}]")
        e("s_nop 0")
        for ror in (4, 8):
            for i in range(4): self.dp("v_add_f32", R + i, ror)
        e("s_nop 0")
        e(f"v_permlane16_swap_b32 v{R}, v{R+1}"); e(f"v_permlane16_swap_b32 v{R+2}, v{R+3}")
        e(f"v_add_f32 v{R}, v{R}, v{R+1}"); e(f"v_add_f32 v{R+2}, v{R+2}, v{R+3}")
        e("s_nop 1")
        e(f"v_permlane32_swap_b32 v{R}, v{R+2}")
        e(f"v_add_f32 v{R}, v{R}, v{R+2}")
        e("s_mov_b32 exec_lo, 0x000f000f"); e("s_mov_b32 exec_hi, 0x000f000f")
        e(f"ds_write_b32 v{HA[2]}, v{R}")
        e("s_mov_b64 exec, -1")
        e("s_waitcnt lgkmcnt(0)")
        e("s_barrier")
        done = self.newlab("qdone")
        e("s_cmp_lg_u32 s3, 0"); e(f"s_cbranch_scc1 {done}")
        for w in range(4): e(f"ds_read_b64 v[{R+2*w}:{R+2*w+1}], v{HA[3]} offset:{FR + w*64}")
        e("s_waitcnt lgkmcnt(0)")
        e(f"v_pk_add_f32 v[{R}:{R+1}], v[{R}:{R+1}], v[{R+2}:{R+3}]"); e(f"v_pk_add_f32 v[{R+4}:{R+5}], v[{R+4}:{R+5}], v[{R+6}:{R+7}]")
        e(f"v_pk_add_f32 v[{R}:{R+1}], v[{R}:{R+1}], v[{R+4}:{R+5}]")
        e(f"v_cvt_pk_bf16_f32 v{R}, v{R}, v{R+1}")
        e("s_mov_b64 exec, 0xff")
        e(f"buffer_store_dword v{R}, v{V_WA}, s[{OUT}:{OUT+3}], s{self.S_OUT} offen")
        e("s_mov_b64 exec, -1")
        self.label(done)
        self.stamp(10); self.stamp_flush(); e("s_endpgm")

    def tail_young(self):
        e = self.e
        if self.seq and self.seq[0] == "HOLD": self.seq.pop(0)
        self.free = self.free[1:] + self.free[:1]
        while self.issue_next(): pass
        assert not self.seq
        F0, F1 = self.free[:2]
        PK = SR
        OPR = QR + 8
        e(f"v_mov_b32 v{PK+4}, s{S_NONCE}")
        self.wait("WA")
        for dd in range(8): self.perms(F0 + dd * 4, self.slot["WA"], dd)
        self.stamp(11)
        self.wait("WB")
        for dd in range(8): self.perms(F1 + dd * 4, self.slot["WB"], dd)
        self.stamp(9)
        self.lds_spin(F_OA, 2)
        e(f"ds_read_b128 v[{OPR}:{OPR+3}], v{HA[2]} offset:{OB}")
        e("s_waitcnt lgkmcnt(0)")
        for dd in range(8): self.mfma(OACC + dd * 4, OPR, F0 + dd * 4, None)
        e("s_barrier")
        self.stamp(1)
        e(f"ds_read_b128 v[{OPR+4}:{OPR+7}], v{HA[2]} offset:{OB+128}")
        e("s_waitcnt lgkmcnt(0)")
        for dd in (0, 4, 1, 5, 2, 6, 3, 7): self.mfma(OACC + dd * 4, OPR + 4, F1 + dd * 4, OACC + dd * 4)
        e("s_nop 4")
        for i in range(4): e(f"v_cndmask_b32 v{PK+i}, v{OACC+4*i}, v{OACC+16+4*i}, s[100:101]")
        for i in range(4): e(f"v_perm_b32 v{PK+i}, v{PK+i}, v{PK+4}, s{4+i}")
        e(f"buffer_store_dwordx4 v[{PK}:{PK+3}], v{HA[3]}, s[{WS}:{WS+3}], s98 offen sc1")
        self.stamp(10); self.stamp_flush(); e("s_endpgm")

    def body(self, young_first):
        e = self.e; isO = self.isO
        p = "o" if isO else "q"
        base_q, base_free = list(self.q), list(self.free)
        e("s_cmp_ge_u32 s3, 4"); e(f"s_cbranch_scc1 L_{p}_y")
        for old in (True, False):
            self.q, self.free, self.slot = list(base_q), list(base_free), {}
            self.old = old
            if old: order = ["0", "1", "2"] + (["A"] if isO else []) + ["3"]
            else: order = (["A"] if isO else []) + ["0", "1", "2"]
            self.seq = [x for t in order for x in (f"K{t}", f"V{t}")]
            if not old: self.label(f"L_{p}_y")
            if old:
                self.gate_loads()
                if isO and self.opt("gatefirst", 1):
                    self.nonce_duty(0); self.gate()
                while self.issue_next(): pass
                if not (isO and self.opt("gatefirst", 1)): self.gate()
            elif self.opt("noq", 0):
                while self.issue_next(): pass
            else:
                if isO and not self.opt("gatefirst", 1): self.nonce_duty(4)
                young_first()
                self.young_prefetch()
            self.wait_q()
            self.stamp(5)
            self.tiles()

    def nonce_duty(self, wave):
        e = self.e
        lab = self.newlab("non")
        e("s_xor_b32 s98, s2, 16"); e(f"s_xor_b32 s{S_T2}, s3, {wave}"); e(f"s_or_b32 s98, s98, s{S_T2}"); e("s_cmp_lg_u32 s98, 0"); e(f"s_cbranch_scc1 {lab}")
        e("s_setprio 3")
        e("v_lshlrev_b32 v26, 8, v0"); e("v_mov_b32 v27, 0"); e(f"s_mov_b32 s98, {hex(CT)}")
        e("s_mov_b32 exec_hi, 0")
        e(f"buffer_store_dword v27, v26, s[{WS}:{WS+3}], s98 offen sc1")
        e("s_waitcnt vmcnt(0)")
        e("s_or_b32 s98, s96, 1"); e("v_mov_b32 v26, s98")
        e("s_mov_b64 exec, 1")
        e(f"buffer_store_dword v26, off, s[{DBG}:{DBG+3}], 0 sc1")
        e("s_mov_b64 exec, -1")
        e("s_setprio 0")
        self.label(lab)

    def roleQ(self):
        e = self.e
        e("v_and_b32 v26, 1, v24"); e(f"v_lshlrev_b32 v{V_X}, 11, v26"); e(f"v_lshl_add_u32 v{V_X}, v25, 5, v{V_X}")
        e("v_bfe_u32 v26, v24, 2, 1"); e(f"v_lshl_add_u32 v{V_X}, v26, 4, v{V_X}")
        e("v_lshrrev_b32 v26, 3, v0"); e(f"v_lshlrev_b32 v{V_WA}, 16, v26"); e("v_and_b32 v26, 7, v0"); e(f"v_lshl_add_u32 v{V_WA}, v26, 4, v{V_WA}")
        e(f"s_and_b32 s{S_CG}, s{S_J}, 63"); e(f"s_lshl_b32 s{S_W}, s{S_CG}, 7"); e(f"s_lshl_b32 s{S_T1}, s3, 20"); e(f"s_add_u32 s{S_W}, s{S_W}, s{S_T1}")
        e(f"s_lshl_b32 s{S_T1}, s3, 8")
        e("s_waitcnt lgkmcnt(0)")
        e("s_cmp_ge_u32 s2, 128")
        e(f"s_cselect_b32 s{W1}, s64, s54"); e(f"s_cselect_b32 s{W1+1}, s65, s55"); e(f"s_mov_b32 s{W1+2}, 0x800000"); e(f"s_mov_b32 s{W1+3}, 0x20000")
        self.srd(XS, 48, 4096); self.srd(DBG, 72, 256)

        self.vm(f"buffer_load_dwordx4 v[{QR}:{QR+3}], v{V_X}, s[{XS}:{XS+3}], s{S_T1} offen", "x")
        self.vm(f"buffer_load_dwordx4 v[{QR+4}:{QR+7}], v{V_X}, s[{XS}:{XS+3}], s{S_T1} offen offset:128", "x")
        for u in range(2):
            for ee in range(8):
                r = RING[u] + ee * 4
                e(f"s_add_u32 s{S_T0}, s{S_W}, {(u*64+ee)*8192}")
                self.vm(f"buffer_load_dwordx4 v[{r}:{r+3}], v{V_WA}, s[{W1}:{W1+3}], s{S_T0} offen nt", u)
        self.vm(f"buffer_load_dword v{V_U1}, off, s[{DBG}:{DBG+3}], 0 sc1", "nn")
        self.srd(KB, 60, 0x4000000); self.srd(VB, 62, 0x4000000); self.srd(WS, 74, WS_SIZE); self.srd(OUT, 70, 4096)
        self.srd(KA, 50, 0x4000000); self.srd(VA, 52, 0x4000000); self.srd(W2, 66, 0x800000)
        e("s_cmp_ge_u32 s3, 4")
        e(f"s_cselect_b32 s{GT}, s56, s68"); e(f"s_cselect_b32 s{GT+1}, s57, s69"); e(f"s_movk_i32 s{GT+2}, 2048"); e(f"s_cselect_b32 s{GT+2}, 0x800000, s{GT+2}"); e(f"s_mov_b32 s{GT+3}, 0x20000")
        e(f"s_lshl_b32 s{S_AB}, s{S_IDX}, 4"); e(f"s_add_u32 s{S_AB}, s{S_AB}, s3"); e(f"s_add_u32 s{S_AB}, s{S_AB}, 12"); e(f"s_lshl_b32 s{S_AB}, s{S_AB}, 12")
        e(f"s_lshl_b32 s{S_T0}, s{S_GRP}, 23"); e(f"s_add_u32 s{S_AB}, s{S_AB}, s{S_T0}"); e(f"s_add_u32 s{S_AB}, s{S_AB}, 0x700000")
        self.common_setup()
        if self.stamps: e("s_mov_b64 s[48:49], s[96:97]")
        e("s_barrier")
        self.wait(0)
        self.perm_mfma8(RING[0], QR, True, False)
        e("v_bfe_u32 v26, v0, 3, 1"); e("v_lshlrev_b32 v27, 9, v26"); e("v_and_b32 v26, 7, v0"); e("v_lshl_add_u32 v27, v26, 6, v27")
        e(f"s_lshl_b32 s{S_T0}, s3, 10"); e(f"s_add_u32 s{S_T0}, s{S_T0}, {CO}"); e(f"v_add_u32 v27, s{S_T0}, v27")
        e("v_mov_b32 v28, 1")
        self.wait(1)
        self.perm_mfma8(RING[1], QR + 4, False, False)
        e("s_mov_b32 exec_lo, 0xff0000ff"); e("s_mov_b32 exec_hi, 0")
        e("s_nop 1")
        for dd in range(8):
            e(f"ds_write_b64 v27, v[{OACC+dd*4}:{OACC+dd*4+1}] offset:{dd*8}")
        e("s_mov_b64 exec, 1")
        e(f"ds_add_u32 v{V_FLG}, v28 offset:{F_CNT - FLG}")
        e("s_mov_b64 exec, -1")
        def young_first():
            e("s_setprio 3")
            e("v_lshrrev_b32 v26, 5, v0"); e("v_lshlrev_b32 v27, 12, v26"); e("v_lshlrev_b32 v28, 14, v26")
            e("v_and_b32 v26, 31, v0"); e("v_lshl_add_u32 v27, v26, 4, v27"); e(f"v_add_u32 v27, {CO}, v27"); e("v_lshl_add_u32 v28, v26, 3, v28")
            e(f"s_lshr_b32 s{S_T0}, s{S_J}, 6"); e(f"s_lshl_b32 s{S_T0}, s{S_T0}, 15"); e(f"s_lshl_b32 s{S_T1}, s{S_CG}, 8")
            e(f"s_add_u32 s{S_T2}, s{S_T0}, s{S_T1}")
            self.wait("nn")
            self.get_nonce()
            self.lds_spin(F_CNT, 8)
            for p in range(8):
                e(f"ds_read_b128 v[{OACC+p*4}:{OACC+p*4+3}], v27 offset:{p*512}")
            e("s_waitcnt lgkmcnt(0)")
            for p in (4, 2, 1):
                for q in range(p):
                    for i in (0, 2):
                        e(f"v_pk_add_f32 v[{OACC+q*4+i}:{OACC+q*4+i+1}], v[{OACC+q*4+i}:{OACC+q*4+i+1}], v[{OACC+(q+p)*4+i}:{OACC+(q+p)*4+i+1}]")
            e(f"v_mov_b32 v{OACC+5}, s{S_NONCE}")
            e("s_nop 0")
            e(f"v_permlane32_swap_b32 v{OACC}, v{OACC+1}"); e(f"v_permlane32_swap_b32 v{OACC+2}, v{OACC+3}")
            e(f"v_add_f32 v{OACC}, v{OACC}, v{OACC+1}"); e(f"v_add_f32 v{OACC+2}, v{OACC+2}, v{OACC+3}")
            e(f"v_cvt_pk_bf16_f32 v{OACC+4}, v{OACC}, v{OACC+2}")
            e(f"s_and_b32 s{S_T0}, s3, 3"); e(f"s_lshl_b32 s{S_T0}, s{S_T0}, 4"); e(f"s_lshl_b64 exec, 0xffff, s{S_T0}")
            self.vm(f"buffer_store_dwordx2 v[{OACC+4}:{OACC+5}], v28, s[{WS}:{WS+3}], s{S_T2} offen sc1", "st")
            e("s_mov_b64 exec, -1")
            e("s_setprio 0")
            self.stamp(3)
        self.free = [RING[2], RING[3], RING[4], RING[0], RING[1]]
        self.body(young_first)

    def roleO(self):
        e = self.e
        e(f"s_lshl_b32 s{S_AB}, s{S_IDX}, 3"); e(f"s_add_u32 s{S_AB}, s{S_AB}, s3"); e(f"s_lshl_b32 s{S_AB}, s{S_AB}, 13"); e(f"s_add_u32 s{S_AB}, s{S_AB}, s{S_T0}")
        e(f"s_add_u32 s{S_AB}, s{S_AB}, 0x700000")
        self.common_setup()
        e("s_waitcnt lgkmcnt(0)")
        self.srd(XS, 48, 4096); self.srd(GT, 68, 2048); self.srd(KB, 60, 0x4000000); self.srd(VB, 62, 0x4000000)
        self.srd(KA, 50, 0x4000000); self.srd(VA, 52, 0x4000000); self.srd(WS, 74, WS_SIZE); self.srd(DBG, 72, 256)
        self.srd(W1, 56, 0x800000); self.srd(W2, 66, 0x800000)
        if self.stamps: e("s_mov_b64 s[48:49], s[96:97]")
        e("s_barrier")
        self.free = list(RING)
        self.body(lambda: None)

if __name__ == "__main__":
    out = sys.argv[1]
    st = "--stamps" in sys.argv
    opts = dict(a[2:].split("=") for a in sys.argv[2:] if a.startswith("--") and "=" in a)
    open(out, "w").write(G(stamps=st, opts=opts).build())
```

```python
import sys, struct, math
KNAME = "gated_mix__sliding_block_cached__gqa_block_cached__decode_kernel"
def f2u(x): return struct.unpack("<I", struct.pack("<f", x))[0]

QG, PO, PF, STAMP = 0, 0x100000, 0x600000, 0x800000
PO_BR = 0x100000
CT = 0x50000
WS_SIZE = 0x1000000
CM, CL, OB, FR, FLG, QOP, CO = 0, 512, 1024, 1280, 1792, 2048, 6656
F_CNT, F_QC, F_NON, F_AC, F_OA, F_OC, F_LT = [FLG + 4 * i for i in range(7)]
CO_BR, CO_W, CO_H = 33792, 4224, 528
LDS_SIZE = 74240
KB, VB, KA, VA, W1, W2, WS, XS, GT, OUT, DBG = 4, 8, 12, 16, 20, 24, 28, 32, 36, 40, 44
S_SELLO, S_SELHI, S_C, S_NONCE, S_GRP, S_IDX, S_SPLIT, S_BB, S_AB = 76, 77, 78, 79, 80, 81, 82, 83, 84
S_T0, S_T1, S_T2, S_T3, S_CNT, S_J, S_W = 85, 86, 87, 88, 89, 90, 91
S_POB, S_POA, S_POA2, S_CG = 92, 93, 94, 95
S_OK, S_QA, S_QB = 99, 100, 101
S_DX, S_DB, S_CA = 99, 100, 101
S_BIAS = {'X': 70, 'Y': 71, 'Z': 75, 'U': 97}
V_K0, V_K1, V_L0, V_L1 = 1, 2, 3, 4
V_COW, V_MLW, V_QR, V_COR, V_MLR, V_FLG, V_QW, V_X, V_WA, V_GA, V_GB = 5, 6, 7, 8, 9, 10, 11, 12, 13, 14, 15
V_PO = V_X
HA = [None, 1, 2, 4, 11]
WSET = [16, 20]
T = list(range(24, 32))
OACC, QR, SR, PR, V_M, V_LS, V_U0, V_U1 = 32, 64, 80, 88, 92, 93, 94, 95
RING = [96 + 32 * i for i in range(5)]
SPIN_MAX = 20000
NEGMAX = "0xff7fffff"

class G:
    def __init__(self, stamps=False, opts=None):
        self.L = []; self.stamps = stamps; self.lab = 0
        self.o = opts or {}
        self.q = []
    def opt(self, k, d): return int(self.o.get(k, d))
    def e(self, s): self.L.append("    " + s)
    def label(self, s): self.L.append(s + ":")
    def newlab(self, p):
        self.lab += 1; return f"L_{p}{self.lab}"
    def srd(self, d, b, n):
        self.e(f"s_mov_b32 s{d}, s{b}"); self.e(f"s_mov_b32 s{d+1}, s{b+1}")
        self.e(f"s_mov_b32 s{d+2}, {hex(n)}"); self.e(f"s_mov_b32 s{d+3}, 0x20000")
    def stamp(self, i):
        if self.stamps: self.e(f"s_memrealtime s[{48+2*i}:{49+2*i}]")
    def stamp_flush(self):
        if not self.stamps: return
        e = self.e
        e("s_waitcnt lgkmcnt(0)")
        e("s_lshl_b32 s92, s2, 3"); e("s_add_u32 s92, s92, s3"); e("s_lshl_b32 s92, s92, 7"); e(f"s_add_u32 s92, s92, {hex(STAMP)}")
        e("s_mov_b64 exec, 1")
        for i in range(12):
            e(f"v_mov_b32 v16, s{48+2*i}"); e(f"v_mov_b32 v17, s{49+2*i}")
            e(f"buffer_store_dwordx2 v[16:17], off, s[{WS}:{WS+3}], s92 offset:{i*8}")
            e("s_nop 0")
        e("s_mov_b64 exec, -1")
    def vm(self, s, tag):
        self.e(s); self.q.append(tag)
    def wait(self, tag, keep=0):
        idx = [i for i, t in enumerate(self.q) if t == tag]
        if not idx: return
        last = idx[len(idx) - 1 - keep]
        n = len(self.q) - 1 - last
        assert n <= 63
        self.e(f"s_waitcnt vmcnt({n})")
        self.q = self.q[last + 1:]
    def lds_inc(self, off):
        e = self.e
        e(f"v_mov_b32 v{T[1]}, 1")
        e("s_mov_b64 exec, 1"); e(f"ds_add_u32 v{V_FLG}, v{T[1]} offset:{off - FLG}"); e("s_mov_b64 exec, -1")
    def issue_next(self):
        if not self.seq or not self.free: return False
        if self.seq[0] == "HOLD": return False
        u = self.seq.pop(0); r = self.free.pop(0); self.slot[u] = r
        ld = lambda j, v, srd, so, off: self.vm(f"buffer_load_dwordx4 v[{r+j*4}:{r+j*4+3}], v{v}, s[{srd}:{srd+3}], s{so} offen offset:{off} nt", u)
        if u[0] == "W":
            srd = self.WOA if u == "WA" else W2
            for ee in range(8):
                off = ((ee & 3) * 8 + (ee >> 2)) * 2048
                self.e(f"s_add_u32 s{S_T0}, s{S_W}, {off & ~4095}")
                pw = self.opt("pwb", 0) if (u == "WB" or self.opt("whold", 1) == 2) else 0
                if pw: self.e(f"s_waitcnt vmcnt({pw - 1})")
                ld(ee, V_WA, srd, S_T0, off & 4095)
            return True
        n = 4 if u[1] in "Ha" else 8
        if u[1] in "Aa": srd, so = (KA if u[0] == "K" else VA), S_AB
        elif u[1] in "XYZU": srd, so = (KB if u[0] == "K" else VB), S_DX
        else:
            srd, so = (KB if u[0] == "K" else VB), S_T0
            self.e(f"s_add_u32 s{S_T0}, s{S_BB}, {hex(int(u[1]) * 0x200000)}")
        for j in range(n):
            dy = u[1] in "XYZU"
            if u[0] == "K": ld(j, (V_GA if dy else V_K1) if j >= 4 else V_K0, srd, so, (j & 3) * 64)
            else: ld(j, (V_GB if dy else V_L1) if j >= 4 else V_L0, srd, so, (j & 3) * 1024)
        return True
    def release(self, u): self.free.append(self.slot[u])
    def perm1(self, dst, src, dd, p):
        sel = S_SELHI if dd & 1 else S_SELLO
        self.e(f"v_perm_b32 v{dst+p}, v{src+(2*p+1)*4+(dd>>1)}, v{src+(2*p)*4+(dd>>1)}, s{sel}")
    def perms(self, dst, src, dd):
        for p in range(4): self.perm1(dst, src, dd, p)
    def mfma(self, d, a, b, c):
        cs = "0" if c is None else f"v[{c}:{c+3}]"
        self.e(f"v_mfma_f32_16x16x32_bf16 v[{d}:{d+3}], v[{a}:{a+3}], v[{b}:{b+3}], {cs}")
    def perm_mfma8(self, src, other, first, w_is_a, acc=OACC):
        def mm(dd):
            w = WSET[dd & 1]; d = acc + dd * 4
            if w_is_a: self.mfma(d, w, other, None if first else d)
            else: self.mfma(d, other, w, None if first else d)
        self.perms(WSET[0], src, 0)
        for dd in range(1, 8):
            self.perms(WSET[dd & 1], src, dd)
            mm(dd - 1)
        self.e("s_nop 0")
        mm(7)
    def pv_last(self, tag, src, dst):
        self.wait(tag, keep=2)
        for p in range(3):
            for dd in range(8): self.perm1(dst + dd * 4, src, dd, p)
        self.wait(tag)
        self.stamp(6)
        for dd in range(8):
            self.perm1(dst + dd * 4, src, dd, 3)
            if dd >= 2: self.mfma(OACC + (dd-2) * 4, dst + (dd-2) * 4, PR, OACC + (dd-2) * 4)
        self.e("s_nop 0")
        for dd in (6, 7): self.mfma(OACC + dd * 4, dst + dd * 4, PR, OACC + dd * 4)
    def qk(self, r, half=False, bias=None):
        if bias is not None:
            for i in range(4): self.e(f"v_mov_b32 v{SR+4+i}, s{bias}")
            self.e("s_nop 0")
        for jj in range(4):
            self.mfma(SR, r + jj * 4, QR + jj * 4, None if jj == 0 else SR)
            if not half: self.mfma(SR + 4, r + 16 + jj * 4, QR + jj * 4, None if (jj == 0 and bias is None) else SR + 4)
        if half:
            for i in range(4): self.e(f"v_mov_b32 v{SR+4+i}, {NEGMAX}")
    def xlane(self, op, t, u, kinds):
        for k in kinds:
            self.e(f"v_mov_b32 v{u}, v{t}"); self.e("s_nop 1")
            self.e(f"v_permlane{k}_swap_b32 v{t}, v{u}")
            self.e(f"{op} v{t}, v{t}, v{u}")
    def dp(self, op, r, ror): self.e(f"{op}_dpp v{r}, v{r}, v{r} row_ror:{ror} row_mask:0xf bank_mask:0xf")
    def dpp(self, op, t, rors):
        for r in rors:
            self.e("s_nop 1"); self.dp(op, t, r)
    def tilemax(self, first):
        e = self.e; t, u = T[0], T[1]; S = SR
        e(f"v_max3_f32 v{t}, v{S}, v{S+1}, v{S+2}"); e(f"v_max3_f32 v{t}, v{t}, v{S+3}, v{S+4}")
        e(f"v_max3_f32 v{t}, v{t}, v{S+5}, v{S+6}")
        if first: e(f"v_max_f32 v{t}, v{t}, v{S+7}")
        else: e(f"v_max3_f32 v{t}, v{t}, v{S+7}, v{V_M}")
        self.xlane("v_max_f32", t, u, (16, 32))
    def rescale(self, al):
        for i in range(16):
            self.e(f"v_pk_mul_f32 v[{OACC+2*i}:{OACC+2*i+1}], v[{OACC+2*i}:{OACC+2*i+1}], v[{al}:{al+1}] op_sel_hi:[1,0]")
    def softmax_rest(self, first, V_M=V_M, V_LS=V_LS):
        e = self.e; t, u, mc, al = T[0], T[1], T[2], T[4]; S = SR
        e(f"v_mul_f32 v{mc}, s{S_C}, v{t}")
        if not first:
            e(f"v_fma_f32 v{al}, v{V_M}, s{S_C}, -v{mc}")
            e(f"v_exp_f32 v{al}, v{al}")
        e(f"v_mov_b32 v{V_M}, v{t}")
        for i in range(8): e(f"v_fma_f32 v{S+i}, v{S+i}, s{S_C}, -v{mc}")
        for i in range(8): e(f"v_exp_f32 v{S+i}, v{S+i}")
        if not first: self.rescale(al)
        else: e("s_nop 0")
        e(f"v_add_f32 v{t}, v{S}, v{S+1}"); e(f"v_add_f32 v{u}, v{S+2}, v{S+3}")
        e(f"v_add_f32 v{t}, v{t}, v{S+4}"); e(f"v_add_f32 v{u}, v{u}, v{S+5}")
        e(f"v_add_f32 v{t}, v{t}, v{S+6}"); e(f"v_add_f32 v{u}, v{u}, v{S+7}")
        for p in range(4): e(f"v_cvt_pk_bf16_f32 v{PR+p}, v{S+2*p}, v{S+2*p+1}")
        e(f"v_add_f32 v{t}, v{t}, v{u}")
        if first: e(f"v_mov_b32 v{V_LS}, v{t}")
        else: e(f"v_fma_f32 v{V_LS}, v{V_LS}, v{al}, v{t}")
    def common_scale(self, tmp, hook, rescale_only):
        e = self.e
        e("s_mov_b64 exec, 0xff")
        e(f"ds_write_b32 v{V_MLW}, v{T[0]} offset:{CM + 256}")
        e("s_mov_b64 exec, -1")
        e("s_waitcnt lgkmcnt(0)")
        e("s_barrier")
        e(f"ds_read_b128 v[{tmp}:{tmp+3}], v{V_U0} offset:{CM + 256}")
        e(f"ds_read_b128 v[{tmp+4}:{tmp+7}], v{V_U0} offset:{CM + 256 + 16}")
        e(f"ds_read_b128 v[{tmp+8}:{tmp+11}], v{V_MLR} offset:{CM + 256}")
        e(f"ds_read_b128 v[{tmp+12}:{tmp+15}], v{V_MLR} offset:{CM + 256 + 16}")
        if hook: hook()
        e("s_waitcnt lgkmcnt(2)")
        t = T[0]
        e(f"v_max3_f32 v{t}, v{tmp}, v{tmp+1}, v{tmp+2}"); e(f"v_max3_f32 v{t}, v{t}, v{tmp+3}, v{tmp+4}")
        e(f"v_max3_f32 v{t}, v{t}, v{tmp+5}, v{tmp+6}"); e(f"v_max_f32 v{t}, v{t}, v{tmp+7}")
        if rescale_only:
            al = T[4]
            e(f"v_sub_f32 v{al}, v{V_M}, v{t}"); e(f"v_mul_f32 v{al}, s{S_C}, v{al}"); e(f"v_exp_f32 v{al}, v{al}"); e("s_nop 0")
            e(f"v_mul_f32 v{V_LS}, v{V_LS}, v{al}")
            self.rescale(al)
        else:
            self.softmax_rest(False)
            self.xlane("v_add_f32", V_LS, T[1], (16, 32))
        e("s_mov_b64 exec, 0xff")
        e(f"ds_write_b32 v{V_MLW}, v{V_LS} offset:{CL + 256}")
        e("s_mov_b64 exec, -1")
        e("s_waitcnt lgkmcnt(1)")
        m = tmp + 8
        e(f"v_max3_f32 v{tmp+18}, v{m}, v{m+1}, v{m+2}"); e(f"v_max3_f32 v{tmp+18}, v{tmp+18}, v{m+3}, v{m+4}")
        e(f"v_max3_f32 v{tmp+18}, v{tmp+18}, v{m+5}, v{m+6}"); e(f"v_max_f32 v{tmp+18}, v{tmp+18}, v{m+7}")
        e(f"v_mov_b32 v{tmp+19}, s{S_NONCE}")
        e(f"v_and_b32 v{tmp+16}, 1, v0"); e(f"v_cmp_eq_u32 vcc, 1, v{tmp+16}")
    def write_o(self, br, acc=OACC):
        e = self.e
        e("s_mov_b32 exec_lo, 0x00ff00ff"); e("s_mov_b32 exec_hi, 0x00ff00ff")
        for dd in range(8):
            e(f"ds_write_b128 v{V_COW}, v[{acc+dd*4}:{acc+dd*4+3}] offset:{br*CO_BR + dd*16}")
        e("s_mov_b64 exec, -1")
    def read_q(self, br):
        for jj in range(4):
            self.e(f"ds_read_b128 v[{QR+jj*4}:{QR+jj*4+3}], v{V_QR} offset:{br*2176 + jj*64}")
    def o_publish(self, R, R2):
        e = self.e
        l = R + 20
        e(f"ds_read_b128 v[{l}:{l+3}], v{V_MLR} offset:{CL + 256}"); e(f"ds_read_b128 v[{l+4}:{l+7}], v{V_MLR} offset:{CL + 256 + 16}")
        for w in range(8):
            e(f"ds_read_b128 v[{R2+4*w}:{R2+4*w+3}], v{V_COR} offset:{CO_BR + w*CO_W}")
        P = R + 16
        pk = lambda d, x, y: e(f"v_pk_add_f32 v[{d}:{d+1}], v[{x}:{x+1}], v[{y}:{y+1}]")
        pk4 = lambda d, y: (pk(d, d, y), pk(d + 2, d + 2, y + 2))
        e("s_waitcnt lgkmcnt(8)")
        pk(l, l, l + 2); pk(l + 4, l + 4, l + 6); pk(l, l, l + 4)
        e("s_waitcnt lgkmcnt(6)")
        pk4(R2, R2 + 4)
        e(f"v_add_f32 v{l}, v{l}, v{l+1}")
        e("s_waitcnt lgkmcnt(4)")
        pk4(R2 + 8, R2 + 12)
        e(f"v_cndmask_b32 v{R+18}, v{R+18}, v{l}, vcc")
        e("s_waitcnt lgkmcnt(2)")
        pk4(R2 + 16, R2 + 20); pk4(R2, R2 + 8)
        e("s_waitcnt lgkmcnt(0)")
        pk4(R2 + 24, R2 + 28); pk4(R2 + 16, R2 + 24); pk4(R2, R2 + 16)
        e(f"v_cvt_pk_bf16_f32 v{P}, v{R2}, v{R2+1}"); e(f"v_cvt_pk_bf16_f32 v{P+1}, v{R2+2}, v{R2+3}")
        e("s_mov_b32 exec_hi, 0")
        self.vm(f"buffer_store_dwordx4 v[{P}:{P+3}], v{V_PO}, s[{WS}:{WS+3}], s{S_POB} offen sc1", "st")
        e("s_mov_b32 exec_hi, -1")
    def combine_a(self, R, hoff, P, na):
        e = self.e
        m, l, o = SR, WSET[0], R
        M, mc, A = R + 16, T[2], R + 20
        for i in range(na // 4):
            e(f"ds_read_b128 v[{m+4*i}:{m+4*i+3}], v{V_MLR} offset:{CM + hoff*32 + 16*i}")
        for i in range(na // 4):
            e(f"ds_read_b128 v[{l+4*i}:{l+4*i+3}], v{V_MLR} offset:{CL + hoff*32 + 16*i}")
        for w in range(4): e(f"ds_read_b128 v[{o+4*w}:{o+4*w+3}], v{V_COR} offset:{w*CO_W + hoff*CO_H}")
        e(f"v_mov_b32 v{P+3}, s{S_NONCE}")
        e(f"v_and_b32 v{M+1}, 1, v0"); e(f"v_cmp_eq_u32 vcc, 1, v{M+1}")
        e(f"s_waitcnt lgkmcnt({4 + na//4})")
        e(f"v_max3_f32 v{M}, v{m}, v{m+1}, v{m+2}"); e(f"v_max_f32 v{M}, v{M}, v{m+3}")
        if na == 8:
            e(f"v_max3_f32 v{M}, v{M}, v{m+4}, v{m+5}"); e(f"v_max3_f32 v{M}, v{M}, v{m+6}, v{m+7}")
        e(f"v_mul_f32 v{mc}, s{S_C}, v{M}")
        for w in range(na): e(f"v_fma_f32 v{m+w}, v{m+w}, s{S_C}, -v{mc}")
        for w in range(na): e(f"v_exp_f32 v{m+w}, v{m+w}")
        e("s_waitcnt lgkmcnt(0)")
        for w in range(na):
            if w == 4:
                for w2 in range(4): e(f"ds_read_b128 v[{o+4*w2}:{o+4*w2+3}], v{V_COR} offset:{(4+w2)*CO_W + hoff*CO_H}")
                e("s_waitcnt lgkmcnt(0)")
            op = "v_mul_f32" if w == 0 else "v_fmac_f32"
            for i in range(4): e(f"{op} v{A+i}, v{m+w}, v{o+4*(w%4)+i}")
            e(f"{op} v{M+2}, v{m+w}, v{l+w}")
        e(f"v_cvt_pk_bf16_f32 v{P}, v{A}, v{A+1}"); e(f"v_cvt_pk_bf16_f32 v{P+1}, v{A+2}, v{A+3}")
        e(f"v_cndmask_b32 v{P+2}, v{M}, v{M+2}, vcc")
    def precombine_b(self, R, hoff):
        e = self.e
        m, l, o = SR, WSET[0], R
        M, mc, A = R + 16, T[2], R + 20
        e(f"ds_read_b128 v[{m}:{m+3}], v{V_MLR} offset:{CM + 256 + hoff*32}")
        e(f"ds_read_b128 v[{l}:{l+3}], v{V_MLR} offset:{CL + 256 + hoff*32}")
        for w in range(4): e(f"ds_read_b128 v[{o+4*w}:{o+4*w+3}], v{V_COR} offset:{CO_BR + w*CO_W + hoff*CO_H}")
        e("s_waitcnt lgkmcnt(5)")
        e(f"v_max3_f32 v{M}, v{m}, v{m+1}, v{m+2}"); e(f"v_max_f32 v{M}, v{M}, v{m+3}")
        e(f"v_mul_f32 v{mc}, s{S_C}, v{M}")
        for w in range(4): e(f"v_fma_f32 v{m+w}, v{m+w}, s{S_C}, -v{mc}")
        for w in range(4): e(f"v_exp_f32 v{m+w}, v{m+w}")
        e("s_waitcnt lgkmcnt(0)")
        for w in range(4):
            op = "v_mul_f32" if w == 0 else "v_fmac_f32"
            for i in range(4): e(f"{op} v{A+i}, v{m+w}, v{o+4*w+i}")
            e(f"{op} v{M+2}, v{m+w}, v{l+w}")
        e("s_mov_b32 exec_hi, 0")
        e(f"ds_write_b128 v{V_COR}, v[{A}:{A+3}] offset:{CO_BR + hoff*CO_H}")
        e("s_mov_b64 exec, 1")
        e(f"ds_write_b32 v{V_MLR}, v{M} offset:{CM + 256 + hoff*32}")
        e(f"ds_write_b32 v{V_MLR}, v{M+2} offset:{CL + 256 + hoff*32}")
        e("s_mov_b64 exec, -1")
    def o_publish5(self, R, R2):
        e = self.e
        m, l = R, R + 8
        e(f"ds_read_b32 v{m}, v{V_MLR} offset:{CM + 256}"); e(f"ds_read_b128 v[{m+4}:{m+7}], v{V_MLR} offset:{CM + 256 + 16}")
        for k, w in enumerate((0, 4, 5, 6, 7)):
            e(f"ds_read_b128 v[{R2+4*k}:{R2+4*k+3}], v{V_COR} offset:{CO_BR + w*CO_W}")
        e(f"ds_read_b32 v{l}, v{V_MLR} offset:{CL + 256}"); e(f"ds_read_b128 v[{l+4}:{l+7}], v{V_MLR} offset:{CL + 256 + 16}")
        P = R + 16; M = R + 18; mc = T[2]; A = R + 20; Ls = R + 1
        ms = [m, m + 4, m + 5, m + 6, m + 7]; ls = [l, l + 4, l + 5, l + 6, l + 7]
        e("s_waitcnt lgkmcnt(7)")
        e(f"v_max3_f32 v{M}, v{m}, v{m+4}, v{m+5}"); e(f"v_max3_f32 v{M}, v{M}, v{m+6}, v{m+7}")
        e(f"v_mul_f32 v{mc}, s{S_C}, v{M}")
        for r in ms: e(f"v_fma_f32 v{r}, v{r}, s{S_C}, -v{mc}")
        for r in ms: e(f"v_exp_f32 v{r}, v{r}")
        e("s_waitcnt lgkmcnt(2)")
        for k, r in enumerate(ms):
            b = r & ~1; sel = f"op_sel:[0,{r & 1}" ; hi = f"op_sel_hi:[1,{r & 1}"
            for h in range(2):
                if k == 0: e(f"v_pk_mul_f32 v[{A+2*h}:{A+2*h+1}], v[{R2+2*h}:{R2+2*h+1}], v[{b}:{b+1}] {sel}] {hi}]")
                else: e(f"v_pk_fma_f32 v[{A+2*h}:{A+2*h+1}], v[{R2+4*k+2*h}:{R2+4*k+2*h+1}], v[{b}:{b+1}], v[{A+2*h}:{A+2*h+1}] {sel},0] {hi},1]")
        e("s_waitcnt lgkmcnt(0)")
        for k in range(5): e(f"{'v_mul_f32' if k == 0 else 'v_fmac_f32'} v{Ls}, v{ms[k]}, v{ls[k]}")
        e(f"v_cvt_pk_bf16_f32 v{P}, v{A}, v{A+1}"); e(f"v_cvt_pk_bf16_f32 v{P+1}, v{A+2}, v{A+3}")
        e(f"v_cndmask_b32 v{M}, v{M}, v{Ls}, vcc")
        e("s_mov_b32 exec_hi, 0")
        self.vm(f"buffer_store_dwordx4 v[{P}:{P+3}], v{V_PO}, s[{WS}:{WS+3}], s{S_POB} offen sc1", "st")
        e("s_mov_b32 exec_hi, -1")
    def write_ml(self):
        e = self.e
        self.xlane("v_add_f32", V_LS, T[1], (16, 32))
        e("s_mov_b64 exec, 0xff")
        e(f"ds_write_b32 v{V_MLW}, v{V_M} offset:{CM + 256}")
        e(f"ds_write_b32 v{V_MLW}, v{V_LS} offset:{CL + 256}")
        e("s_mov_b64 exec, -1")
    def a_tile(self, t):
        e = self.e
        uk, uv = "K" + t, "V" + t
        half = t == "a"
        self.read_q(0)
        self.wait(uk)
        e("s_waitcnt lgkmcnt(0)")
        acc = self.slot[uk]
        self.qk(acc, half)
        self.read_q(1)
        e("s_nop 3")
        self.tilemax(True); self.softmax_rest(True, T[5], T[6])
        self.xlane("v_add_f32", T[6], T[1], (16, 32))
        e("s_mov_b64 exec, 0xff")
        e(f"ds_write_b32 v{V_MLW}, v{T[5]} offset:{CM}")
        e(f"ds_write_b32 v{V_MLW}, v{T[6]} offset:{CL}")
        e("s_mov_b64 exec, -1")
        if half:
            for i in range(16): e(f"v_mov_b32 v{self.slot[uv]+16+i}, 0")
        self.wait(uv)
        self.perm_mfma8(self.slot[uv], PR, True, True, acc); self.release(uv)
        if not self.issue_next(): e("s_nop 3")
        self.write_o(0, acc); self.release(uk)
        self.lds_inc(F_AC)
        e("s_waitcnt lgkmcnt(0)")
        self.issue_next()
    def b_tile(self, t, first):
        e = self.e
        uk, uv = f"K{t}", f"V{t}"
        half = t == "H"
        self.wait(uk)
        self.qk(self.slot[uk], half, S_BIAS.get(t)); self.release(uk)
        if not self.issue_next(): e("s_nop 7")
        self.tilemax(first); self.softmax_rest(first)
        if half:
            for i in range(16): e(f"v_mov_b32 v{self.slot[uv]+16+i}, 0")
        self.wait(uv)
        self.perm_mfma8(self.slot[uv], PR, first, True); self.release(uv)
        self.issue_next()
    def check(self, tags):
        e = self.e; acc = T[7]
        e(f"v_xor_b32 v{acc}, s{S_NONCE}, v{tags[0]}")
        for t in tags[1:]:
            e(f"v_xor_b32 v{T[6]}, s{S_NONCE}, v{t}"); e(f"v_or_b32 v{acc}, v{acc}, v{T[6]}")
        e(f"v_cmp_ne_u32 vcc, 0, v{acc}")
    def poll(self, loads, tags, sleep=1):
        e = self.e
        lp, ok = self.newlab("poll"), self.newlab("ok")
        e(f"s_mov_b32 s{S_CNT}, 0")
        self.label(lp)
        for s in loads: e(s)
        e("s_waitcnt vmcnt(0)")
        self.check(tags)
        e(f"s_add_u32 s{S_CNT}, s{S_CNT}, 1")
        e(f"s_cbranch_vccz {ok}")
        e(f"s_cmp_gt_u32 s{S_CNT}, {SPIN_MAX}")
        e(f"s_cbranch_scc1 {ok}")
        if sleep: e(f"s_sleep {sleep}")
        e(f"s_branch {lp}")
        self.label(ok)
    def poll_missing(self, loads, tags, sleep, first=True, firstwait=0, watch=False, lpl=8, thr=None):
        e = self.e
        n = len(loads)
        lp, done, chk = self.newlab("pm"), self.newlab("pmdone"), self.newlab("pmchk")
        MK = [4, 6, 8, 10]
        e(f"s_mov_b32 s{S_CNT}, 0")
        watch = watch and self.opt("watch", 1)
        S_PREV, S_N = 12, 13
        if watch: e(f"s_mov_b32 s{S_PREV}, 0")
        if first:
            for s_ in loads: e(s_)
        if firstwait:
            e(f"s_waitcnt vmcnt({firstwait})"); e(f"s_branch {chk}")
        self.label(lp)
        e("s_waitcnt vmcnt(0)")
        self.label(chk)
        for i in range(n):
            tg = tags[i]
            if tg[0] == "emb":
                r = tg[1]
                e(f"v_perm_b32 v{T[6]}, v{r+1}, v{r}, s{S_SELLO}"); e(f"v_perm_b32 v{T[7]}, v{r+3}, v{r+2}, s{S_SELLO}")
                e(f"v_perm_b32 v{T[6]}, v{T[7]}, v{T[6]}, s{S_SELHI}")
                e(f"v_cmp_ne_u32 s[{MK[i]}:{MK[i]+1}], s{S_NONCE}, v{T[6]}")
            elif len(tg) == 1:
                e(f"v_cmp_ne_u32 s[{MK[i]}:{MK[i]+1}], s{S_NONCE}, v{tg[0]}")
            else:
                e(f"v_xor_b32 v{T[6]}, s{S_NONCE}, v{tg[0]}"); e(f"v_xor_b32 v{T[7]}, s{S_NONCE}, v{tg[1]}"); e(f"v_or_b32 v{T[6]}, v{T[6]}, v{T[7]}")
                e(f"v_cmp_ne_u32 s[{MK[i]}:{MK[i]+1}], 0, v{T[6]}")
        e(f"s_or_b64 vcc, s[{MK[0]}:{MK[0]+1}], s[{MK[1]}:{MK[1]+1}]")
        for i in range(2, n): e(f"s_or_b64 vcc, vcc, s[{MK[i]}:{MK[i]+1}]")
        e(f"s_cbranch_scc0 {done}")
        e(f"s_add_u32 s{S_CNT}, s{S_CNT}, 1")
        e(f"s_cmp_gt_u32 s{S_CNT}, {SPIN_MAX}"); e(f"s_cbranch_scc1 {done}")
        if watch:
            full = self.newlab("pmfull")
            e(f"s_bcnt1_i32_b64 s{S_N}, s[{MK[0]}:{MK[0]+1}]")
            for i in range(1, n):
                e(f"s_bcnt1_i32_b64 s{S_T3}, s[{MK[i]}:{MK[i]+1}]"); e(f"s_add_u32 s{S_N}, s{S_N}, s{S_T3}")
            e(f"s_cmp_le_u32 s{S_N}, {lpl * (thr if thr is not None else self.opt('wthr', 8))}"); e(f"s_cbranch_scc1 {full}")
            e(f"s_cmp_lt_u32 s{S_N}, s{S_PREV}"); e(f"s_cbranch_scc1 {full}")
            e(f"s_mov_b32 s{S_PREV}, s{S_N}")
            e(f"s_sleep {self.opt('wsleep', 2)}")
            for i in (range(n) if not self.opt("wrot", 0) else list(range(n))[::-1]):
                nx = self.newlab("pmw")
                e(f"s_ff1_i32_b64 s{S_T3}, s[{MK[i]}:{MK[i]+1}]")
                e(f"s_cmp_lt_i32 s{S_T3}, 0"); e(f"s_cbranch_scc1 {nx}")
                e(f"s_and_b32 s{S_T3}, s{S_T3}, {64 - lpl}"); e(f"s_lshl_b64 exec, {hex((1 << lpl) - 1)}, s{S_T3}")
                e(loads[i])
                e("s_mov_b64 exec, -1")
                e(f"s_branch {lp}")
                self.label(nx)
            self.label(full)
            e(f"s_mov_b32 s{S_PREV}, 0")
        if sleep: e(f"s_sleep {sleep}")
        for i in range(n):
            sk = self.newlab("pms")
            e(f"s_mov_b64 exec, s[{MK[i]}:{MK[i]+1}]")
            e(f"s_cbranch_execz {sk}")
            e(loads[i])
            self.label(sk)
        e("s_mov_b64 exec, -1")
        e(f"s_branch {lp}")
        self.label(done)
    def lds_spin(self, off, target):
        if self.opt("noq", 0): return
        e = self.e
        lp, ok = self.newlab("ls"), self.newlab("lsok")
        e(f"s_mov_b32 s{S_CNT}, 0")
        self.label(lp)
        e(f"ds_read_b32 v{T[7]}, v{V_FLG} offset:{off - FLG}")
        e("s_waitcnt lgkmcnt(0)")
        e(f"v_readfirstlane_b32 s{S_T3}, v{T[7]}")
        e(f"s_add_u32 s{S_CNT}, s{S_CNT}, 1")
        e(f"s_cmp_eq_u32 s{S_T3}, {target}")
        e(f"s_cbranch_scc1 {ok}")
        e(f"s_cmp_gt_u32 s{S_CNT}, {SPIN_MAX*50}")
        e(f"s_cbranch_scc1 {ok}")
        e("s_sleep 1")
        e(f"s_branch {lp}")
        self.label(ok)
    def get_nonce(self):
        e = self.e
        lp, ok = self.newlab("nn"), self.newlab("nnok")
        e(f"s_mov_b32 s{S_CNT}, 0")
        self.label(lp)
        e(f"v_readfirstlane_b32 s{S_NONCE}, v{V_U1}")
        e(f"s_add_u32 s{S_CNT}, s{S_CNT}, 1")
        e(f"s_cmp_lg_u32 s{S_NONCE}, 0")
        e(f"s_cbranch_scc1 {ok}")
        e(f"s_cmp_gt_u32 s{S_CNT}, {SPIN_MAX}")
        e(f"s_cbranch_scc1 {ok}")
        e(f"buffer_load_dword v{V_U1}, off, s[{DBG}:{DBG+3}], 0 sc1")
        e("s_waitcnt vmcnt(0)")
        e(f"s_branch {lp}")
        self.label(ok)
    def qpoll_loads(self, OACC=OACC):
        l = [f"buffer_load_dwordx4 v[{OACC}:{OACC+3}], v{V_L0}, s[{WS}:{WS+3}], s{S_QB} offen sc1"]
        if self.isO: l.append(f"buffer_load_dwordx4 v[{OACC+4}:{OACC+7}], v{V_L0}, s[{WS}:{WS+3}], s{S_QA} offen sc1")
        return l
    def qtags(self, OACC=OACC): return [OACC + 1, OACC + 3] + ([OACC + 5, OACC + 7] if self.isO else [])
    def qcommit(self, OACC=OACC):
        e = self.e
        e(f"v_mov_b32 v{OACC+1}, v{OACC+2}")
        if self.isO: e(f"v_mov_b32 v{OACC+5}, v{OACC+6}")
        e(f"v_mov_b32 v{T[0]}, s{S_NONCE}"); e(f"v_mov_b32 v{T[1]}, 1")
        e(f"ds_write_b64 v{V_QW}, v[{OACC}:{OACC+1}] offset:2176")
        if self.isO: e(f"ds_write_b64 v{V_QW}, v[{OACC+4}:{OACC+5}]")
        e("s_mov_b64 exec, 1")
        e(f"ds_write_b32 v{V_FLG}, v{T[0]} offset:{F_NON - FLG}")
        e(f"ds_add_u32 v{V_FLG}, v{T[1]} offset:{F_QC - FLG}")
        e("s_mov_b64 exec, -1")
        e(f"s_mov_b32 s{S_OK}, 1")
        self.stamp(4)
    def young_prefetch(self):
        e = self.e
        nonce_ready = not self.isO
        e(f"s_lshl_b32 s{S_QA}, s{S_GRP}, 12"); e(f"s_and_b32 s{S_T1}, s3, 3"); e(f"s_lshl_b32 s{S_T2}, s{S_T1}, 10"); e(f"s_add_u32 s{S_QA}, s{S_QA}, s{S_T2}")
        e(f"s_add_u32 s{S_QB}, s{S_QA}, 32768")
        e(f"s_mul_i32 s{S_T1}, s{S_T1}, 544"); e(f"v_add_u32 v{V_QW}, s{S_T1}, v{V_QW}")
        e(f"s_mov_b32 s{S_OK}, 0")
        lagk = self.opt("qlag", 0)
        first = self.opt("qfirsto" if self.isO else "qfirstq", 2 if self.isO else 1)
        k = 0; pend = []
        if not nonce_ready:
            pass
        def chk(k, mark):
            nonlocal nonce_ready
            B = OACC + 8 * (k % 4)
            skip = self.newlab("qskip")
            if nonce_ready:
                e(f"s_cmp_eq_u32 s{S_OK}, 1"); e(f"s_cbranch_scc1 {skip}")
            e(f"s_waitcnt vmcnt({len(self.q) - mark})")
            if not nonce_ready:
                self.get_nonce(); nonce_ready = True
            self.check(self.qtags(B))
            e(f"s_cbranch_vccnz {skip}")
            self.qcommit(B)
            self.label(skip)
        while True:
            if k >= first:
                sk = self.newlab("qps")
                if not nonce_ready and k == first:
                    e(f"buffer_load_dword v{V_U1}, off, s[{DBG}:{DBG+3}], 0 sc1")
                if k > first: e(f"s_cmp_eq_u32 s{S_OK}, 1"); e(f"s_cbranch_scc1 {sk}")
                for s_ in self.qpoll_loads(OACC + 8 * (k % 4)): e(s_)
                self.label(sk)
                pend.append((k, len(self.q)))
            ok = self.issue_next()
            if len(pend) > lagk: chk(*pend.pop(0))
            k += 1
            if not ok or not self.free: break
        for kk, mark in pend: chk(kk, mark)
        done = self.newlab("qd")
        e(f"s_cmp_eq_u32 s{S_OK}, 1"); e(f"s_cbranch_scc1 {done}")
        self.poll(self.qpoll_loads(), self.qtags(), sleep=1)
        self.qcommit()
        self.label(done)
    def wait_q(self):
        e = self.e
        self.lds_spin(F_QC, 4)
        if self.opt("noq", 0): return
        e(f"ds_read_b32 v{T[7]}, v{V_FLG} offset:{F_NON - FLG}")
        e("s_waitcnt lgkmcnt(0)")
        e(f"v_readfirstlane_b32 s{S_NONCE}, v{T[7]}")
    def gate_loads(self):
        e = self.e
        e(f"s_and_b32 s{S_T1}, s3, 1"); e(f"s_lshl_b32 s{S_T1}, s{S_T1}, 11")
        e(f"v_lshlrev_b32 v{V_X}, 5, v0")
        self.vm(f"buffer_load_dwordx4 v[{QR}:{QR+3}], v{V_X}, s[{XS}:{XS+3}], s{S_T1} offen", "g")
        self.vm(f"buffer_load_dwordx4 v[{QR+4}:{QR+7}], v{V_X}, s[{XS}:{XS+3}], s{S_T1} offen offset:16", "g")
        self.vm(f"buffer_load_dwordx4 v[{QR+8}:{QR+11}], v{V_X}, s[{GT}:{GT+3}], 0 offen", "g")
        self.vm(f"buffer_load_dwordx4 v[{QR+12}:{QR+15}], v{V_X}, s[{GT}:{GT+3}], 0 offen offset:16", "g")
    def gate(self):
        e = self.e
        self.wait("g")
        acc, a, b, c, d = T[0], T[1], T[2], T[3], T[4]
        e(f"v_mov_b32 v{acc}, 0")
        e(f"s_mov_b32 s{S_T0}, 0xffff0000")
        for i in range(8):
            x, g = QR + i, QR + 8 + i
            e(f"v_lshlrev_b32 v{a}, 16, v{x}"); e(f"v_lshlrev_b32 v{b}, 16, v{g}")
            e(f"v_and_b32 v{c}, s{S_T0}, v{x}"); e(f"v_and_b32 v{d}, s{S_T0}, v{g}")
            e(f"v_mul_f32 v{a}, v{a}, v{b}"); e(f"v_mul_f32 v{c}, v{c}, v{d}")
            e(f"v_cvt_pk_bf16_f32 v{a}, v{a}, v{c}")
            e(f"v_lshlrev_b32 v{b}, 16, v{a}"); e(f"v_and_b32 v{c}, s{S_T0}, v{a}")
            e(f"v_add_f32 v{acc}, v{acc}, v{b}"); e(f"v_add_f32 v{acc}, v{acc}, v{c}")
        self.dpp("v_add_f32", acc, (1, 2, 4, 8))
        self.xlane("v_add_f32", acc, a, (16, 32))
        e(f"v_cvt_pk_bf16_f32 v{acc}, v{acc}, v{acc}"); e(f"v_lshlrev_b32 v{acc}, 16, v{acc}")
        e(f"v_mul_f32 v{acc}, {hex(f2u(-math.log2(math.e)))}, v{acc}")
        e(f"v_exp_f32 v{acc}, v{acc}"); e("s_nop 0")
        e(f"v_add_f32 v{acc}, 1.0, v{acc}")
        e(f"v_rcp_f32 v{acc}, v{acc}"); e("s_nop 0")
        e(f"v_cvt_pk_bf16_f32 v{acc}, v{acc}, v{acc}"); e(f"v_lshlrev_b32 v{V_GA}, 16, v{acc}")
        e(f"v_sub_f32 v{acc}, 1.0, v{V_GA}")
        e(f"v_cvt_pk_bf16_f32 v{acc}, v{acc}, v{acc}"); e(f"v_lshlrev_b32 v{V_GB}, 16, v{acc}")

    def build(self):
        e = self.e; L = self.L
        L.append(f"; @launch grid=(256,1,1) block=(512,1,1) lds={LDS_SIZE}")
        L.append('.amdgcn_target "amdgcn-amd-amdhsa--gfx950"')
        L += [".text", f".globl {KNAME}", ".p2align 8", f".type {KNAME},@function", f"{KNAME}:"]
        e("s_cmp_ge_u32 s2, 256"); e("s_cbranch_scc1 L_end")
        e("s_load_dwordx16 s[48:63], s[0:1], 0")
        e("s_load_dwordx8 s[64:71], s[0:1], 64")
        e("s_load_dwordx4 s[72:75], s[0:1], 96")
        e("s_memrealtime s[96:97]")
        e("v_lshrrev_b32 v1, 6, v0")
        e("v_and_b32 v0, 63, v0")
        e("v_readfirstlane_b32 s3, v1")
        e(f"v_mov_b32 v{V_FLG}, {FLG}")
        e("v_mov_b32 v28, 0"); e("v_mov_b32 v29, 0"); e("v_mov_b32 v30, 0"); e("v_mov_b32 v31, 0")
        e("s_cmp_lg_u32 s3, 0"); e("s_cbranch_scc1 L_noinit")
        e(f"ds_write_b128 v{V_FLG}, v[28:31]"); e(f"ds_write_b128 v{V_FLG}, v[28:31] offset:16")
        self.label("L_noinit")
        e("v_and_b32 v24, 15, v0"); e("v_lshrrev_b32 v25, 4, v0")
        e("v_and_b32 v26, 3, v24"); e("v_lshlrev_b32 v26, 10, v26")
        e("v_lshrrev_b32 v27, 2, v24"); e("v_lshl_add_u32 v26, v27, 8, v26")
        e(f"v_lshl_add_u32 v{V_K0}, v25, 4, v26")
        e(f"v_add_u32 v{V_K1}, 4096, v{V_K0}")
        e(f"v_lshlrev_b32 v{V_L0}, 4, v0"); e(f"v_add_u32 v{V_L1}, 4096, v{V_L0}")
        e(f"s_lshr_b32 s{S_GRP}, s2, 5"); e(f"s_and_b32 s{S_IDX}, s2, 15"); e(f"s_and_b32 s{S_SPLIT}, s2, 31")
        e(f"s_lshl_b32 s{S_J}, s{S_GRP}, 4"); e(f"s_add_u32 s{S_J}, s{S_J}, s{S_IDX}")
        e(f"s_lshl_b32 s{S_T0}, s{S_GRP}, 23")
        e(f"s_lshl_b32 s{S_BB}, s{S_SPLIT}, 3"); e(f"s_add_u32 s{S_BB}, s{S_BB}, s3"); e(f"s_lshl_b32 s{S_BB}, s{S_BB}, 13"); e(f"s_add_u32 s{S_BB}, s{S_BB}, s{S_T0}")
        e("s_bitcmp1_b32 s2, 4"); e("s_cbranch_scc1 L_roleO")
        self.q = []; self.isO = False; self.WOA = GT
        self.roleQ()
        self.label("L_roleO")
        self.q = []; self.isO = True; self.WOA = W1
        self.roleO()
        self.label("L_end"); e("s_endpgm")
        L += ['.section .rodata,"a"', ".p2align 6", f".amdhsa_kernel {KNAME}"]
        for s in ["next_free_vgpr 256", "next_free_sgpr 102", "accum_offset 256", "group_segment_fixed_size 0", "kernarg_size 112",
                  "user_sgpr_count 2", "user_sgpr_kernarg_segment_ptr 1", "system_sgpr_workgroup_id_x 1"]:
            L.append("  .amdhsa_" + s)
        L.append(".end_amdhsa_kernel")
        return "\n".join(L) + "\n"

    def common_setup(self):
        e = self.e
        e(f"s_mov_b32 s{S_SELLO}, 0x05040100"); e(f"s_mov_b32 s{S_SELHI}, 0x07060302")
        e(f"s_mov_b32 s{S_C}, {hex(f2u(math.log2(math.e) / math.sqrt(128.0)))}")
        e(f"s_mul_i32 s{S_T0}, s3, {CO_W}"); e(f"s_add_u32 s{S_T0}, s{S_T0}, {CO}")
        e(f"v_mul_u32_u24 v{V_COW}, {CO_H}, v24"); e(f"v_lshl_add_u32 v{V_COW}, v25, 7, v{V_COW}"); e(f"v_add_u32 v{V_COW}, s{S_T0}, v{V_COW}")
        e(f"s_lshl_b32 s{S_T0}, s3, 2"); e(f"v_lshlrev_b32 v{V_MLW}, 5, v24"); e(f"v_add_u32 v{V_MLW}, s{S_T0}, v{V_MLW}")
        e("v_and_b32 v26, 7, v24"); e(f"v_lshlrev_b32 v{V_U0}, 5, v26")
        e(f"v_mul_u32_u24 v{V_QR}, 272, v26"); e(f"v_lshl_add_u32 v{V_QR}, v25, 4, v{V_QR}"); e(f"v_add_u32 v{V_QR}, {QOP}, v{V_QR}")
        e(f"s_mul_i32 s{S_T0}, s3, {CO_H}"); e(f"s_add_u32 s{S_T0}, s{S_T0}, {CO}"); e("v_and_b32 v26, 31, v0"); e(f"v_lshlrev_b32 v{V_COR}, 4, v26"); e(f"v_add_u32 v{V_COR}, s{S_T0}, v{V_COR}")
        e(f"s_lshl_b32 s{S_T0}, s3, 5"); e(f"v_mov_b32 v{V_MLR}, s{S_T0}")
        e("v_lshrrev_b32 v26, 5, v0"); e(f"v_mul_u32_u24 v{V_QW}, 272, v26"); e("v_and_b32 v26, 31, v0"); e(f"v_lshl_add_u32 v{V_QW}, v26, 3, v{V_QW}"); e(f"v_add_u32 v{V_QW}, {QOP}, v{V_QW}")
        e(f"s_lshl_b32 s{S_POB}, s{S_GRP}, 3"); e(f"s_add_u32 s{S_POB}, s{S_POB}, s3"); e(f"s_lshl_b32 s{S_POB}, s{S_POB}, 14"); e(f"s_add_u32 s{S_POB}, s{S_POB}, {hex(PO)}")
        e(f"s_lshl_b32 s{S_T1}, s{S_IDX}, 7"); e(f"s_add_u32 s{S_POA}, s{S_POB}, s{S_T1}"); e(f"s_add_u32 s{S_POA2}, s{S_POA}, {4*16384}")
        e(f"s_lshl_b32 s{S_T1}, s{S_SPLIT}, 7"); e(f"s_add_u32 s{S_POB}, s{S_POB}, s{S_T1}"); e(f"s_add_u32 s{S_POB}, s{S_POB}, {hex(PO_BR)}")

    def late_setup(self):
        e = self.e
        e(f"v_lshrrev_b32 v{T[0]}, 3, v0"); e(f"v_lshlrev_b32 v{V_PO}, 12, v{T[0]}"); e(f"v_and_b32 v{T[0]}, 7, v0"); e(f"v_lshl_add_u32 v{V_PO}, v{T[0]}, 4, v{V_PO}")
        if not self.old:
            e(f"v_lshrrev_b32 v{T[0]}, 4, v0"); e(f"v_lshlrev_b32 v{V_WA}, 12, v{T[0]}"); e(f"v_and_b32 v{T[0]}, 15, v0"); e(f"v_lshl_add_u32 v{V_WA}, v{T[0]}, 4, v{V_WA}")
            e(f"s_lshl_b32 s{S_W}, s{S_J}, 16"); e(f"s_and_b32 s{S_T1}, s3, 3"); e(f"s_lshl_b32 s{S_T1}, s{S_T1}, 8"); e(f"s_add_u32 s{S_W}, s{S_W}, s{S_T1}")
            if self.isO: e(f"s_add_u32 s{S_W}, s{S_W}, 1024")

    S_HO, S_PFR, S_OUT = 72, 74, 75
    def pre_tail(self):
        e = self.e
        if self.old:
            h = self.S_HO
            e(f"s_and_b32 s{S_T0}, s3, 1"); e(f"s_lshl_b32 s{S_T0}, s{S_T0}, 2"); e(f"s_lshr_b32 s{S_T1}, s{S_J}, 5"); e(f"s_add_u32 s{S_T0}, s{S_T0}, s{S_T1}")
            e(f"s_lshl_b32 s{h}, s{S_T0}, 17")
            e(f"s_and_b32 s{S_T1}, s{S_J}, 31"); e(f"s_lshl_b32 s{S_T1}, s{S_T1}, 12"); e(f"s_add_u32 s{h}, s{h}, s{S_T1}")
            e(f"s_add_u32 s{h}, s{h}, {hex(PO)}")
            e(f"s_and_b32 s{S_T0}, s3, 1"); e(f"s_lshl_b32 s{S_T0}, s{S_T0}, 6")
            e("v_and_b32 v26, 7, v0"); e(f"v_lshlrev_b32 v{HA[1]}, 3, v26"); e("v_lshrrev_b32 v26, 4, v0"); e(f"v_lshl_add_u32 v{HA[1]}, v26, 1, v{HA[1]}"); e(f"v_add_u32 v{HA[1]}, s{S_T0}, v{HA[1]}")
            if not self.isO:
                p = self.S_PFR
                e(f"s_lshr_b32 s{p}, s{S_J}, 1"); e(f"s_lshl_b32 s{p}, s{p}, 14"); e(f"s_lshl_b32 s{S_T2}, s3, 12"); e(f"s_add_u32 s{p}, s{p}, s{S_T2}")
                e(f"s_and_b32 s{S_T2}, s{S_J}, 1"); e(f"s_lshl_b32 s{S_T2}, s{S_T2}, 6"); e(f"s_add_u32 s{p}, s{p}, s{S_T2}"); e(f"s_add_u32 s{p}, s{p}, {hex(PF)}")
                e("v_lshrrev_b32 v26, 2, v0"); e(f"v_lshlrev_b32 v{HA[4]}, 7, v26"); e("v_and_b32 v26, 3, v0"); e(f"v_lshl_add_u32 v{HA[4]}, v26, 4, v{HA[4]}")
                e(f"v_lshlrev_b32 v{HA[2]}, 4, v26"); e("v_lshrrev_b32 v27, 4, v0"); e(f"v_lshl_add_u32 v{HA[2]}, v27, 2, v{HA[2]}")
                e(f"s_lshl_b32 s{S_T0}, s3, 6"); e(f"s_add_u32 s{S_T0}, s{S_T0}, {FR}"); e(f"v_add_u32 v{HA[2]}, s{S_T0}, v{HA[2]}")
                e("v_and_b32 v26, 7, v0"); e(f"v_lshlrev_b32 v{HA[3]}, 3, v26")
                e("v_lshrrev_b32 v27, 1, v26"); e(f"v_lshlrev_b32 v{V_WA}, 4, v27"); e("v_and_b32 v27, 1, v0"); e(f"v_lshl_add_u32 v{V_WA}, v27, 2, v{V_WA}")
                o = self.S_OUT
                e(f"s_lshr_b32 s{o}, s{S_J}, 3"); e(f"s_lshl_b32 s{o}, s{o}, 8")
                e(f"s_and_b32 s{S_T2}, s{S_J}, 3"); e(f"s_lshl_b32 s{S_T2}, s{S_T2}, 6"); e(f"s_add_u32 s{o}, s{o}, s{S_T2}")
                e(f"s_bfe_u32 s{S_T2}, s{S_J}, 0x10002"); e(f"s_lshl_b32 s{S_T2}, s{S_T2}, 3"); e(f"s_add_u32 s{o}, s{o}, s{S_T2}")
        else:
            e("v_bfe_u32 v26, v0, 2, 1"); e(f"v_lshlrev_b32 v{HA[2]}, 6, v26"); e("v_lshrrev_b32 v26, 4, v0"); e(f"v_lshl_add_u32 v{HA[2]}, v26, 4, v{HA[2]}")
            e("v_bfe_u32 v26, v0, 4, 1"); e(f"v_lshlrev_b32 v{HA[3]}, 19, v26"); e("v_bfe_u32 v26, v0, 3, 1"); e(f"v_lshl_add_u32 v{HA[3]}, v26, 14, v{HA[3]}")
            e("v_and_b32 v26, 7, v0"); e(f"v_lshl_add_u32 v{HA[3]}, v26, 4, v{HA[3]}")
            e("v_lshrrev_b32 v26, 5, v0"); e(f"v_lshl_add_u32 v{HA[3]}, v26, 15, v{HA[3]}")
            e(f"s_and_b32 s98, s3, 3"); e("s_lshl_b32 s98, s98, 16"); e(f"s_lshl_b32 s{S_T1}, s{S_J}, 7"); e(f"s_add_u32 s98, s98, s{S_T1}")
            e(f"s_add_u32 s98, s98, {hex(PF + (4 << 16 if self.isO else 0))}")
            e("s_mov_b32 s100, 0"); e("s_mov_b32 s101, -1")
            for i in range(4): e(f"s_mov_b32 s{4+i}, {hex(0x07060500 + i)}")

    def claim(self, tag):
        e = self.e
        e(f"v_mov_b32 v{V_U1}, 1"); e("s_mov_b64 exec, 1")
        self.vm(f"buffer_atomic_add v{V_U1}, off, s[{WS}:{WS+3}], s{S_CA} sc0", tag)
        e("s_mov_b64 exec, -1")

    def tiles(self):
        e = self.e; old = self.old
        self.read_q(1)
        self.late_setup()
        e("s_waitcnt lgkmcnt(0)")
        if old:
            for t in range(3): self.b_tile(str(t), t == 0)
            if self.isO: self.a_tile("A")
            self.last_tile("3"); return
        if self.isO: self.a_tile("A")
        e(f"s_lshl_b32 s{S_DB}, s{S_GRP}, 23"); e(f"s_lshl_b32 s{S_T0}, s3, 13"); e(f"s_add_u32 s{S_DB}, s{S_DB}, s{S_T0}"); e(f"s_add_u32 s{S_DB}, s{S_DB}, 0x600000")
        e(f"s_lshl_b32 s{S_CA}, s{S_GRP}, 2"); e(f"s_and_b32 s{S_T0}, s3, 3"); e(f"s_add_u32 s{S_CA}, s{S_CA}, s{S_T0}"); e(f"s_lshl_b32 s{S_CA}, s{S_CA}, 8"); e(f"s_add_u32 s{S_CA}, s{S_CA}, {hex(CT)}")
        names = ["X", "Y", "Z", "U"][:self.opt("maxdyn", 2)]; NF = self.opt("nf", 32)
        self.b_tile("0", True); self.claim("c0"); self.b_tile("1", False)
        prev = "2"; ends = []
        for i, nm in enumerate(names):
            lab = self.newlab("dend")
            self.wait(f"c{i}")
            e(f"v_readfirstlane_b32 s{S_DX}, v{V_U1}"); e("s_nop 0")
            e(f"s_cmp_ge_u32 s{S_DX}, {NF + 2*(32-NF)}"); e(f"s_cbranch_scc1 {lab}")
            ends.append((lab, prev, list(self.q), list(self.free), dict(self.slot)))
            e(f"s_sub_u32 s{S_T0}, s{S_DX}, {NF}"); e(f"s_lshr_b32 s{S_T1}, s{S_T0}, 1"); e(f"s_add_u32 s{S_T1}, s{S_T1}, {NF}"); e(f"s_lshl_b32 s{S_T1}, s{S_T1}, 16")
            e(f"s_and_b32 s{S_T0}, s{S_T0}, 1"); e(f"s_lshl_b32 s{S_T0}, s{S_T0}, 12"); e(f"s_add_u32 s{S_T1}, s{S_T1}, s{S_T0}")
            e(f"s_lshl_b32 s{S_T0}, s{S_DX}, 16")
            e(f"s_cmp_lt_u32 s{S_DX}, {NF}")
            e(f"s_cselect_b32 s{S_DX}, s{S_T0}, s{S_T1}"); e(f"s_cselect_b32 s{S_BIAS[nm]}, 0, 0xff7fffff"); e(f"s_cselect_b32 s{S_T0}, 0, 0x40000000")
            e(f"s_add_u32 s{S_DX}, s{S_DX}, s{S_DB}"); e(f"v_add_u32 v{V_GA}, s{S_T0}, v{V_K1}"); e(f"v_add_u32 v{V_GB}, s{S_T0}, v{V_L1}")
            assert not self.seq
            self.seq = ["K" + nm, "V" + nm]
            assert self.issue_next()
            if i + 1 < len(names): self.claim(f"c{i+1}")
            self.seq = ["HOLD"] + self.seq if False else self.seq
            self.b_tile(prev, False)
            prev = nm
        self.last_tile(prev)
        for lab, t, q, free, slot in ends:
            self.label(lab)
            self.q, self.free, self.slot, self.seq = q, free, slot, []
            self.last_tile(t)

    def last_tile(self, tl):
        e = self.e; old = self.old
        uk, uv = f"K{tl}", f"V{tl}"
        assert not self.seq
        if not old:
            wh = self.opt("whold", 1)
            self.seq = {0: ["WA", "WB"], 1: ["WA", "HOLD", "WB"], 2: ["HOLD", "WA", "WB"], 3: ["WA", "HOLD", "WB"]}[wh]
            while self.issue_next(): pass
        self.pre_tail()
        R = self.free[0]
        if old and self.isO:
            self.lds_spin(F_AC, 8)
            self.combine_a(R, 0, R + 24, 8); self.combine_a(R, 4, R + 28, 8)
        self.wait(uk)
        self.qk(self.slot[uk], False, S_BIAS.get(tl)); self.release(uk)
        R2 = self.free[1]
        if self.opt("nobm", 1) and not old and self.isO:
            self.lds_inc(F_LT); e("s_nop 3")
        else: e("s_nop 7")
        def hook():
            e("s_mov_b32 exec_hi, 0")
            self.vm(f"buffer_store_dwordx4 v[{R+24}:{R+27}], v{V_PO}, s[{WS}:{WS+3}], s{S_POA} offen sc1", "st")
            self.vm(f"buffer_store_dwordx4 v[{R+28}:{R+31}], v{V_PO}, s[{WS}:{WS+3}], s{S_POA2} offen sc1", "st")
            e("s_mov_b32 exec_hi, -1")
        hk = hook if (old and self.isO) else None
        self.tilemax(False)
        if self.opt("nobm", 1):
            if not old:
                if self.opt("yprio", 1): e("s_setprio 2")
            self.softmax_rest(False)
            self.write_ml()
            e(f"v_mov_b32 v{R+19}, s{S_NONCE}")
            self.stamp(2)
            if old:
                self.wait(uv)
                self.perm_mfma8(self.slot[uv], PR, False, True); self.release(uv)
                e("s_nop 3")
                self.write_o(1)
                self.lds_inc(F_OC)
                self.lds_spin(F_OC, 4)
                self.precombine_b(R2, 0); self.precombine_b(R2, 4)
                if hk:
                    self.lds_spin(F_LT, 4)
                    hk()
                self.stamp(6)
            else:
                self.pv_last(uv, self.slot[uv], R2); self.release(uv)
                self.write_o(1)
                if self.opt("whold", 1) == 3:
                    self.seq.pop(0); fr = self.free; self.free = [fr[-1]]; assert self.issue_next(); self.free = fr[:-1]
            e(f"v_and_b32 v{R+16}, 1, v0"); e(f"v_cmp_eq_u32 vcc, 1, v{R+16}")
            if not old and self.opt("ylow", 1): e("s_setprio 0")
            e("s_waitcnt lgkmcnt(0)")
            e("s_barrier")
            self.stamp(7)
            self.o_publish5(R, R2)
        else:
            if old:
                self.softmax_rest(False)
                self.wait(uv)
                self.perm_mfma8(self.slot[uv], PR, False, True); self.release(uv)
                self.xlane("v_add_f32", V_LS, T[1], (16, 32))
                e(f"v_mov_b32 v{T[0]}, v{V_M}")
                self.common_scale(R, hk, True)
                self.stamp(2); self.stamp(6)
            else:
                if self.opt("yprio", 1): e("s_setprio 2")
                self.common_scale(R, None, False)
                self.stamp(2)
                self.pv_last(uv, self.slot[uv], R2); self.release(uv)
            self.write_o(1)
            if not old and self.opt("ylow", 1): e("s_setprio 0")
            e("s_waitcnt lgkmcnt(0)")
            e("s_barrier")
            self.stamp(7)
            self.o_publish(R, R2)
        self.stamp(8)
        if self.opt("notail", 0):
            if not old:
                if self.seq and self.seq[0] == "HOLD": self.seq.pop(0)
                while self.issue_next(): pass
            e("s_waitcnt vmcnt(0)"); self.stamp(9); self.stamp(11); self.stamp(10); self.stamp_flush(); e("s_endpgm")
        elif old: self.tail_old()
        else: self.tail_young()

    def gather_reduce(self, D, n, gv, off):
        e = self.e; dp = self.dp
        M, u, mc, Ls = T[0], T[1], T[2], T[3]
        X = WSET[0]; E = RING[1]
        e(f"s_mov_b32 s{S_T0}, 0xffff0000")
        for i in range(n): e(f"v_mov_b32_dpp v{E+4*i}, v{D+4*i+2} quad_perm:[0,0,2,2] row_mask:0xf bank_mask:0xf")
        if n == 4: e(f"v_max3_f32 v{M}, v{E}, v{E+4}, v{E+8}"); e(f"v_max_f32 v{M}, v{M}, v{E+12}")
        else: e(f"v_max_f32 v{M}, v{E}, v{E+4}")
        up = [E + 16, E + 20, E + 24, E + 28]
        fill = []
        for i in range(n):
            r = up[i]
            fill += [f"v_lshlrev_b32 v{r}, 16, v{D+4*i}", f"v_and_b32 v{r+1}, s{S_T0}, v{D+4*i}", f"v_lshlrev_b32 v{r+2}, 16, v{D+4*i+1}", f"v_and_b32 v{r+3}, s{S_T0}, v{D+4*i+1}"]
        fill += [f"v_mov_b32_dpp v{E+4*i+2}, v{D+4*i+2} quad_perm:[1,1,3,3] row_mask:0xf bank_mask:0xf" for i in range(n)]
        def fl(k):
            for _ in range(k): e(fill.pop(0))
        fl(2)
        dp("v_max_f32", M, 8)
        e(f"v_mov_b32 v{u}, v{M}"); fl(2)
        e(f"v_permlane16_swap_b32 v{M}, v{u}"); e(f"v_max_f32 v{M}, v{M}, v{u}")
        e(f"v_mov_b32 v{u}, v{M}"); fl(2)
        e(f"v_permlane32_swap_b32 v{M}, v{u}"); e(f"v_max_f32 v{M}, v{M}, v{u}")
        e(f"v_mul_f32 v{mc}, s{S_C}, v{M}")
        for i in range(n): e(f"v_fma_f32 v{E+4*i}, v{E+4*i}, s{S_C}, -v{mc}")
        for i in range(n): e(f"v_exp_f32 v{E+4*i}, v{E+4*i}")
        fl(len(fill))
        for i in range(n):
            ee = E + 4 * i
            for h in range(2):
                if i == 0: e(f"v_pk_mul_f32 v[{X+2*h}:{X+2*h+1}], v[{up[i]+2*h}:{up[i]+2*h+1}], v[{ee}:{ee+1}] op_sel_hi:[1,0]")
                else: e(f"v_pk_fma_f32 v[{X+2*h}:{X+2*h+1}], v[{up[i]+2*h}:{up[i]+2*h+1}], v[{ee}:{ee+1}], v[{X+2*h}:{X+2*h+1}] op_sel_hi:[1,0,1]")
            e(f"{'v_mul_f32' if i == 0 else 'v_fmac_f32'} v{Ls}, v{E+4*i+2}, v{ee}")
        for r in (X, X + 1, X + 2, X + 3, Ls): dp("v_add_f32", r, 8)
        e(f"v_mov_b32 v{u}, v{Ls}")
        e(f"v_permlane16_swap_b32 v{X}, v{X+1}"); e(f"v_permlane16_swap_b32 v{X+2}, v{X+3}"); e(f"v_permlane16_swap_b32 v{Ls}, v{u}")
        e(f"v_add_f32 v{Ls}, v{Ls}, v{u}"); e(f"v_add_f32 v{X}, v{X}, v{X+1}"); e(f"v_add_f32 v{X+2}, v{X+2}, v{X+3}")
        e(f"v_mov_b32 v{u}, v{Ls}"); e("s_nop 0")
        e(f"v_permlane32_swap_b32 v{X}, v{X+2}"); e(f"v_permlane32_swap_b32 v{Ls}, v{u}")
        e(f"v_add_f32 v{Ls}, v{Ls}, v{u}"); e(f"v_add_f32 v{X}, v{X}, v{X+2}")
        e(f"v_rcp_f32 v{Ls}, v{Ls}")
        e(f"v_mul_f32 v{X}, v{X}, v{gv}")
        e(f"v_mul_f32 v{X}, v{X}, v{Ls}")
        e(f"v_cvt_pk_bf16_f32 v{X}, v{X}, v{X}")
        e("s_mov_b32 exec_lo, 0x00ff00ff"); e("s_mov_b32 exec_hi, 0x00ff00ff")
        e(f"ds_write_b16 v{HA[1]}, v{X} offset:{off}")
        e("s_mov_b64 exec, -1")

    def tail_old(self):
        e = self.e
        D = OACC
        mk = lambda D, v, sa, n, st: [f"buffer_load_dwordx4 v[{D+4*i}:{D+4*i+3}], v{v}, s[{WS}:{WS+3}], s{sa} offen offset:{st*i} sc1" for i in range(n)]
        la_, jn = self.newlab("ga"), self.newlab("gj")
        ps = self.opt("posleep", 0)
        aw = self.opt("aw", 0)
        if aw:
            for i in range(4): e(f"v_mov_b32 v{D+4*i+3}, 0")
        e("s_cmp_ge_u32 s3, 2"); e(f"s_cbranch_scc1 {la_}")
        e(f"s_add_u32 s{self.S_HO}, s{self.S_HO}, {hex(PO_BR)}")
        self.poll_missing(mk(D, V_L0, self.S_HO, 4, 1024), [[D + 4 * i + 3] for i in range(4)], ps, first=not aw, watch=True)
        self.stamp(9)
        self.gather_reduce(D, 4, V_GB, OB + 128)
        e(f"s_branch {jn}")
        self.label(la_)
        self.poll_missing(mk(D, V_L0, self.S_HO, 2, 1024), [[D + 4 * i + 3] for i in range(2)], ps, first=not aw, watch=True)
        self.stamp(9)
        self.gather_reduce(D, 2, V_GA, OB)
        self.lds_inc(F_OA)
        self.label(jn)
        e("s_waitcnt lgkmcnt(0)")
        e("s_barrier")
        if self.isO:
            self.stamp(10); self.stamp_flush(); e("s_endpgm"); return
        R = RING[0]
        e(f"s_mov_b32 s{S_SELLO}, 0x0c0c0400"); e(f"s_mov_b32 s{S_SELHI}, 0x05040100")
        self.stamp(1)
        lf = mk(R, HA[4], self.S_PFR, 2, 2048)
        if self.opt("fsleep0", 0): e(f"s_sleep {self.opt('fsleep0', 0)}")
        if self.opt("fw", 0):
            e(f"v_mov_b32 v{R}, 0"); e(f"v_mov_b32 v{R+4}, 0")
        self.poll_missing(lf, [["emb", R], ["emb", R + 4]], self.opt("pfsleep", 0), first=not self.opt("fw", 0), watch=True, lpl=4, thr=self.opt("fthr", self.opt("wthr", 8)))
        self.stamp(11)
        for i in range(8): e(f"v_and_b32 v{R+i}, 0xffffff00, v{R+i}")
        e(f"v_pk_add_f32 v[{R}:{R+1}], v[{R}:{R+1}], v[{R+4}:{R+5}]"); e(f"v_pk_add_f32 v[{R+2}:{R+3}], v[{R+2}:{R+3}], v[{R+6}:{R+7}]")
        e("s_nop 0")
        for ror in (4, 8):
            for i in range(4): self.dp("v_add_f32", R + i, ror)
        e("s_nop 0")
        e(f"v_permlane16_swap_b32 v{R}, v{R+1}"); e(f"v_permlane16_swap_b32 v{R+2}, v{R+3}")
        e(f"v_add_f32 v{R}, v{R}, v{R+1}"); e(f"v_add_f32 v{R+2}, v{R+2}, v{R+3}")
        e("s_nop 1")
        e(f"v_permlane32_swap_b32 v{R}, v{R+2}")
        e(f"v_add_f32 v{R}, v{R}, v{R+2}")
        e("s_mov_b32 exec_lo, 0x000f000f"); e("s_mov_b32 exec_hi, 0x000f000f")
        e(f"ds_write_b32 v{HA[2]}, v{R}")
        e("s_mov_b64 exec, -1")
        e("s_waitcnt lgkmcnt(0)")
        e("s_barrier")
        done = self.newlab("qdone")
        e("s_cmp_lg_u32 s3, 0"); e(f"s_cbranch_scc1 {done}")
        for w in range(4): e(f"ds_read_b64 v[{R+2*w}:{R+2*w+1}], v{HA[3]} offset:{FR + w*64}")
        e("s_waitcnt lgkmcnt(0)")
        e(f"v_pk_add_f32 v[{R}:{R+1}], v[{R}:{R+1}], v[{R+2}:{R+3}]"); e(f"v_pk_add_f32 v[{R+4}:{R+5}], v[{R+4}:{R+5}], v[{R+6}:{R+7}]")
        e(f"v_pk_add_f32 v[{R}:{R+1}], v[{R}:{R+1}], v[{R+4}:{R+5}]")
        e(f"v_cvt_pk_bf16_f32 v{R}, v{R}, v{R+1}")
        e("s_mov_b64 exec, 0xff")
        e(f"buffer_store_dword v{R}, v{V_WA}, s[{OUT}:{OUT+3}], s{self.S_OUT} offen")
        if self.opt("clean", 1):
            e(f"s_cmp_lg_u32 s{S_J}, 0"); e(f"s_cbranch_scc1 {done}")
            e(f"v_mov_b32 v{R+2}, 0")
            e("s_mov_b64 exec, 1")
            e(f"buffer_store_dword v{R+2}, off, s[{DBG}:{DBG+3}], 0 sc1")
        e("s_mov_b64 exec, -1")
        self.label(done)
        e("s_mov_b64 exec, -1")
        self.stamp(10); self.stamp_flush(); e("s_endpgm")

    def tail_young(self):
        e = self.e
        if self.seq and self.seq[0] == "HOLD": self.seq.pop(0)
        self.free = self.free[1:] + self.free[:1]
        while self.issue_next(): pass
        assert not self.seq
        if self.opt("ylow", 1): e("s_setprio 2")
        F0, F1 = self.free[:2]
        PK = SR
        OPR = QR + 8
        e(f"v_mov_b32 v{PK+4}, s{S_NONCE}")
        self.wait("WA")
        for dd in range(8): self.perms(F0 + dd * 4, self.slot["WA"], dd)
        self.stamp(11)
        self.wait("WB")
        for dd in range(8): self.perms(F1 + dd * 4, self.slot["WB"], dd)
        self.stamp(9)
        self.lds_spin(F_OA, 2)
        e(f"ds_read_b128 v[{OPR}:{OPR+3}], v{HA[2]} offset:{OB}")
        e("s_waitcnt lgkmcnt(0)")
        for dd in range(8): self.mfma(OACC + dd * 4, OPR, F0 + dd * 4, None)
        e("s_barrier")
        self.stamp(1)
        e(f"ds_read_b128 v[{OPR+4}:{OPR+7}], v{HA[2]} offset:{OB+128}")
        e("s_waitcnt lgkmcnt(0)")
        for dd in (0, 4, 1, 5, 2, 6, 3, 7): self.mfma(OACC + dd * 4, OPR + 4, F1 + dd * 4, OACC + dd * 4)
        e("s_nop 4")
        for i in range(4): e(f"v_cndmask_b32 v{PK+i}, v{OACC+4*i}, v{OACC+16+4*i}, s[100:101]")
        for i in range(4): e(f"v_perm_b32 v{PK+i}, v{PK+i}, v{PK+4}, s{4+i}")
        e(f"buffer_store_dwordx4 v[{PK}:{PK+3}], v{HA[3]}, s[{WS}:{WS+3}], s98 offen sc1")
        self.stamp(10); self.stamp_flush(); e("s_endpgm")

    def body(self, young_first):
        e = self.e; isO = self.isO
        p = "o" if isO else "q"
        base_q, base_free = list(self.q), list(self.free)
        e("s_cmp_ge_u32 s3, 4"); e(f"s_cbranch_scc1 L_{p}_y")
        for old in (True, False):
            self.q, self.free, self.slot = list(base_q), list(base_free), {}
            self.old = old
            if old: order = ["0", "1", "2"] + (["A"] if isO else []) + ["3"]
            else: order = (["A"] if isO else []) + ["0", "1", "2"]
            self.seq = [x for t in order for x in (f"K{t}", f"V{t}")]
            if not old: self.label(f"L_{p}_y")
            if old:
                self.gate_loads()
                if isO and self.opt("gatefirst", 1):
                    self.nonce_duty(0); self.gate()
                while self.issue_next(): pass
                if not (isO and self.opt("gatefirst", 1)): self.gate()
            elif self.opt("noq", 0):
                while self.issue_next(): pass
            else:
                if isO and not self.opt("gatefirst", 1): self.nonce_duty(4)
                young_first()
                self.young_prefetch()
            self.wait_q()
            self.stamp(5)
            self.tiles()

    def nonce_duty(self, wave):
        e = self.e
        lab = self.newlab("non")
        e("s_xor_b32 s98, s2, 16"); e(f"s_xor_b32 s{S_T2}, s3, {wave}"); e(f"s_or_b32 s98, s98, s{S_T2}"); e("s_cmp_lg_u32 s98, 0"); e(f"s_cbranch_scc1 {lab}")
        e("s_setprio 3")
        e("v_lshlrev_b32 v26, 8, v0"); e("v_mov_b32 v27, 0"); e(f"s_mov_b32 s98, {hex(CT)}")
        e("s_mov_b32 exec_hi, 0")
        e(f"buffer_store_dword v27, v26, s[{WS}:{WS+3}], s98 offen sc1")
        e("s_waitcnt vmcnt(0)")
        e("s_or_b32 s98, s96, 1"); e("v_mov_b32 v26, s98")
        e("s_mov_b64 exec, 1")
        e(f"buffer_store_dword v26, off, s[{DBG}:{DBG+3}], 0 sc1")
        e("s_mov_b64 exec, -1")
        e("s_setprio 0")
        self.label(lab)

    def roleQ(self):
        e = self.e
        e("v_and_b32 v26, 1, v24"); e(f"v_lshlrev_b32 v{V_X}, 11, v26"); e(f"v_lshl_add_u32 v{V_X}, v25, 5, v{V_X}")
        e("v_bfe_u32 v26, v24, 2, 1"); e(f"v_lshl_add_u32 v{V_X}, v26, 4, v{V_X}")
        e("v_lshrrev_b32 v26, 3, v0"); e(f"v_lshlrev_b32 v{V_WA}, 16, v26"); e("v_and_b32 v26, 7, v0"); e(f"v_lshl_add_u32 v{V_WA}, v26, 4, v{V_WA}")
        e(f"s_and_b32 s{S_CG}, s{S_J}, 63"); e(f"s_lshl_b32 s{S_W}, s{S_CG}, 7"); e(f"s_lshl_b32 s{S_T1}, s3, 20"); e(f"s_add_u32 s{S_W}, s{S_W}, s{S_T1}")
        e(f"s_lshl_b32 s{S_T1}, s3, 8")
        e("s_waitcnt lgkmcnt(0)")
        e("s_cmp_ge_u32 s2, 128")
        e(f"s_cselect_b32 s{W1}, s64, s54"); e(f"s_cselect_b32 s{W1+1}, s65, s55"); e(f"s_mov_b32 s{W1+2}, 0x800000"); e(f"s_mov_b32 s{W1+3}, 0x20000")
        self.srd(XS, 48, 4096); self.srd(DBG, 72, 256)

        self.vm(f"buffer_load_dwordx4 v[{QR}:{QR+3}], v{V_X}, s[{XS}:{XS+3}], s{S_T1} offen", "x")
        self.vm(f"buffer_load_dwordx4 v[{QR+4}:{QR+7}], v{V_X}, s[{XS}:{XS+3}], s{S_T1} offen offset:128", "x")
        for u in range(2):
            for ee in range(8):
                r = RING[u] + ee * 4
                e(f"s_add_u32 s{S_T0}, s{S_W}, {(u*64+ee)*8192}")
                self.vm(f"buffer_load_dwordx4 v[{r}:{r+3}], v{V_WA}, s[{W1}:{W1+3}], s{S_T0} offen nt", u)
        self.vm(f"buffer_load_dword v{V_U1}, off, s[{DBG}:{DBG+3}], 0 sc1", "nn")
        self.srd(KB, 60, 0x4000000); self.srd(VB, 62, 0x4000000); self.srd(WS, 74, WS_SIZE); self.srd(OUT, 70, 4096)
        self.srd(KA, 50, 0x4000000); self.srd(VA, 52, 0x4000000); self.srd(W2, 66, 0x800000)
        e("s_cmp_ge_u32 s3, 4")
        e(f"s_cselect_b32 s{GT}, s56, s68"); e(f"s_cselect_b32 s{GT+1}, s57, s69"); e(f"s_movk_i32 s{GT+2}, 2048"); e(f"s_cselect_b32 s{GT+2}, 0x800000, s{GT+2}"); e(f"s_mov_b32 s{GT+3}, 0x20000")
        e(f"s_lshl_b32 s{S_AB}, s{S_IDX}, 4"); e(f"s_add_u32 s{S_AB}, s{S_AB}, s3"); e(f"s_add_u32 s{S_AB}, s{S_AB}, 12"); e(f"s_lshl_b32 s{S_AB}, s{S_AB}, 12")
        e(f"s_lshl_b32 s{S_T0}, s{S_GRP}, 23"); e(f"s_add_u32 s{S_AB}, s{S_AB}, s{S_T0}"); e(f"s_add_u32 s{S_AB}, s{S_AB}, 0x700000")
        self.common_setup()
        if self.stamps: e("s_mov_b64 s[48:49], s[96:97]")
        e("s_barrier")
        self.wait(0)
        self.perm_mfma8(RING[0], QR, True, False)
        e("v_bfe_u32 v26, v0, 3, 1"); e("v_lshlrev_b32 v27, 9, v26"); e("v_and_b32 v26, 7, v0"); e("v_lshl_add_u32 v27, v26, 6, v27")
        e(f"s_lshl_b32 s{S_T0}, s3, 10"); e(f"s_add_u32 s{S_T0}, s{S_T0}, {CO}"); e(f"v_add_u32 v27, s{S_T0}, v27")
        e("v_mov_b32 v28, 1")
        self.wait(1)
        self.perm_mfma8(RING[1], QR + 4, False, False)
        e("s_mov_b32 exec_lo, 0xff0000ff"); e("s_mov_b32 exec_hi, 0")
        e("s_nop 1")
        for dd in range(8):
            e(f"ds_write_b64 v27, v[{OACC+dd*4}:{OACC+dd*4+1}] offset:{dd*8}")
        e("s_mov_b64 exec, 1")
        e(f"ds_add_u32 v{V_FLG}, v28 offset:{F_CNT - FLG}")
        e("s_mov_b64 exec, -1")
        def young_first():
            e("s_setprio 3")
            e("v_lshrrev_b32 v26, 5, v0"); e("v_lshlrev_b32 v27, 12, v26"); e("v_lshlrev_b32 v28, 14, v26")
            e("v_and_b32 v26, 31, v0"); e("v_lshl_add_u32 v27, v26, 4, v27"); e(f"v_add_u32 v27, {CO}, v27"); e("v_lshl_add_u32 v28, v26, 3, v28")
            e(f"s_lshr_b32 s{S_T0}, s{S_J}, 6"); e(f"s_lshl_b32 s{S_T0}, s{S_T0}, 15"); e(f"s_lshl_b32 s{S_T1}, s{S_CG}, 8")
            e(f"s_add_u32 s{S_T2}, s{S_T0}, s{S_T1}")
            self.wait("nn")
            self.get_nonce()
            self.lds_spin(F_CNT, 8)
            for p in range(8):
                e(f"ds_read_b128 v[{OACC+p*4}:{OACC+p*4+3}], v27 offset:{p*512}")
            e("s_waitcnt lgkmcnt(0)")
            for p in (4, 2, 1):
                for q in range(p):
                    for i in (0, 2):
                        e(f"v_pk_add_f32 v[{OACC+q*4+i}:{OACC+q*4+i+1}], v[{OACC+q*4+i}:{OACC+q*4+i+1}], v[{OACC+(q+p)*4+i}:{OACC+(q+p)*4+i+1}]")
            e(f"v_mov_b32 v{OACC+5}, s{S_NONCE}")
            e("s_nop 0")
            e(f"v_permlane32_swap_b32 v{OACC}, v{OACC+1}"); e(f"v_permlane32_swap_b32 v{OACC+2}, v{OACC+3}")
            e(f"v_add_f32 v{OACC}, v{OACC}, v{OACC+1}"); e(f"v_add_f32 v{OACC+2}, v{OACC+2}, v{OACC+3}")
            e(f"v_cvt_pk_bf16_f32 v{OACC+4}, v{OACC}, v{OACC+2}")
            e(f"s_and_b32 s{S_T0}, s3, 3"); e(f"s_lshl_b32 s{S_T0}, s{S_T0}, 4"); e(f"s_lshl_b64 exec, 0xffff, s{S_T0}")
            self.vm(f"buffer_store_dwordx2 v[{OACC+4}:{OACC+5}], v28, s[{WS}:{WS+3}], s{S_T2} offen sc1", "st")
            e("s_mov_b64 exec, -1")
            e("s_setprio 0")
            self.stamp(3)
        self.free = [RING[2], RING[3], RING[4], RING[0], RING[1]]
        self.body(young_first)

    def roleO(self):
        e = self.e
        e(f"s_lshl_b32 s{S_AB}, s{S_IDX}, 3"); e(f"s_add_u32 s{S_AB}, s{S_AB}, s3"); e(f"s_lshl_b32 s{S_AB}, s{S_AB}, 13"); e(f"s_add_u32 s{S_AB}, s{S_AB}, s{S_T0}")
        e(f"s_add_u32 s{S_AB}, s{S_AB}, 0x700000")
        self.common_setup()
        e("s_waitcnt lgkmcnt(0)")
        self.srd(XS, 48, 4096); self.srd(GT, 68, 2048); self.srd(KB, 60, 0x4000000); self.srd(VB, 62, 0x4000000)
        self.srd(KA, 50, 0x4000000); self.srd(VA, 52, 0x4000000); self.srd(WS, 74, WS_SIZE); self.srd(DBG, 72, 256)
        self.srd(W1, 56, 0x800000); self.srd(W2, 66, 0x800000)
        if self.stamps: e("s_mov_b64 s[48:49], s[96:97]")
        e("s_barrier")
        self.free = list(RING)
        self.body(lambda: None)

if __name__ == "__main__":
    out = sys.argv[1]
    st = "--stamps" in sys.argv
    opts = dict(a[2:].split("=") for a in sys.argv[2:] if a.startswith("--") and "=" in a)
    open(out, "w").write(G(stamps=st, opts=opts).build())
```

```python
import sys, struct, math
KNAME = "gated_mix__sliding_block_cached__gqa_block_cached__decode_kernel"
def f2u(x): return struct.unpack("<I", struct.pack("<f", x))[0]

QG, PO, PF, STAMP = 0, 0x100000, 0x600000, 0x800000
PO_BR = 0x100000
CT = 0x50000
WS_SIZE = 0x1000000
CM, CL, OB, FR, FLG, QOP, CO = 0, 512, 1024, 1280, 1792, 2048, 6656
F_CNT, F_QC, F_NON, F_AC, F_OA, F_OC, F_LT = [FLG + 4 * i for i in range(7)]
CO_BR, CO_W, CO_H = 33792, 4224, 528
LDS_SIZE = 74240
KB, VB, KA, VA, W1, W2, WS, XS, GT, OUT, DBG = 4, 8, 12, 16, 20, 24, 28, 32, 36, 40, 44
S_SELLO, S_SELHI, S_C, S_NONCE, S_GRP, S_IDX, S_SPLIT, S_BB, S_AB = 76, 77, 78, 79, 80, 81, 82, 83, 84
S_T0, S_T1, S_T2, S_T3, S_CNT, S_J, S_W = 85, 86, 87, 88, 89, 90, 91
S_POB, S_POA, S_POA2, S_CG = 92, 93, 94, 95
S_OK, S_QA, S_QB = 99, 100, 101
S_DX, S_DB, S_CA = 99, 100, 101
S_BIAS = {'X': 70, 'Y': 71, 'Z': 75, 'U': 97}
V_K0, V_K1, V_L0, V_L1 = 1, 2, 3, 4
V_COW, V_MLW, V_QR, V_COR, V_MLR, V_FLG, V_QW, V_X, V_WA, V_GA, V_GB = 5, 6, 7, 8, 9, 10, 11, 12, 13, 14, 15
V_PO = V_X
HA = [None, 1, 2, 4, 11]
WSET = [16, 20]
T = list(range(24, 32))
OACC, QR, SR, PR, V_M, V_LS, V_U0, V_U1 = 32, 64, 80, 88, 92, 93, 94, 95
RING = [96 + 32 * i for i in range(5)]
SPIN_MAX = 20000
NEGMAX = "0xff7fffff"

class G:
    def __init__(self, stamps=False, opts=None):
        self.L = []; self.stamps = stamps; self.lab = 0
        self.o = opts or {}
        self.q = []
    def opt(self, k, d): return int(self.o.get(k, d))
    def e(self, s): self.L.append("    " + s)
    def label(self, s): self.L.append(s + ":")
    def newlab(self, p):
        self.lab += 1; return f"L_{p}{self.lab}"
    def srd(self, d, b, n):
        self.e(f"s_mov_b32 s{d}, s{b}"); self.e(f"s_mov_b32 s{d+1}, s{b+1}")
        self.e(f"s_mov_b32 s{d+2}, {hex(n)}"); self.e(f"s_mov_b32 s{d+3}, 0x20000")
    def srd_ws(self):
        off = self.opt("wsoff", 0)
        if off:
            self.e(f"s_add_u32 s74, s74, {hex(off << 20)}"); self.e("s_addc_u32 s75, s75, 0")
        self.srd(WS, 74, WS_SIZE)
    def stamp(self, i):
        if self.stamps: self.e(f"s_memrealtime s[{48+2*i}:{49+2*i}]")
    def stamp_flush(self):
        if not self.stamps: return
        e = self.e
        e("s_waitcnt lgkmcnt(0)")
        e("s_lshl_b32 s92, s2, 3"); e("s_add_u32 s92, s92, s3"); e("s_lshl_b32 s92, s92, 7"); e(f"s_add_u32 s92, s92, {hex(STAMP)}")
        e("s_mov_b64 exec, 1")
        for i in range(12):
            e(f"v_mov_b32 v16, s{48+2*i}"); e(f"v_mov_b32 v17, s{49+2*i}")
            e(f"buffer_store_dwordx2 v[16:17], off, s[{WS}:{WS+3}], s92 offset:{i*8}")
            e("s_nop 0")
        e("s_mov_b64 exec, -1")
    def vm(self, s, tag):
        self.e(s); self.q.append(tag)
    def wait(self, tag, keep=0):
        idx = [i for i, t in enumerate(self.q) if t == tag]
        if not idx: return
        last = idx[len(idx) - 1 - keep]
        n = len(self.q) - 1 - last
        assert n <= 63
        self.e(f"s_waitcnt vmcnt({n})")
        self.q = self.q[last + 1:]
    def lds_inc(self, off):
        e = self.e
        e(f"v_mov_b32 v{T[1]}, 1")
        e("s_mov_b64 exec, 1"); e(f"ds_add_u32 v{V_FLG}, v{T[1]} offset:{off - FLG}"); e("s_mov_b64 exec, -1")
    def issue_next(self):
        if not self.seq or not self.free: return False
        if self.seq[0] == "HOLD": return False
        u = self.seq.pop(0); r = self.free.pop(0); self.slot[u] = r
        ld = lambda j, v, srd, so, off: self.vm(f"buffer_load_dwordx4 v[{r+j*4}:{r+j*4+3}], v{v}, s[{srd}:{srd+3}], s{so} offen offset:{off} nt", u)
        if u[0] == "W":
            srd = self.WOA if u == "WA" else W2
            for ee in range(8):
                off = ((ee & 3) * 8 + (ee >> 2)) * 2048
                self.e(f"s_add_u32 s{S_T0}, s{S_W}, {off & ~4095}")
                pw = self.opt("pwb", 0) if (u == "WB" or self.opt("whold", 1) == 2) else 0
                if pw: self.e(f"s_waitcnt vmcnt({pw - 1})")
                ld(ee, V_WA, srd, S_T0, off & 4095)
            return True
        n = 4 if u[1] in "Ha" else 8
        if u[1] in "Aa": srd, so = (KA if u[0] == "K" else VA), S_AB
        elif u[1] in "XYZU": srd, so = (KB if u[0] == "K" else VB), S_DX
        else:
            srd, so = (KB if u[0] == "K" else VB), S_T0
            self.e(f"s_add_u32 s{S_T0}, s{S_BB}, {hex(int(u[1]) * 0x200000)}")
        for j in range(n):
            dy = u[1] in "XYZU"
            if u[0] == "K": ld(j, (V_GA if dy else V_K1) if j >= 4 else V_K0, srd, so, (j & 3) * 64)
            else: ld(j, (V_GB if dy else V_L1) if j >= 4 else V_L0, srd, so, (j & 3) * 1024)
        return True
    def release(self, u): self.free.append(self.slot[u])
    def perm1(self, dst, src, dd, p):
        sel = S_SELHI if dd & 1 else S_SELLO
        self.e(f"v_perm_b32 v{dst+p}, v{src+(2*p+1)*4+(dd>>1)}, v{src+(2*p)*4+(dd>>1)}, s{sel}")
    def perms(self, dst, src, dd):
        for p in range(4): self.perm1(dst, src, dd, p)
    def mfma(self, d, a, b, c):
        cs = "0" if c is None else f"v[{c}:{c+3}]"
        self.e(f"v_mfma_f32_16x16x32_bf16 v[{d}:{d+3}], v[{a}:{a+3}], v[{b}:{b+3}], {cs}")
    def perm_mfma8(self, src, other, first, w_is_a, acc=OACC):
        def mm(dd):
            w = WSET[dd & 1]; d = acc + dd * 4
            if w_is_a: self.mfma(d, w, other, None if first else d)
            else: self.mfma(d, other, w, None if first else d)
        self.perms(WSET[0], src, 0)
        for dd in range(1, 8):
            self.perms(WSET[dd & 1], src, dd)
            mm(dd - 1)
        self.e("s_nop 0")
        mm(7)
    def pv_last(self, tag, src, dst):
        self.wait(tag, keep=2)
        for p in range(3):
            for dd in range(8): self.perm1(dst + dd * 4, src, dd, p)
        self.wait(tag)
        self.stamp(6)
        for dd in range(8):
            self.perm1(dst + dd * 4, src, dd, 3)
            if dd >= 2: self.mfma(OACC + (dd-2) * 4, dst + (dd-2) * 4, PR, OACC + (dd-2) * 4)
        self.e("s_nop 0")
        for dd in (6, 7): self.mfma(OACC + dd * 4, dst + dd * 4, PR, OACC + dd * 4)
    def qk(self, r, half=False, bias=None):
        if bias is not None:
            for i in range(4): self.e(f"v_mov_b32 v{SR+4+i}, s{bias}")
            self.e("s_nop 0")
        for jj in range(4):
            self.mfma(SR, r + jj * 4, QR + jj * 4, None if jj == 0 else SR)
            if not half: self.mfma(SR + 4, r + 16 + jj * 4, QR + jj * 4, None if (jj == 0 and bias is None) else SR + 4)
        if half:
            for i in range(4): self.e(f"v_mov_b32 v{SR+4+i}, {NEGMAX}")
    def xlane(self, op, t, u, kinds):
        for k in kinds:
            self.e(f"v_mov_b32 v{u}, v{t}"); self.e("s_nop 1")
            self.e(f"v_permlane{k}_swap_b32 v{t}, v{u}")
            self.e(f"{op} v{t}, v{t}, v{u}")
    def dp(self, op, r, ror): self.e(f"{op}_dpp v{r}, v{r}, v{r} row_ror:{ror} row_mask:0xf bank_mask:0xf")
    def dpp(self, op, t, rors):
        for r in rors:
            self.e("s_nop 1"); self.dp(op, t, r)
    def tilemax(self, first):
        e = self.e; t, u = T[0], T[1]; S = SR
        e(f"v_max3_f32 v{t}, v{S}, v{S+1}, v{S+2}"); e(f"v_max3_f32 v{t}, v{t}, v{S+3}, v{S+4}")
        e(f"v_max3_f32 v{t}, v{t}, v{S+5}, v{S+6}")
        if first: e(f"v_max_f32 v{t}, v{t}, v{S+7}")
        else: e(f"v_max3_f32 v{t}, v{t}, v{S+7}, v{V_M}")
        self.xlane("v_max_f32", t, u, (16, 32))
    def rescale(self, al):
        for i in range(16):
            self.e(f"v_pk_mul_f32 v[{OACC+2*i}:{OACC+2*i+1}], v[{OACC+2*i}:{OACC+2*i+1}], v[{al}:{al+1}] op_sel_hi:[1,0]")
    def softmax_rest(self, first, V_M=V_M, V_LS=V_LS):
        e = self.e; t, u, mc, al = T[0], T[1], T[2], T[4]; S = SR
        e(f"v_mul_f32 v{mc}, s{S_C}, v{t}")
        if not first:
            e(f"v_fma_f32 v{al}, v{V_M}, s{S_C}, -v{mc}")
            e(f"v_exp_f32 v{al}, v{al}")
        e(f"v_mov_b32 v{V_M}, v{t}")
        for i in range(8): e(f"v_fma_f32 v{S+i}, v{S+i}, s{S_C}, -v{mc}")
        for i in range(8): e(f"v_exp_f32 v{S+i}, v{S+i}")
        if not first: self.rescale(al)
        else: e("s_nop 0")
        e(f"v_add_f32 v{t}, v{S}, v{S+1}"); e(f"v_add_f32 v{u}, v{S+2}, v{S+3}")
        e(f"v_add_f32 v{t}, v{t}, v{S+4}"); e(f"v_add_f32 v{u}, v{u}, v{S+5}")
        e(f"v_add_f32 v{t}, v{t}, v{S+6}"); e(f"v_add_f32 v{u}, v{u}, v{S+7}")
        for p in range(4): e(f"v_cvt_pk_bf16_f32 v{PR+p}, v{S+2*p}, v{S+2*p+1}")
        e(f"v_add_f32 v{t}, v{t}, v{u}")
        if first: e(f"v_mov_b32 v{V_LS}, v{t}")
        else: e(f"v_fma_f32 v{V_LS}, v{V_LS}, v{al}, v{t}")
    def common_scale(self, tmp, hook, rescale_only):
        e = self.e
        e("s_mov_b64 exec, 0xff")
        e(f"ds_write_b32 v{V_MLW}, v{T[0]} offset:{CM + 256}")
        e("s_mov_b64 exec, -1")
        e("s_waitcnt lgkmcnt(0)")
        e("s_barrier")
        e(f"ds_read_b128 v[{tmp}:{tmp+3}], v{V_U0} offset:{CM + 256}")
        e(f"ds_read_b128 v[{tmp+4}:{tmp+7}], v{V_U0} offset:{CM + 256 + 16}")
        e(f"ds_read_b128 v[{tmp+8}:{tmp+11}], v{V_MLR} offset:{CM + 256}")
        e(f"ds_read_b128 v[{tmp+12}:{tmp+15}], v{V_MLR} offset:{CM + 256 + 16}")
        if hook: hook()
        e("s_waitcnt lgkmcnt(2)")
        t = T[0]
        e(f"v_max3_f32 v{t}, v{tmp}, v{tmp+1}, v{tmp+2}"); e(f"v_max3_f32 v{t}, v{t}, v{tmp+3}, v{tmp+4}")
        e(f"v_max3_f32 v{t}, v{t}, v{tmp+5}, v{tmp+6}"); e(f"v_max_f32 v{t}, v{t}, v{tmp+7}")
        if rescale_only:
            al = T[4]
            e(f"v_sub_f32 v{al}, v{V_M}, v{t}"); e(f"v_mul_f32 v{al}, s{S_C}, v{al}"); e(f"v_exp_f32 v{al}, v{al}"); e("s_nop 0")
            e(f"v_mul_f32 v{V_LS}, v{V_LS}, v{al}")
            self.rescale(al)
        else:
            self.softmax_rest(False)
            self.xlane("v_add_f32", V_LS, T[1], (16, 32))
        e("s_mov_b64 exec, 0xff")
        e(f"ds_write_b32 v{V_MLW}, v{V_LS} offset:{CL + 256}")
        e("s_mov_b64 exec, -1")
        e("s_waitcnt lgkmcnt(1)")
        m = tmp + 8
        e(f"v_max3_f32 v{tmp+18}, v{m}, v{m+1}, v{m+2}"); e(f"v_max3_f32 v{tmp+18}, v{tmp+18}, v{m+3}, v{m+4}")
        e(f"v_max3_f32 v{tmp+18}, v{tmp+18}, v{m+5}, v{m+6}"); e(f"v_max_f32 v{tmp+18}, v{tmp+18}, v{m+7}")
        e(f"v_mov_b32 v{tmp+19}, s{S_NONCE}")
        e(f"v_and_b32 v{tmp+16}, 1, v0"); e(f"v_cmp_eq_u32 vcc, 1, v{tmp+16}")
    def write_o(self, br, acc=OACC):
        e = self.e
        e("s_mov_b32 exec_lo, 0x00ff00ff"); e("s_mov_b32 exec_hi, 0x00ff00ff")
        for dd in range(8):
            e(f"ds_write_b128 v{V_COW}, v[{acc+dd*4}:{acc+dd*4+3}] offset:{br*CO_BR + dd*16}")
        e("s_mov_b64 exec, -1")
    def read_q(self, br):
        for jj in range(4):
            self.e(f"ds_read_b128 v[{QR+jj*4}:{QR+jj*4+3}], v{V_QR} offset:{br*2176 + jj*64}")
    def o_publish(self, R, R2):
        e = self.e
        l = R + 20
        e(f"ds_read_b128 v[{l}:{l+3}], v{V_MLR} offset:{CL + 256}"); e(f"ds_read_b128 v[{l+4}:{l+7}], v{V_MLR} offset:{CL + 256 + 16}")
        for w in range(8):
            e(f"ds_read_b128 v[{R2+4*w}:{R2+4*w+3}], v{V_COR} offset:{CO_BR + w*CO_W}")
        P = R + 16
        pk = lambda d, x, y: e(f"v_pk_add_f32 v[{d}:{d+1}], v[{x}:{x+1}], v[{y}:{y+1}]")
        pk4 = lambda d, y: (pk(d, d, y), pk(d + 2, d + 2, y + 2))
        e("s_waitcnt lgkmcnt(8)")
        pk(l, l, l + 2); pk(l + 4, l + 4, l + 6); pk(l, l, l + 4)
        e("s_waitcnt lgkmcnt(6)")
        pk4(R2, R2 + 4)
        e(f"v_add_f32 v{l}, v{l}, v{l+1}")
        e("s_waitcnt lgkmcnt(4)")
        pk4(R2 + 8, R2 + 12)
        e(f"v_cndmask_b32 v{R+18}, v{R+18}, v{l}, vcc")
        e("s_waitcnt lgkmcnt(2)")
        pk4(R2 + 16, R2 + 20); pk4(R2, R2 + 8)
        e("s_waitcnt lgkmcnt(0)")
        pk4(R2 + 24, R2 + 28); pk4(R2 + 16, R2 + 24); pk4(R2, R2 + 16)
        e(f"v_cvt_pk_bf16_f32 v{P}, v{R2}, v{R2+1}"); e(f"v_cvt_pk_bf16_f32 v{P+1}, v{R2+2}, v{R2+3}")
        e("s_mov_b32 exec_hi, 0")
        self.vm(f"buffer_store_dwordx4 v[{P}:{P+3}], v{V_PO}, s[{WS}:{WS+3}], s{S_POB} offen sc1", "st")
        e("s_mov_b32 exec_hi, -1")
    def combine_a(self, R, hoff, P, na):
        e = self.e
        m, l, o = SR, WSET[0], R
        M, mc, A = R + 16, T[2], R + 20
        for i in range(na // 4):
            e(f"ds_read_b128 v[{m+4*i}:{m+4*i+3}], v{V_MLR} offset:{CM + hoff*32 + 16*i}")
        for i in range(na // 4):
            e(f"ds_read_b128 v[{l+4*i}:{l+4*i+3}], v{V_MLR} offset:{CL + hoff*32 + 16*i}")
        for w in range(4): e(f"ds_read_b128 v[{o+4*w}:{o+4*w+3}], v{V_COR} offset:{w*CO_W + hoff*CO_H}")
        e(f"v_mov_b32 v{P+3}, s{S_NONCE}")
        e(f"v_and_b32 v{M+1}, 1, v0"); e(f"v_cmp_eq_u32 vcc, 1, v{M+1}")
        e(f"s_waitcnt lgkmcnt({4 + na//4})")
        e(f"v_max3_f32 v{M}, v{m}, v{m+1}, v{m+2}"); e(f"v_max_f32 v{M}, v{M}, v{m+3}")
        if na == 8:
            e(f"v_max3_f32 v{M}, v{M}, v{m+4}, v{m+5}"); e(f"v_max3_f32 v{M}, v{M}, v{m+6}, v{m+7}")
        e(f"v_mul_f32 v{mc}, s{S_C}, v{M}")
        for w in range(na): e(f"v_fma_f32 v{m+w}, v{m+w}, s{S_C}, -v{mc}")
        for w in range(na): e(f"v_exp_f32 v{m+w}, v{m+w}")
        e("s_waitcnt lgkmcnt(0)")
        for w in range(na):
            if w == 4:
                for w2 in range(4): e(f"ds_read_b128 v[{o+4*w2}:{o+4*w2+3}], v{V_COR} offset:{(4+w2)*CO_W + hoff*CO_H}")
                e("s_waitcnt lgkmcnt(0)")
            op = "v_mul_f32" if w == 0 else "v_fmac_f32"
            for i in range(4): e(f"{op} v{A+i}, v{m+w}, v{o+4*(w%4)+i}")
            e(f"{op} v{M+2}, v{m+w}, v{l+w}")
        e(f"v_cvt_pk_bf16_f32 v{P}, v{A}, v{A+1}"); e(f"v_cvt_pk_bf16_f32 v{P+1}, v{A+2}, v{A+3}")
        e(f"v_cndmask_b32 v{P+2}, v{M}, v{M+2}, vcc")
    def precombine_b(self, R, hoff):
        e = self.e
        m, l, o = SR, WSET[0], R
        M, mc, A = R + 16, T[2], R + 20
        e(f"ds_read_b128 v[{m}:{m+3}], v{V_MLR} offset:{CM + 256 + hoff*32}")
        e(f"ds_read_b128 v[{l}:{l+3}], v{V_MLR} offset:{CL + 256 + hoff*32}")
        for w in range(4): e(f"ds_read_b128 v[{o+4*w}:{o+4*w+3}], v{V_COR} offset:{CO_BR + w*CO_W + hoff*CO_H}")
        e("s_waitcnt lgkmcnt(5)")
        e(f"v_max3_f32 v{M}, v{m}, v{m+1}, v{m+2}"); e(f"v_max_f32 v{M}, v{M}, v{m+3}")
        e(f"v_mul_f32 v{mc}, s{S_C}, v{M}")
        for w in range(4): e(f"v_fma_f32 v{m+w}, v{m+w}, s{S_C}, -v{mc}")
        for w in range(4): e(f"v_exp_f32 v{m+w}, v{m+w}")
        e("s_waitcnt lgkmcnt(0)")
        for w in range(4):
            op = "v_mul_f32" if w == 0 else "v_fmac_f32"
            for i in range(4): e(f"{op} v{A+i}, v{m+w}, v{o+4*w+i}")
            e(f"{op} v{M+2}, v{m+w}, v{l+w}")
        e("s_mov_b32 exec_hi, 0")
        e(f"ds_write_b128 v{V_COR}, v[{A}:{A+3}] offset:{CO_BR + hoff*CO_H}")
        e("s_mov_b64 exec, 1")
        e(f"ds_write_b32 v{V_MLR}, v{M} offset:{CM + 256 + hoff*32}")
        e(f"ds_write_b32 v{V_MLR}, v{M+2} offset:{CL + 256 + hoff*32}")
        e("s_mov_b64 exec, -1")
    def o_publish5(self, R, R2):
        e = self.e
        m, l = R, R + 8
        e(f"ds_read_b32 v{m}, v{V_MLR} offset:{CM + 256}"); e(f"ds_read_b128 v[{m+4}:{m+7}], v{V_MLR} offset:{CM + 256 + 16}")
        for k, w in enumerate((0, 4, 5, 6, 7)):
            e(f"ds_read_b128 v[{R2+4*k}:{R2+4*k+3}], v{V_COR} offset:{CO_BR + w*CO_W}")
        e(f"ds_read_b32 v{l}, v{V_MLR} offset:{CL + 256}"); e(f"ds_read_b128 v[{l+4}:{l+7}], v{V_MLR} offset:{CL + 256 + 16}")
        P = R + 16; M = R + 18; mc = T[2]; A = R + 20; Ls = R + 1
        ms = [m, m + 4, m + 5, m + 6, m + 7]; ls = [l, l + 4, l + 5, l + 6, l + 7]
        e("s_waitcnt lgkmcnt(7)")
        e(f"v_max3_f32 v{M}, v{m}, v{m+4}, v{m+5}"); e(f"v_max3_f32 v{M}, v{M}, v{m+6}, v{m+7}")
        e(f"v_mul_f32 v{mc}, s{S_C}, v{M}")
        for r in ms: e(f"v_fma_f32 v{r}, v{r}, s{S_C}, -v{mc}")
        for r in ms: e(f"v_exp_f32 v{r}, v{r}")
        e("s_waitcnt lgkmcnt(2)")
        for k, r in enumerate(ms):
            b = r & ~1; sel = f"op_sel:[0,{r & 1}" ; hi = f"op_sel_hi:[1,{r & 1}"
            for h in range(2):
                if k == 0: e(f"v_pk_mul_f32 v[{A+2*h}:{A+2*h+1}], v[{R2+2*h}:{R2+2*h+1}], v[{b}:{b+1}] {sel}] {hi}]")
                else: e(f"v_pk_fma_f32 v[{A+2*h}:{A+2*h+1}], v[{R2+4*k+2*h}:{R2+4*k+2*h+1}], v[{b}:{b+1}], v[{A+2*h}:{A+2*h+1}] {sel},0] {hi},1]")
        e("s_waitcnt lgkmcnt(0)")
        for k in range(5): e(f"{'v_mul_f32' if k == 0 else 'v_fmac_f32'} v{Ls}, v{ms[k]}, v{ls[k]}")
        e(f"v_cvt_pk_bf16_f32 v{P}, v{A}, v{A+1}"); e(f"v_cvt_pk_bf16_f32 v{P+1}, v{A+2}, v{A+3}")
        e(f"v_cndmask_b32 v{M}, v{M}, v{Ls}, vcc")
        e("s_mov_b32 exec_hi, 0")
        self.vm(f"buffer_store_dwordx4 v[{P}:{P+3}], v{V_PO}, s[{WS}:{WS+3}], s{S_POB} offen sc1", "st")
        e("s_mov_b32 exec_hi, -1")
    def write_ml(self):
        e = self.e
        self.xlane("v_add_f32", V_LS, T[1], (16, 32))
        e("s_mov_b64 exec, 0xff")
        e(f"ds_write_b32 v{V_MLW}, v{V_M} offset:{CM + 256}")
        e(f"ds_write_b32 v{V_MLW}, v{V_LS} offset:{CL + 256}")
        e("s_mov_b64 exec, -1")
    def a_tile(self, t):
        e = self.e
        uk, uv = "K" + t, "V" + t
        half = t == "a"
        self.read_q(0)
        self.wait(uk)
        e("s_waitcnt lgkmcnt(0)")
        acc = self.slot[uk]
        self.qk(acc, half)
        self.read_q(1)
        e("s_nop 3")
        self.tilemax(True); self.softmax_rest(True, T[5], T[6])
        self.xlane("v_add_f32", T[6], T[1], (16, 32))
        e("s_mov_b64 exec, 0xff")
        e(f"ds_write_b32 v{V_MLW}, v{T[5]} offset:{CM}")
        e(f"ds_write_b32 v{V_MLW}, v{T[6]} offset:{CL}")
        e("s_mov_b64 exec, -1")
        if half:
            for i in range(16): e(f"v_mov_b32 v{self.slot[uv]+16+i}, 0")
        self.wait(uv)
        self.perm_mfma8(self.slot[uv], PR, True, True, acc); self.release(uv)
        if not self.issue_next(): e("s_nop 3")
        self.write_o(0, acc); self.release(uk)
        self.lds_inc(F_AC)
        e("s_waitcnt lgkmcnt(0)")
        self.issue_next()
    def b_tile(self, t, first):
        e = self.e
        uk, uv = f"K{t}", f"V{t}"
        half = t == "H"
        self.wait(uk)
        self.qk(self.slot[uk], half, S_BIAS.get(t)); self.release(uk)
        if not self.issue_next(): e("s_nop 7")
        self.tilemax(first); self.softmax_rest(first)
        if half:
            for i in range(16): e(f"v_mov_b32 v{self.slot[uv]+16+i}, 0")
        self.wait(uv)
        self.perm_mfma8(self.slot[uv], PR, first, True); self.release(uv)
        self.issue_next()
    def check(self, tags):
        e = self.e; acc = T[7]
        e(f"v_xor_b32 v{acc}, s{S_NONCE}, v{tags[0]}")
        for t in tags[1:]:
            e(f"v_xor_b32 v{T[6]}, s{S_NONCE}, v{t}"); e(f"v_or_b32 v{acc}, v{acc}, v{T[6]}")
        e(f"v_cmp_ne_u32 vcc, 0, v{acc}")
    def poll(self, loads, tags, sleep=1):
        e = self.e
        lp, ok = self.newlab("poll"), self.newlab("ok")
        e(f"s_mov_b32 s{S_CNT}, 0")
        self.label(lp)
        for s in loads: e(s)
        e("s_waitcnt vmcnt(0)")
        self.check(tags)
        e(f"s_add_u32 s{S_CNT}, s{S_CNT}, 1")
        e(f"s_cbranch_vccz {ok}")
        e(f"s_cmp_gt_u32 s{S_CNT}, {SPIN_MAX}")
        e(f"s_cbranch_scc1 {ok}")
        if sleep: e(f"s_sleep {sleep}")
        e(f"s_branch {lp}")
        self.label(ok)
    def poll_missing(self, loads, tags, sleep, first=True, firstwait=0, watch=False, lpl=8, thr=None):
        e = self.e
        n = len(loads)
        lp, done, chk = self.newlab("pm"), self.newlab("pmdone"), self.newlab("pmchk")
        MK = [4, 6, 8, 10]
        e(f"s_mov_b32 s{S_CNT}, 0")
        watch = watch and self.opt("watch", 1)
        S_PREV, S_N = 12, 13
        if watch: e(f"s_mov_b32 s{S_PREV}, 0")
        if first:
            for s_ in loads: e(s_)
        if firstwait:
            e(f"s_waitcnt vmcnt({firstwait})"); e(f"s_branch {chk}")
        self.label(lp)
        e("s_waitcnt vmcnt(0)")
        self.label(chk)
        for i in range(n):
            tg = tags[i]
            if tg[0] == "emb":
                r = tg[1]
                e(f"v_perm_b32 v{T[6]}, v{r+1}, v{r}, s{S_SELLO}"); e(f"v_perm_b32 v{T[7]}, v{r+3}, v{r+2}, s{S_SELLO}")
                e(f"v_perm_b32 v{T[6]}, v{T[7]}, v{T[6]}, s{S_SELHI}")
                e(f"v_cmp_ne_u32 s[{MK[i]}:{MK[i]+1}], s{S_NONCE}, v{T[6]}")
            elif len(tg) == 1:
                e(f"v_cmp_ne_u32 s[{MK[i]}:{MK[i]+1}], s{S_NONCE}, v{tg[0]}")
            else:
                e(f"v_xor_b32 v{T[6]}, s{S_NONCE}, v{tg[0]}"); e(f"v_xor_b32 v{T[7]}, s{S_NONCE}, v{tg[1]}"); e(f"v_or_b32 v{T[6]}, v{T[6]}, v{T[7]}")
                e(f"v_cmp_ne_u32 s[{MK[i]}:{MK[i]+1}], 0, v{T[6]}")
        e(f"s_or_b64 vcc, s[{MK[0]}:{MK[0]+1}], s[{MK[1]}:{MK[1]+1}]")
        for i in range(2, n): e(f"s_or_b64 vcc, vcc, s[{MK[i]}:{MK[i]+1}]")
        e(f"s_cbranch_scc0 {done}")
        e(f"s_add_u32 s{S_CNT}, s{S_CNT}, 1")
        e(f"s_cmp_gt_u32 s{S_CNT}, {SPIN_MAX}"); e(f"s_cbranch_scc1 {done}")
        if watch:
            full = self.newlab("pmfull")
            e(f"s_bcnt1_i32_b64 s{S_N}, s[{MK[0]}:{MK[0]+1}]")
            for i in range(1, n):
                e(f"s_bcnt1_i32_b64 s{S_T3}, s[{MK[i]}:{MK[i]+1}]"); e(f"s_add_u32 s{S_N}, s{S_N}, s{S_T3}")
            e(f"s_cmp_le_u32 s{S_N}, {lpl * (thr if thr is not None else self.opt('wthr', 8))}"); e(f"s_cbranch_scc1 {full}")
            e(f"s_cmp_lt_u32 s{S_N}, s{S_PREV}"); e(f"s_cbranch_scc1 {full}")
            e(f"s_mov_b32 s{S_PREV}, s{S_N}")
            e(f"s_sleep {self.opt('wsleep', 2)}")
            for i in (range(n) if not self.opt("wrot", 0) else list(range(n))[::-1]):
                nx = self.newlab("pmw")
                e(f"s_ff1_i32_b64 s{S_T3}, s[{MK[i]}:{MK[i]+1}]")
                e(f"s_cmp_lt_i32 s{S_T3}, 0"); e(f"s_cbranch_scc1 {nx}")
                e(f"s_and_b32 s{S_T3}, s{S_T3}, {64 - lpl}"); e(f"s_lshl_b64 exec, {hex((1 << lpl) - 1)}, s{S_T3}")
                e(loads[i])
                e("s_mov_b64 exec, -1")
                e(f"s_branch {lp}")
                self.label(nx)
            self.label(full)
            e(f"s_mov_b32 s{S_PREV}, 0")
        if sleep: e(f"s_sleep {sleep}")
        for i in range(n):
            sk = self.newlab("pms")
            e(f"s_mov_b64 exec, s[{MK[i]}:{MK[i]+1}]")
            e(f"s_cbranch_execz {sk}")
            e(loads[i])
            self.label(sk)
        e("s_mov_b64 exec, -1")
        e(f"s_branch {lp}")
        self.label(done)
    def lds_spin(self, off, target):
        if self.opt("noq", 0): return
        e = self.e
        lp, ok = self.newlab("ls"), self.newlab("lsok")
        e(f"s_mov_b32 s{S_CNT}, 0")
        self.label(lp)
        e(f"ds_read_b32 v{T[7]}, v{V_FLG} offset:{off - FLG}")
        e("s_waitcnt lgkmcnt(0)")
        e(f"v_readfirstlane_b32 s{S_T3}, v{T[7]}")
        e(f"s_add_u32 s{S_CNT}, s{S_CNT}, 1")
        e(f"s_cmp_eq_u32 s{S_T3}, {target}")
        e(f"s_cbranch_scc1 {ok}")
        e(f"s_cmp_gt_u32 s{S_CNT}, {SPIN_MAX*50}")
        e(f"s_cbranch_scc1 {ok}")
        e("s_sleep 1")
        e(f"s_branch {lp}")
        self.label(ok)
    def get_nonce(self):
        e = self.e
        lp, ok = self.newlab("nn"), self.newlab("nnok")
        e(f"s_mov_b32 s{S_CNT}, 0")
        self.label(lp)
        e(f"v_readfirstlane_b32 s{S_NONCE}, v{V_U1}")
        e(f"s_add_u32 s{S_CNT}, s{S_CNT}, 1")
        e(f"s_cmp_lg_u32 s{S_NONCE}, 0")
        e(f"s_cbranch_scc1 {ok}")
        e(f"s_cmp_gt_u32 s{S_CNT}, {SPIN_MAX}")
        e(f"s_cbranch_scc1 {ok}")
        e(f"buffer_load_dword v{V_U1}, off, s[{DBG}:{DBG+3}], 0 sc1")
        e("s_waitcnt vmcnt(0)")
        e(f"s_branch {lp}")
        self.label(ok)
    def qpoll_loads(self, OACC=OACC):
        l = [f"buffer_load_dwordx4 v[{OACC}:{OACC+3}], v{V_L0}, s[{WS}:{WS+3}], s{S_QB} offen sc1"]
        if self.isO: l.append(f"buffer_load_dwordx4 v[{OACC+4}:{OACC+7}], v{V_L0}, s[{WS}:{WS+3}], s{S_QA} offen sc1")
        return l
    def qtags(self, OACC=OACC): return [OACC + 1, OACC + 3] + ([OACC + 5, OACC + 7] if self.isO else [])
    def qcommit(self, OACC=OACC):
        e = self.e
        e(f"v_mov_b32 v{OACC+1}, v{OACC+2}")
        if self.isO: e(f"v_mov_b32 v{OACC+5}, v{OACC+6}")
        e(f"v_mov_b32 v{T[0]}, s{S_NONCE}"); e(f"v_mov_b32 v{T[1]}, 1")
        e(f"ds_write_b64 v{V_QW}, v[{OACC}:{OACC+1}] offset:2176")
        if self.isO: e(f"ds_write_b64 v{V_QW}, v[{OACC+4}:{OACC+5}]")
        e("s_mov_b64 exec, 1")
        e(f"ds_write_b32 v{V_FLG}, v{T[0]} offset:{F_NON - FLG}")
        e(f"ds_add_u32 v{V_FLG}, v{T[1]} offset:{F_QC - FLG}")
        e("s_mov_b64 exec, -1")
        e(f"s_mov_b32 s{S_OK}, 1")
        self.stamp(4)
    def young_prefetch(self):
        e = self.e
        nonce_ready = not self.isO
        e(f"s_lshl_b32 s{S_QA}, s{S_GRP}, 12"); e(f"s_and_b32 s{S_T1}, s3, 3"); e(f"s_lshl_b32 s{S_T2}, s{S_T1}, 10"); e(f"s_add_u32 s{S_QA}, s{S_QA}, s{S_T2}")
        e(f"s_add_u32 s{S_QB}, s{S_QA}, 32768")
        e(f"s_mul_i32 s{S_T1}, s{S_T1}, 544"); e(f"v_add_u32 v{V_QW}, s{S_T1}, v{V_QW}")
        e(f"s_mov_b32 s{S_OK}, 0")
        lagk = self.opt("qlag", 0)
        first = self.opt("qfirsto" if self.isO else "qfirstq", 2 if self.isO else 1)
        k = 0; pend = []
        if not nonce_ready:
            pass
        qm = self.opt("qmask", 1)
        nl = 2 if self.isO else 1
        def chk(k, mark):
            nonlocal nonce_ready
            B = OACC if qm else OACC + 8 * (k % 4)
            skip = self.newlab("qskip")
            if nonce_ready:
                e(f"s_cmp_eq_u32 s{S_OK}, 1"); e(f"s_cbranch_scc1 {skip}")
            e(f"s_waitcnt vmcnt({len(self.q) - mark})")
            if not nonce_ready:
                self.get_nonce(); nonce_ready = True
            if qm:
                for i in range(nl):
                    e(f"v_xor_b32 v{T[6]}, s{S_NONCE}, v{B+4*i+1}"); e(f"v_xor_b32 v{T[7]}, s{S_NONCE}, v{B+4*i+3}"); e(f"v_or_b32 v{T[6]}, v{T[6]}, v{T[7]}")
                    e(f"v_cmp_ne_u32 s[{72+2*i}:{73+2*i}], 0, v{T[6]}")
                e(f"s_or_b64 vcc, s[72:73], s[{72+2*(nl-1)}:{73+2*(nl-1)}]")
                e(f"s_cbranch_scc1 {skip}")
            else:
                self.check(self.qtags(B))
                e(f"s_cbranch_vccnz {skip}")
            self.qcommit(B)
            self.label(skip)
        while True:
            if k >= first:
                sk = self.newlab("qps")
                if not nonce_ready and k == first:
                    e(f"buffer_load_dword v{V_U1}, off, s[{DBG}:{DBG+3}], 0 sc1")
                if k > first: e(f"s_cmp_eq_u32 s{S_OK}, 1"); e(f"s_cbranch_scc1 {sk}")
                for i, s_ in enumerate(self.qpoll_loads(OACC if qm else OACC + 8 * (k % 4))):
                    if qm and k > first:
                        s2_ = self.newlab("qpm")
                        e(f"s_mov_b64 exec, s[{72+2*i}:{73+2*i}]"); e(f"s_cbranch_execz {s2_}"); e(s_); self.label(s2_)
                    else: e(s_)
                if qm and k > first: e("s_mov_b64 exec, -1")
                self.label(sk)
                pend.append((k, len(self.q)))
            ok = self.issue_next()
            if len(pend) > lagk: chk(*pend.pop(0))
            k += 1
            if not ok or not self.free: break
        for kk, mark in pend: chk(kk, mark)
        done = self.newlab("qd")
        e(f"s_cmp_eq_u32 s{S_OK}, 1"); e(f"s_cbranch_scc1 {done}")
        self.poll(self.qpoll_loads(), self.qtags(), sleep=1)
        self.qcommit()
        self.label(done)
    def wait_q(self):
        e = self.e
        self.lds_spin(F_QC, 4)
        if self.opt("noq", 0): return
        e(f"ds_read_b32 v{T[7]}, v{V_FLG} offset:{F_NON - FLG}")
        e("s_waitcnt lgkmcnt(0)")
        e(f"v_readfirstlane_b32 s{S_NONCE}, v{T[7]}")
    def gate_loads(self):
        e = self.e
        e(f"s_and_b32 s{S_T1}, s3, 1"); e(f"s_lshl_b32 s{S_T1}, s{S_T1}, 11")
        e(f"v_lshlrev_b32 v{V_X}, 5, v0")
        self.vm(f"buffer_load_dwordx4 v[{QR}:{QR+3}], v{V_X}, s[{XS}:{XS+3}], s{S_T1} offen", "g")
        self.vm(f"buffer_load_dwordx4 v[{QR+4}:{QR+7}], v{V_X}, s[{XS}:{XS+3}], s{S_T1} offen offset:16", "g")
        self.vm(f"buffer_load_dwordx4 v[{QR+8}:{QR+11}], v{V_X}, s[{GT}:{GT+3}], 0 offen", "g")
        self.vm(f"buffer_load_dwordx4 v[{QR+12}:{QR+15}], v{V_X}, s[{GT}:{GT+3}], 0 offen offset:16", "g")
    def gate(self):
        e = self.e
        self.wait("g")
        acc, a, b, c, d = T[0], T[1], T[2], T[3], T[4]
        e(f"v_mov_b32 v{acc}, 0")
        e(f"s_mov_b32 s{S_T0}, 0xffff0000")
        for i in range(8):
            x, g = QR + i, QR + 8 + i
            e(f"v_lshlrev_b32 v{a}, 16, v{x}"); e(f"v_lshlrev_b32 v{b}, 16, v{g}")
            e(f"v_and_b32 v{c}, s{S_T0}, v{x}"); e(f"v_and_b32 v{d}, s{S_T0}, v{g}")
            e(f"v_mul_f32 v{a}, v{a}, v{b}"); e(f"v_mul_f32 v{c}, v{c}, v{d}")
            e(f"v_cvt_pk_bf16_f32 v{a}, v{a}, v{c}")
            e(f"v_lshlrev_b32 v{b}, 16, v{a}"); e(f"v_and_b32 v{c}, s{S_T0}, v{a}")
            e(f"v_add_f32 v{acc}, v{acc}, v{b}"); e(f"v_add_f32 v{acc}, v{acc}, v{c}")
        self.dpp("v_add_f32", acc, (1, 2, 4, 8))
        self.xlane("v_add_f32", acc, a, (16, 32))
        e(f"v_cvt_pk_bf16_f32 v{acc}, v{acc}, v{acc}"); e(f"v_lshlrev_b32 v{acc}, 16, v{acc}")
        e(f"v_mul_f32 v{acc}, {hex(f2u(-math.log2(math.e)))}, v{acc}")
        e(f"v_exp_f32 v{acc}, v{acc}"); e("s_nop 0")
        e(f"v_add_f32 v{acc}, 1.0, v{acc}")
        e(f"v_rcp_f32 v{acc}, v{acc}"); e("s_nop 0")
        e(f"v_cvt_pk_bf16_f32 v{acc}, v{acc}, v{acc}"); e(f"v_lshlrev_b32 v{V_GA}, 16, v{acc}")
        e(f"v_sub_f32 v{acc}, 1.0, v{V_GA}")
        e(f"v_cvt_pk_bf16_f32 v{acc}, v{acc}, v{acc}"); e(f"v_lshlrev_b32 v{V_GB}, 16, v{acc}")

    def build(self):
        e = self.e; L = self.L
        L.append(f"; @launch grid=(256,1,1) block=(512,1,1) lds={LDS_SIZE}")
        L.append('.amdgcn_target "amdgcn-amd-amdhsa--gfx950"')
        L += [".text", f".globl {KNAME}", ".p2align 8", f".type {KNAME},@function", f"{KNAME}:"]
        e("s_cmp_ge_u32 s2, 256"); e("s_cbranch_scc1 L_end")
        e("s_load_dwordx16 s[48:63], s[0:1], 0")
        e("s_load_dwordx8 s[64:71], s[0:1], 64")
        e("s_load_dwordx4 s[72:75], s[0:1], 96")
        e("s_memrealtime s[96:97]")
        e("v_lshrrev_b32 v1, 6, v0")
        e("v_and_b32 v0, 63, v0")
        e("v_readfirstlane_b32 s3, v1")
        e(f"v_mov_b32 v{V_FLG}, {FLG}")
        e("v_mov_b32 v28, 0"); e("v_mov_b32 v29, 0"); e("v_mov_b32 v30, 0"); e("v_mov_b32 v31, 0")
        e("s_cmp_lg_u32 s3, 0"); e("s_cbranch_scc1 L_noinit")
        e(f"ds_write_b128 v{V_FLG}, v[28:31]"); e(f"ds_write_b128 v{V_FLG}, v[28:31] offset:16")
        self.label("L_noinit")
        e("v_and_b32 v24, 15, v0"); e("v_lshrrev_b32 v25, 4, v0")
        e("v_and_b32 v26, 3, v24"); e("v_lshlrev_b32 v26, 10, v26")
        e("v_lshrrev_b32 v27, 2, v24"); e("v_lshl_add_u32 v26, v27, 8, v26")
        e(f"v_lshl_add_u32 v{V_K0}, v25, 4, v26")
        e(f"v_add_u32 v{V_K1}, 4096, v{V_K0}")
        e(f"v_lshlrev_b32 v{V_L0}, 4, v0"); e(f"v_add_u32 v{V_L1}, 4096, v{V_L0}")
        e(f"s_lshr_b32 s{S_GRP}, s2, 5"); e(f"s_and_b32 s{S_IDX}, s2, 15"); e(f"s_and_b32 s{S_SPLIT}, s2, 31")
        e(f"s_lshl_b32 s{S_J}, s{S_GRP}, 4"); e(f"s_add_u32 s{S_J}, s{S_J}, s{S_IDX}")
        e(f"s_lshl_b32 s{S_T0}, s{S_GRP}, 23")
        e(f"s_lshl_b32 s{S_BB}, s{S_SPLIT}, 3"); e(f"s_add_u32 s{S_BB}, s{S_BB}, s3"); e(f"s_lshl_b32 s{S_BB}, s{S_BB}, 13"); e(f"s_add_u32 s{S_BB}, s{S_BB}, s{S_T0}")
        e("s_bitcmp1_b32 s2, 4"); e("s_cbranch_scc1 L_roleO")
        self.q = []; self.isO = False; self.WOA = GT
        self.roleQ()
        self.label("L_roleO")
        self.q = []; self.isO = True; self.WOA = W1
        self.roleO()
        self.label("L_end"); e("s_endpgm")
        L += ['.section .rodata,"a"', ".p2align 6", f".amdhsa_kernel {KNAME}"]
        for s in ["next_free_vgpr 256", "next_free_sgpr 102", "accum_offset 256", "group_segment_fixed_size 0", "kernarg_size 112",
                  "user_sgpr_count 2", "user_sgpr_kernarg_segment_ptr 1", "system_sgpr_workgroup_id_x 1"]:
            L.append("  .amdhsa_" + s)
        L.append(".end_amdhsa_kernel")
        return "\n".join(L) + "\n"

    def common_setup(self):
        e = self.e
        e(f"s_mov_b32 s{S_SELLO}, 0x05040100"); e(f"s_mov_b32 s{S_SELHI}, 0x07060302")
        e(f"s_mov_b32 s{S_C}, {hex(f2u(math.log2(math.e) / math.sqrt(128.0)))}")
        e(f"s_mul_i32 s{S_T0}, s3, {CO_W}"); e(f"s_add_u32 s{S_T0}, s{S_T0}, {CO}")
        e(f"v_mul_u32_u24 v{V_COW}, {CO_H}, v24"); e(f"v_lshl_add_u32 v{V_COW}, v25, 7, v{V_COW}"); e(f"v_add_u32 v{V_COW}, s{S_T0}, v{V_COW}")
        e(f"s_lshl_b32 s{S_T0}, s3, 2"); e(f"v_lshlrev_b32 v{V_MLW}, 5, v24"); e(f"v_add_u32 v{V_MLW}, s{S_T0}, v{V_MLW}")
        e("v_and_b32 v26, 7, v24"); e(f"v_lshlrev_b32 v{V_U0}, 5, v26")
        e(f"v_mul_u32_u24 v{V_QR}, 272, v26"); e(f"v_lshl_add_u32 v{V_QR}, v25, 4, v{V_QR}"); e(f"v_add_u32 v{V_QR}, {QOP}, v{V_QR}")
        e(f"s_mul_i32 s{S_T0}, s3, {CO_H}"); e(f"s_add_u32 s{S_T0}, s{S_T0}, {CO}"); e("v_and_b32 v26, 31, v0"); e(f"v_lshlrev_b32 v{V_COR}, 4, v26"); e(f"v_add_u32 v{V_COR}, s{S_T0}, v{V_COR}")
        e(f"s_lshl_b32 s{S_T0}, s3, 5"); e(f"v_mov_b32 v{V_MLR}, s{S_T0}")
        e("v_lshrrev_b32 v26, 5, v0"); e(f"v_mul_u32_u24 v{V_QW}, 272, v26"); e("v_and_b32 v26, 31, v0"); e(f"v_lshl_add_u32 v{V_QW}, v26, 3, v{V_QW}"); e(f"v_add_u32 v{V_QW}, {QOP}, v{V_QW}")
        e(f"s_lshl_b32 s{S_POB}, s{S_GRP}, 3"); e(f"s_add_u32 s{S_POB}, s{S_POB}, s3"); e(f"s_lshl_b32 s{S_POB}, s{S_POB}, 14"); e(f"s_add_u32 s{S_POB}, s{S_POB}, {hex(PO)}")
        e(f"s_lshl_b32 s{S_T1}, s{S_IDX}, 7"); e(f"s_add_u32 s{S_POA}, s{S_POB}, s{S_T1}"); e(f"s_add_u32 s{S_POA2}, s{S_POA}, {4*16384}")
        e(f"s_lshl_b32 s{S_T1}, s{S_SPLIT}, 7"); e(f"s_add_u32 s{S_POB}, s{S_POB}, s{S_T1}"); e(f"s_add_u32 s{S_POB}, s{S_POB}, {hex(PO_BR)}")

    def late_setup(self):
        e = self.e
        e(f"v_lshrrev_b32 v{T[0]}, 3, v0"); e(f"v_lshlrev_b32 v{V_PO}, 12, v{T[0]}"); e(f"v_and_b32 v{T[0]}, 7, v0"); e(f"v_lshl_add_u32 v{V_PO}, v{T[0]}, 4, v{V_PO}")
        if not self.old:
            e(f"v_lshrrev_b32 v{T[0]}, 4, v0"); e(f"v_lshlrev_b32 v{V_WA}, 12, v{T[0]}"); e(f"v_and_b32 v{T[0]}, 15, v0"); e(f"v_lshl_add_u32 v{V_WA}, v{T[0]}, 4, v{V_WA}")
            e(f"s_lshl_b32 s{S_W}, s{S_J}, 16"); e(f"s_and_b32 s{S_T1}, s3, 3"); e(f"s_lshl_b32 s{S_T1}, s{S_T1}, 8"); e(f"s_add_u32 s{S_W}, s{S_W}, s{S_T1}")
            if self.isO: e(f"s_add_u32 s{S_W}, s{S_W}, 1024")

    S_HO, S_PFR, S_OUT = 72, 74, 75
    def pre_tail(self):
        e = self.e
        if self.old:
            h = self.S_HO
            e(f"s_and_b32 s{S_T0}, s3, 1"); e(f"s_lshl_b32 s{S_T0}, s{S_T0}, 2"); e(f"s_lshr_b32 s{S_T1}, s{S_J}, 5"); e(f"s_add_u32 s{S_T0}, s{S_T0}, s{S_T1}")
            e(f"s_lshl_b32 s{h}, s{S_T0}, 17")
            e(f"s_and_b32 s{S_T1}, s{S_J}, 31"); e(f"s_lshl_b32 s{S_T1}, s{S_T1}, 12"); e(f"s_add_u32 s{h}, s{h}, s{S_T1}")
            e(f"s_add_u32 s{h}, s{h}, {hex(PO)}")
            e(f"s_and_b32 s{S_T0}, s3, 1"); e(f"s_lshl_b32 s{S_T0}, s{S_T0}, 6")
            e("v_and_b32 v26, 7, v0"); e(f"v_lshlrev_b32 v{HA[1]}, 3, v26"); e("v_lshrrev_b32 v26, 4, v0"); e(f"v_lshl_add_u32 v{HA[1]}, v26, 1, v{HA[1]}"); e(f"v_add_u32 v{HA[1]}, s{S_T0}, v{HA[1]}")
            if not self.isO:
                p = self.S_PFR
                e(f"s_lshr_b32 s{p}, s{S_J}, 1"); e(f"s_lshl_b32 s{p}, s{p}, 14"); e(f"s_lshl_b32 s{S_T2}, s3, 12"); e(f"s_add_u32 s{p}, s{p}, s{S_T2}")
                e(f"s_and_b32 s{S_T2}, s{S_J}, 1"); e(f"s_lshl_b32 s{S_T2}, s{S_T2}, 6"); e(f"s_add_u32 s{p}, s{p}, s{S_T2}"); e(f"s_add_u32 s{p}, s{p}, {hex(PF)}")
                e("v_lshrrev_b32 v26, 2, v0"); e(f"v_lshlrev_b32 v{HA[4]}, 7, v26"); e("v_and_b32 v26, 3, v0"); e(f"v_lshl_add_u32 v{HA[4]}, v26, 4, v{HA[4]}")
                e(f"v_lshlrev_b32 v{HA[2]}, 4, v26"); e("v_lshrrev_b32 v27, 4, v0"); e(f"v_lshl_add_u32 v{HA[2]}, v27, 2, v{HA[2]}")
                e(f"s_lshl_b32 s{S_T0}, s3, 6"); e(f"s_add_u32 s{S_T0}, s{S_T0}, {FR}"); e(f"v_add_u32 v{HA[2]}, s{S_T0}, v{HA[2]}")
                e("v_and_b32 v26, 7, v0"); e(f"v_lshlrev_b32 v{HA[3]}, 3, v26")
                e("v_lshrrev_b32 v27, 1, v26"); e(f"v_lshlrev_b32 v{V_WA}, 4, v27"); e("v_and_b32 v27, 1, v0"); e(f"v_lshl_add_u32 v{V_WA}, v27, 2, v{V_WA}")
                o = self.S_OUT
                e(f"s_lshr_b32 s{o}, s{S_J}, 3"); e(f"s_lshl_b32 s{o}, s{o}, 8")
                e(f"s_and_b32 s{S_T2}, s{S_J}, 3"); e(f"s_lshl_b32 s{S_T2}, s{S_T2}, 6"); e(f"s_add_u32 s{o}, s{o}, s{S_T2}")
                e(f"s_bfe_u32 s{S_T2}, s{S_J}, 0x10002"); e(f"s_lshl_b32 s{S_T2}, s{S_T2}, 3"); e(f"s_add_u32 s{o}, s{o}, s{S_T2}")
        else:
            e("v_bfe_u32 v26, v0, 2, 1"); e(f"v_lshlrev_b32 v{HA[2]}, 6, v26"); e("v_lshrrev_b32 v26, 4, v0"); e(f"v_lshl_add_u32 v{HA[2]}, v26, 4, v{HA[2]}")
            e("v_bfe_u32 v26, v0, 4, 1"); e(f"v_lshlrev_b32 v{HA[3]}, 19, v26"); e("v_bfe_u32 v26, v0, 3, 1"); e(f"v_lshl_add_u32 v{HA[3]}, v26, 14, v{HA[3]}")
            e("v_and_b32 v26, 7, v0"); e(f"v_lshl_add_u32 v{HA[3]}, v26, 4, v{HA[3]}")
            e("v_lshrrev_b32 v26, 5, v0"); e(f"v_lshl_add_u32 v{HA[3]}, v26, 15, v{HA[3]}")
            e(f"s_and_b32 s98, s3, 3"); e("s_lshl_b32 s98, s98, 16"); e(f"s_lshl_b32 s{S_T1}, s{S_J}, 7"); e(f"s_add_u32 s98, s98, s{S_T1}")
            e(f"s_add_u32 s98, s98, {hex(PF + (4 << 16 if self.isO else 0))}")
            e("s_mov_b32 s100, 0"); e("s_mov_b32 s101, -1")
            for i in range(4): e(f"s_mov_b32 s{4+i}, {hex(0x07060500 + i)}")

    def claim(self, tag):
        e = self.e
        e(f"v_mov_b32 v{V_U1}, 1"); e("s_mov_b64 exec, 1")
        self.vm(f"buffer_atomic_add v{V_U1}, off, s[{WS}:{WS+3}], s{S_CA} sc0", tag)
        e("s_mov_b64 exec, -1")

    def tiles(self):
        e = self.e; old = self.old
        self.read_q(1)
        self.late_setup()
        e("s_waitcnt lgkmcnt(0)")
        if old:
            for t in range(3): self.b_tile(str(t), t == 0)
            if self.isO: self.a_tile("A")
            self.last_tile("3"); return
        if self.isO: self.a_tile("A")
        e(f"s_lshl_b32 s{S_DB}, s{S_GRP}, 23"); e(f"s_lshl_b32 s{S_T0}, s3, 13"); e(f"s_add_u32 s{S_DB}, s{S_DB}, s{S_T0}"); e(f"s_add_u32 s{S_DB}, s{S_DB}, 0x600000")
        e(f"s_lshl_b32 s{S_CA}, s{S_GRP}, 2"); e(f"s_and_b32 s{S_T0}, s3, 3"); e(f"s_add_u32 s{S_CA}, s{S_CA}, s{S_T0}"); e(f"s_lshl_b32 s{S_CA}, s{S_CA}, 8"); e(f"s_add_u32 s{S_CA}, s{S_CA}, {hex(CT)}")
        names = ["X", "Y", "Z", "U"][:self.opt("maxdyn", 2)]; NF = self.opt("nf", 32)
        self.b_tile("0", True); self.claim("c0"); self.b_tile("1", False)
        prev = "2"; ends = []
        for i, nm in enumerate(names):
            lab = self.newlab("dend")
            self.wait(f"c{i}")
            e(f"v_readfirstlane_b32 s{S_DX}, v{V_U1}"); e("s_nop 0")
            e(f"s_cmp_ge_u32 s{S_DX}, {NF + 2*(32-NF)}"); e(f"s_cbranch_scc1 {lab}")
            ends.append((lab, prev, list(self.q), list(self.free), dict(self.slot)))
            e(f"s_sub_u32 s{S_T0}, s{S_DX}, {NF}"); e(f"s_lshr_b32 s{S_T1}, s{S_T0}, 1"); e(f"s_add_u32 s{S_T1}, s{S_T1}, {NF}"); e(f"s_lshl_b32 s{S_T1}, s{S_T1}, 16")
            e(f"s_and_b32 s{S_T0}, s{S_T0}, 1"); e(f"s_lshl_b32 s{S_T0}, s{S_T0}, 12"); e(f"s_add_u32 s{S_T1}, s{S_T1}, s{S_T0}")
            e(f"s_lshl_b32 s{S_T0}, s{S_DX}, 16")
            e(f"s_cmp_lt_u32 s{S_DX}, {NF}")
            e(f"s_cselect_b32 s{S_DX}, s{S_T0}, s{S_T1}"); e(f"s_cselect_b32 s{S_BIAS[nm]}, 0, 0xff7fffff"); e(f"s_cselect_b32 s{S_T0}, 0, 0x40000000")
            e(f"s_add_u32 s{S_DX}, s{S_DX}, s{S_DB}"); e(f"v_add_u32 v{V_GA}, s{S_T0}, v{V_K1}"); e(f"v_add_u32 v{V_GB}, s{S_T0}, v{V_L1}")
            assert not self.seq
            self.seq = ["K" + nm, "V" + nm]
            assert self.issue_next()
            if i + 1 < len(names): self.claim(f"c{i+1}")
            self.seq = ["HOLD"] + self.seq if False else self.seq
            self.b_tile(prev, False)
            prev = nm
        self.last_tile(prev)
        for lab, t, q, free, slot in ends:
            self.label(lab)
            self.q, self.free, self.slot, self.seq = q, free, slot, []
            self.last_tile(t)

    def last_tile(self, tl):
        e = self.e; old = self.old
        uk, uv = f"K{tl}", f"V{tl}"
        assert not self.seq
        if not old:
            wh = self.opt("whold", 1)
            self.seq = {0: ["WA", "WB"], 1: ["WA", "HOLD", "WB"], 2: ["HOLD", "WA", "WB"], 3: ["WA", "HOLD", "WB"]}[wh]
            while self.issue_next(): pass
        self.pre_tail()
        R = self.free[0]
        if old and self.isO:
            self.lds_spin(F_AC, 8)
            self.combine_a(R, 0, R + 24, 8); self.combine_a(R, 4, R + 28, 8)
        self.wait(uk)
        self.qk(self.slot[uk], False, S_BIAS.get(tl)); self.release(uk)
        R2 = self.free[1]
        if self.opt("nobm", 1) and not old and self.isO:
            self.lds_inc(F_LT); e("s_nop 3")
        else: e("s_nop 7")
        def hook():
            e("s_mov_b32 exec_hi, 0")
            self.vm(f"buffer_store_dwordx4 v[{R+24}:{R+27}], v{V_PO}, s[{WS}:{WS+3}], s{S_POA} offen sc1", "st")
            self.vm(f"buffer_store_dwordx4 v[{R+28}:{R+31}], v{V_PO}, s[{WS}:{WS+3}], s{S_POA2} offen sc1", "st")
            e("s_mov_b32 exec_hi, -1")
        hk = hook if (old and self.isO) else None
        self.tilemax(False)
        if self.opt("nobm", 1):
            if not old:
                if self.opt("yprio", 1): e("s_setprio 2")
            self.softmax_rest(False)
            self.write_ml()
            e(f"v_mov_b32 v{R+19}, s{S_NONCE}")
            self.stamp(2)
            if old:
                self.wait(uv)
                self.perm_mfma8(self.slot[uv], PR, False, True); self.release(uv)
                e("s_nop 3")
                self.write_o(1)
                self.lds_inc(F_OC)
                self.lds_spin(F_OC, 4)
                self.precombine_b(R2, 0); self.precombine_b(R2, 4)
                if hk:
                    self.lds_spin(F_LT, 4)
                    hk()
                self.stamp(6)
            else:
                self.pv_last(uv, self.slot[uv], R2); self.release(uv)
                self.write_o(1)
                if self.opt("whold", 1) == 3:
                    self.seq.pop(0); fr = self.free; self.free = [fr[-1]]; assert self.issue_next(); self.free = fr[:-1]
            e(f"v_and_b32 v{R+16}, 1, v0"); e(f"v_cmp_eq_u32 vcc, 1, v{R+16}")
            if not old and self.opt("ylow", 1): e("s_setprio 0")
            e("s_waitcnt lgkmcnt(0)")
            e("s_barrier")
            self.stamp(7)
            self.o_publish5(R, R2)
        else:
            if old:
                self.softmax_rest(False)
                self.wait(uv)
                self.perm_mfma8(self.slot[uv], PR, False, True); self.release(uv)
                self.xlane("v_add_f32", V_LS, T[1], (16, 32))
                e(f"v_mov_b32 v{T[0]}, v{V_M}")
                self.common_scale(R, hk, True)
                self.stamp(2); self.stamp(6)
            else:
                if self.opt("yprio", 1): e("s_setprio 2")
                self.common_scale(R, None, False)
                self.stamp(2)
                self.pv_last(uv, self.slot[uv], R2); self.release(uv)
            self.write_o(1)
            if not old and self.opt("ylow", 1): e("s_setprio 0")
            e("s_waitcnt lgkmcnt(0)")
            e("s_barrier")
            self.stamp(7)
            self.o_publish(R, R2)
        self.stamp(8)
        if self.opt("notail", 0):
            if not old:
                if self.seq and self.seq[0] == "HOLD": self.seq.pop(0)
                while self.issue_next(): pass
            e("s_waitcnt vmcnt(0)"); self.stamp(9); self.stamp(11); self.stamp(10); self.stamp_flush(); e("s_endpgm")
        elif old: self.tail_old()
        else: self.tail_young()

    def gather_reduce(self, D, n, gv, off):
        e = self.e; dp = self.dp
        M, u, mc, Ls = T[0], T[1], T[2], T[3]
        X = WSET[0]; E = RING[1]
        e(f"s_mov_b32 s{S_T0}, 0xffff0000")
        for i in range(n): e(f"v_mov_b32_dpp v{E+4*i}, v{D+4*i+2} quad_perm:[0,0,2,2] row_mask:0xf bank_mask:0xf")
        if n == 4: e(f"v_max3_f32 v{M}, v{E}, v{E+4}, v{E+8}"); e(f"v_max_f32 v{M}, v{M}, v{E+12}")
        else: e(f"v_max_f32 v{M}, v{E}, v{E+4}")
        up = [E + 16, E + 20, E + 24, E + 28]
        fill = []
        for i in range(n):
            r = up[i]
            fill += [f"v_lshlrev_b32 v{r}, 16, v{D+4*i}", f"v_and_b32 v{r+1}, s{S_T0}, v{D+4*i}", f"v_lshlrev_b32 v{r+2}, 16, v{D+4*i+1}", f"v_and_b32 v{r+3}, s{S_T0}, v{D+4*i+1}"]
        fill += [f"v_mov_b32_dpp v{E+4*i+2}, v{D+4*i+2} quad_perm:[1,1,3,3] row_mask:0xf bank_mask:0xf" for i in range(n)]
        def fl(k):
            for _ in range(k): e(fill.pop(0))
        fl(2)
        dp("v_max_f32", M, 8)
        e(f"v_mov_b32 v{u}, v{M}"); fl(2)
        e(f"v_permlane16_swap_b32 v{M}, v{u}"); e(f"v_max_f32 v{M}, v{M}, v{u}")
        e(f"v_mov_b32 v{u}, v{M}"); fl(2)
        e(f"v_permlane32_swap_b32 v{M}, v{u}"); e(f"v_max_f32 v{M}, v{M}, v{u}")
        e(f"v_mul_f32 v{mc}, s{S_C}, v{M}")
        for i in range(n): e(f"v_fma_f32 v{E+4*i}, v{E+4*i}, s{S_C}, -v{mc}")
        for i in range(n): e(f"v_exp_f32 v{E+4*i}, v{E+4*i}")
        fl(len(fill))
        for i in range(n):
            ee = E + 4 * i
            for h in range(2):
                if i == 0: e(f"v_pk_mul_f32 v[{X+2*h}:{X+2*h+1}], v[{up[i]+2*h}:{up[i]+2*h+1}], v[{ee}:{ee+1}] op_sel_hi:[1,0]")
                else: e(f"v_pk_fma_f32 v[{X+2*h}:{X+2*h+1}], v[{up[i]+2*h}:{up[i]+2*h+1}], v[{ee}:{ee+1}], v[{X+2*h}:{X+2*h+1}] op_sel_hi:[1,0,1]")
            e(f"{'v_mul_f32' if i == 0 else 'v_fmac_f32'} v{Ls}, v{E+4*i+2}, v{ee}")
        for r in (X, X + 1, X + 2, X + 3, Ls): dp("v_add_f32", r, 8)
        e(f"v_mov_b32 v{u}, v{Ls}")
        e(f"v_permlane16_swap_b32 v{X}, v{X+1}"); e(f"v_permlane16_swap_b32 v{X+2}, v{X+3}"); e(f"v_permlane16_swap_b32 v{Ls}, v{u}")
        e(f"v_add_f32 v{Ls}, v{Ls}, v{u}"); e(f"v_add_f32 v{X}, v{X}, v{X+1}"); e(f"v_add_f32 v{X+2}, v{X+2}, v{X+3}")
        e(f"v_mov_b32 v{u}, v{Ls}"); e("s_nop 0")
        e(f"v_permlane32_swap_b32 v{X}, v{X+2}"); e(f"v_permlane32_swap_b32 v{Ls}, v{u}")
        e(f"v_add_f32 v{Ls}, v{Ls}, v{u}"); e(f"v_add_f32 v{X}, v{X}, v{X+2}")
        e(f"v_rcp_f32 v{Ls}, v{Ls}")
        e(f"v_mul_f32 v{X}, v{X}, v{gv}")
        e(f"v_mul_f32 v{X}, v{X}, v{Ls}")
        e(f"v_cvt_pk_bf16_f32 v{X}, v{X}, v{X}")
        e("s_mov_b32 exec_lo, 0x00ff00ff"); e("s_mov_b32 exec_hi, 0x00ff00ff")
        e(f"ds_write_b16 v{HA[1]}, v{X} offset:{off}")
        e("s_mov_b64 exec, -1")

    def tail_old(self):
        e = self.e
        D = OACC
        mk = lambda D, v, sa, n, st: [f"buffer_load_dwordx4 v[{D+4*i}:{D+4*i+3}], v{v}, s[{WS}:{WS+3}], s{sa} offen offset:{st*i} sc1" for i in range(n)]
        la_, jn = self.newlab("ga"), self.newlab("gj")
        ps = self.opt("posleep", 0)
        aw = self.opt("aw", 0)
        if aw:
            for i in range(4): e(f"v_mov_b32 v{D+4*i+3}, 0")
        e("s_cmp_ge_u32 s3, 2"); e(f"s_cbranch_scc1 {la_}")
        e(f"s_add_u32 s{self.S_HO}, s{self.S_HO}, {hex(PO_BR)}")
        self.poll_missing(mk(D, V_L0, self.S_HO, 4, 1024), [[D + 4 * i + 3] for i in range(4)], ps, first=not aw, watch=True)
        self.stamp(9)
        self.gather_reduce(D, 4, V_GB, OB + 128)
        e(f"s_branch {jn}")
        self.label(la_)
        self.poll_missing(mk(D, V_L0, self.S_HO, 2, 1024), [[D + 4 * i + 3] for i in range(2)], ps, first=not aw, watch=True)
        self.stamp(9)
        self.gather_reduce(D, 2, V_GA, OB)
        self.lds_inc(F_OA)
        self.label(jn)
        e("s_waitcnt lgkmcnt(0)")
        e("s_barrier")
        if self.isO:
            self.stamp(10); self.stamp_flush(); e("s_endpgm"); return
        R = RING[0]
        e(f"s_mov_b32 s{S_SELLO}, 0x0c0c0400"); e(f"s_mov_b32 s{S_SELHI}, 0x05040100")
        self.stamp(1)
        lf = mk(R, HA[4], self.S_PFR, 2, 2048)
        if self.opt("fsleep0", 0): e(f"s_sleep {self.opt('fsleep0', 0)}")
        if self.opt("fw", 0):
            e(f"v_mov_b32 v{R}, 0"); e(f"v_mov_b32 v{R+4}, 0")
        self.poll_missing(lf, [["emb", R], ["emb", R + 4]], self.opt("pfsleep", 0), first=not self.opt("fw", 0), watch=True, lpl=4, thr=self.opt("fthr", self.opt("wthr", 8)))
        self.stamp(11)
        for i in range(8): e(f"v_and_b32 v{R+i}, 0xffffff00, v{R+i}")
        e(f"v_pk_add_f32 v[{R}:{R+1}], v[{R}:{R+1}], v[{R+4}:{R+5}]"); e(f"v_pk_add_f32 v[{R+2}:{R+3}], v[{R+2}:{R+3}], v[{R+6}:{R+7}]")
        e("s_nop 0")
        for ror in (4, 8):
            for i in range(4): self.dp("v_add_f32", R + i, ror)
        e("s_nop 0")
        e(f"v_permlane16_swap_b32 v{R}, v{R+1}"); e(f"v_permlane16_swap_b32 v{R+2}, v{R+3}")
        e(f"v_add_f32 v{R}, v{R}, v{R+1}"); e(f"v_add_f32 v{R+2}, v{R+2}, v{R+3}")
        e("s_nop 1")
        e(f"v_permlane32_swap_b32 v{R}, v{R+2}")
        e(f"v_add_f32 v{R}, v{R}, v{R+2}")
        e("s_mov_b32 exec_lo, 0x000f000f"); e("s_mov_b32 exec_hi, 0x000f000f")
        e(f"ds_write_b32 v{HA[2]}, v{R}")
        e("s_mov_b64 exec, -1")
        e("s_waitcnt lgkmcnt(0)")
        e("s_barrier")
        done = self.newlab("qdone")
        e("s_cmp_lg_u32 s3, 0"); e(f"s_cbranch_scc1 {done}")
        for w in range(4): e(f"ds_read_b64 v[{R+2*w}:{R+2*w+1}], v{HA[3]} offset:{FR + w*64}")
        e("s_waitcnt lgkmcnt(0)")
        e(f"v_pk_add_f32 v[{R}:{R+1}], v[{R}:{R+1}], v[{R+2}:{R+3}]"); e(f"v_pk_add_f32 v[{R+4}:{R+5}], v[{R+4}:{R+5}], v[{R+6}:{R+7}]")
        e(f"v_pk_add_f32 v[{R}:{R+1}], v[{R}:{R+1}], v[{R+4}:{R+5}]")
        e(f"v_cvt_pk_bf16_f32 v{R}, v{R}, v{R+1}")
        e("s_mov_b64 exec, 0xff")
        e(f"buffer_store_dword v{R}, v{V_WA}, s[{OUT}:{OUT+3}], s{self.S_OUT} offen")
        if self.opt("clean", 1):
            e(f"s_cmp_lg_u32 s{S_J}, 0"); e(f"s_cbranch_scc1 {done}")
            e(f"v_mov_b32 v{R+2}, 0")
            e("s_mov_b64 exec, 1")
            e(f"buffer_store_dword v{R+2}, off, s[{DBG}:{DBG+3}], 0 sc1")
        e("s_mov_b64 exec, -1")
        self.label(done)
        e("s_mov_b64 exec, -1")
        self.stamp(10); self.stamp_flush(); e("s_endpgm")

    def tail_young(self):
        e = self.e
        if self.seq and self.seq[0] == "HOLD": self.seq.pop(0)
        self.free = self.free[1:] + self.free[:1]
        while self.issue_next(): pass
        assert not self.seq
        if self.opt("ylow", 1): e("s_setprio 2")
        F0, F1 = self.free[:2]
        PK = SR
        OPR = QR + 8
        e(f"v_mov_b32 v{PK+4}, s{S_NONCE}")
        self.wait("WA")
        for dd in range(8): self.perms(F0 + dd * 4, self.slot["WA"], dd)
        self.stamp(11)
        self.wait("WB")
        for dd in range(8): self.perms(F1 + dd * 4, self.slot["WB"], dd)
        self.stamp(9)
        self.lds_spin(F_OA, 2)
        e(f"ds_read_b128 v[{OPR}:{OPR+3}], v{HA[2]} offset:{OB}")
        e("s_waitcnt lgkmcnt(0)")
        for dd in range(8): self.mfma(OACC + dd * 4, OPR, F0 + dd * 4, None)
        e("s_barrier")
        self.stamp(1)
        e(f"ds_read_b128 v[{OPR+4}:{OPR+7}], v{HA[2]} offset:{OB+128}")
        e("s_waitcnt lgkmcnt(0)")
        for dd in (0, 4, 1, 5, 2, 6, 3, 7): self.mfma(OACC + dd * 4, OPR + 4, F1 + dd * 4, OACC + dd * 4)
        e("s_nop 4")
        for i in range(4): e(f"v_cndmask_b32 v{PK+i}, v{OACC+4*i}, v{OACC+16+4*i}, s[100:101]")
        for i in range(4): e(f"v_perm_b32 v{PK+i}, v{PK+i}, v{PK+4}, s{4+i}")
        e(f"buffer_store_dwordx4 v[{PK}:{PK+3}], v{HA[3]}, s[{WS}:{WS+3}], s98 offen sc1")
        self.stamp(10); self.stamp_flush(); e("s_endpgm")

    def body(self, young_first):
        e = self.e; isO = self.isO
        p = "o" if isO else "q"
        base_q, base_free = list(self.q), list(self.free)
        e("s_cmp_ge_u32 s3, 4"); e(f"s_cbranch_scc1 L_{p}_y")
        for old in (True, False):
            self.q, self.free, self.slot = list(base_q), list(base_free), {}
            self.old = old
            if old: order = ["0", "1", "2"] + (["A"] if isO else []) + ["3"]
            else: order = (["A"] if isO else []) + ["0", "1", "2"]
            self.seq = [x for t in order for x in (f"K{t}", f"V{t}")]
            if not old: self.label(f"L_{p}_y")
            if old:
                self.gate_loads()
                if isO and self.opt("gatefirst", 1):
                    self.nonce_duty(0); self.gate()
                while self.issue_next(): pass
                if not (isO and self.opt("gatefirst", 1)): self.gate()
            elif self.opt("noq", 0):
                while self.issue_next(): pass
            else:
                if isO and not self.opt("gatefirst", 1): self.nonce_duty(4)
                young_first()
                self.young_prefetch()
            self.wait_q()
            self.stamp(5)
            self.tiles()

    def nonce_duty(self, wave):
        e = self.e
        lab = self.newlab("non")
        e("s_xor_b32 s98, s2, 16"); e(f"s_xor_b32 s{S_T2}, s3, {wave}"); e(f"s_or_b32 s98, s98, s{S_T2}"); e("s_cmp_lg_u32 s98, 0"); e(f"s_cbranch_scc1 {lab}")
        e("s_setprio 3")
        e("v_lshlrev_b32 v26, 8, v0"); e("v_mov_b32 v27, 0"); e(f"s_mov_b32 s98, {hex(CT)}")
        e("s_mov_b32 exec_hi, 0")
        e(f"buffer_store_dword v27, v26, s[{WS}:{WS+3}], s98 offen sc1")
        e("s_waitcnt vmcnt(0)")
        e("s_or_b32 s98, s96, 1"); e("v_mov_b32 v26, s98")
        e("s_mov_b64 exec, 1")
        e(f"buffer_store_dword v26, off, s[{DBG}:{DBG+3}], 0 sc1")
        e("s_mov_b64 exec, -1")
        e("s_setprio 0")
        self.label(lab)

    def roleQ(self):
        e = self.e
        e("v_and_b32 v26, 1, v24"); e(f"v_lshlrev_b32 v{V_X}, 11, v26"); e(f"v_lshl_add_u32 v{V_X}, v25, 5, v{V_X}")
        e("v_bfe_u32 v26, v24, 2, 1"); e(f"v_lshl_add_u32 v{V_X}, v26, 4, v{V_X}")
        e("v_lshrrev_b32 v26, 3, v0"); e(f"v_lshlrev_b32 v{V_WA}, 16, v26"); e("v_and_b32 v26, 7, v0"); e(f"v_lshl_add_u32 v{V_WA}, v26, 4, v{V_WA}")
        e(f"s_and_b32 s{S_CG}, s{S_J}, 63"); e(f"s_lshl_b32 s{S_W}, s{S_CG}, 7"); e(f"s_lshl_b32 s{S_T1}, s3, 20"); e(f"s_add_u32 s{S_W}, s{S_W}, s{S_T1}")
        e(f"s_lshl_b32 s{S_T1}, s3, 8")
        e("s_waitcnt lgkmcnt(0)")
        e("s_cmp_ge_u32 s2, 128")
        e(f"s_cselect_b32 s{W1}, s64, s54"); e(f"s_cselect_b32 s{W1+1}, s65, s55"); e(f"s_mov_b32 s{W1+2}, 0x800000"); e(f"s_mov_b32 s{W1+3}, 0x20000")
        self.srd(XS, 48, 4096); self.srd(DBG, 72, 256)

        self.vm(f"buffer_load_dwordx4 v[{QR}:{QR+3}], v{V_X}, s[{XS}:{XS+3}], s{S_T1} offen", "x")
        self.vm(f"buffer_load_dwordx4 v[{QR+4}:{QR+7}], v{V_X}, s[{XS}:{XS+3}], s{S_T1} offen offset:128", "x")
        for u in range(2):
            for ee in range(8):
                r = RING[u] + ee * 4
                e(f"s_add_u32 s{S_T0}, s{S_W}, {(u*64+ee)*8192}")
                self.vm(f"buffer_load_dwordx4 v[{r}:{r+3}], v{V_WA}, s[{W1}:{W1+3}], s{S_T0} offen nt", u)
        self.vm(f"buffer_load_dword v{V_U1}, off, s[{DBG}:{DBG+3}], 0 sc1", "nn")
        self.srd(KB, 60, 0x4000000); self.srd(VB, 62, 0x4000000); self.srd_ws(); self.srd(OUT, 70, 4096)
        self.srd(KA, 50, 0x4000000); self.srd(VA, 52, 0x4000000); self.srd(W2, 66, 0x800000)
        e("s_cmp_ge_u32 s3, 4")
        e(f"s_cselect_b32 s{GT}, s56, s68"); e(f"s_cselect_b32 s{GT+1}, s57, s69"); e(f"s_movk_i32 s{GT+2}, 2048"); e(f"s_cselect_b32 s{GT+2}, 0x800000, s{GT+2}"); e(f"s_mov_b32 s{GT+3}, 0x20000")
        e(f"s_lshl_b32 s{S_AB}, s{S_IDX}, 4"); e(f"s_add_u32 s{S_AB}, s{S_AB}, s3"); e(f"s_add_u32 s{S_AB}, s{S_AB}, 12"); e(f"s_lshl_b32 s{S_AB}, s{S_AB}, 12")
        e(f"s_lshl_b32 s{S_T0}, s{S_GRP}, 23"); e(f"s_add_u32 s{S_AB}, s{S_AB}, s{S_T0}"); e(f"s_add_u32 s{S_AB}, s{S_AB}, 0x700000")
        self.common_setup()
        if self.stamps: e("s_mov_b64 s[48:49], s[96:97]")
        e("s_barrier")
        self.wait(0)
        self.perm_mfma8(RING[0], QR, True, False)
        e("v_bfe_u32 v26, v0, 3, 1"); e("v_lshlrev_b32 v27, 9, v26"); e("v_and_b32 v26, 7, v0"); e("v_lshl_add_u32 v27, v26, 6, v27")
        e(f"s_lshl_b32 s{S_T0}, s3, 10"); e(f"s_add_u32 s{S_T0}, s{S_T0}, {CO}"); e(f"v_add_u32 v27, s{S_T0}, v27")
        e("v_mov_b32 v28, 1")
        self.wait(1)
        self.perm_mfma8(RING[1], QR + 4, False, False)
        e("s_mov_b32 exec_lo, 0xff0000ff"); e("s_mov_b32 exec_hi, 0")
        e("s_nop 1")
        for dd in range(8):
            e(f"ds_write_b64 v27, v[{OACC+dd*4}:{OACC+dd*4+1}] offset:{dd*8}")
        e("s_mov_b64 exec, 1")
        e(f"ds_add_u32 v{V_FLG}, v28 offset:{F_CNT - FLG}")
        e("s_mov_b64 exec, -1")
        def young_first():
            e("s_setprio 3")
            e("v_lshrrev_b32 v26, 5, v0"); e("v_lshlrev_b32 v27, 12, v26"); e("v_lshlrev_b32 v28, 14, v26")
            e("v_and_b32 v26, 31, v0"); e("v_lshl_add_u32 v27, v26, 4, v27"); e(f"v_add_u32 v27, {CO}, v27"); e("v_lshl_add_u32 v28, v26, 3, v28")
            e(f"s_lshr_b32 s{S_T0}, s{S_J}, 6"); e(f"s_lshl_b32 s{S_T0}, s{S_T0}, 15"); e(f"s_lshl_b32 s{S_T1}, s{S_CG}, 8")
            e(f"s_add_u32 s{S_T2}, s{S_T0}, s{S_T1}")
            self.wait("nn")
            self.get_nonce()
            self.lds_spin(F_CNT, 8)
            for p in range(8):
                e(f"ds_read_b128 v[{OACC+p*4}:{OACC+p*4+3}], v27 offset:{p*512}")
            e("s_waitcnt lgkmcnt(0)")
            for p in (4, 2, 1):
                for q in range(p):
                    for i in (0, 2):
                        e(f"v_pk_add_f32 v[{OACC+q*4+i}:{OACC+q*4+i+1}], v[{OACC+q*4+i}:{OACC+q*4+i+1}], v[{OACC+(q+p)*4+i}:{OACC+(q+p)*4+i+1}]")
            e(f"v_mov_b32 v{OACC+5}, s{S_NONCE}")
            e("s_nop 0")
            e(f"v_permlane32_swap_b32 v{OACC}, v{OACC+1}"); e(f"v_permlane32_swap_b32 v{OACC+2}, v{OACC+3}")
            e(f"v_add_f32 v{OACC}, v{OACC}, v{OACC+1}"); e(f"v_add_f32 v{OACC+2}, v{OACC+2}, v{OACC+3}")
            e(f"v_cvt_pk_bf16_f32 v{OACC+4}, v{OACC}, v{OACC+2}")
            e(f"s_and_b32 s{S_T0}, s3, 3"); e(f"s_lshl_b32 s{S_T0}, s{S_T0}, 4"); e(f"s_lshl_b64 exec, 0xffff, s{S_T0}")
            self.vm(f"buffer_store_dwordx2 v[{OACC+4}:{OACC+5}], v28, s[{WS}:{WS+3}], s{S_T2} offen sc1", "st")
            e("s_mov_b64 exec, -1")
            e("s_setprio 0")
            self.stamp(3)
        self.free = [RING[2], RING[3], RING[4], RING[0], RING[1]]
        self.body(young_first)

    def roleO(self):
        e = self.e
        e(f"s_lshl_b32 s{S_AB}, s{S_IDX}, 3"); e(f"s_add_u32 s{S_AB}, s{S_AB}, s3"); e(f"s_lshl_b32 s{S_AB}, s{S_AB}, 13"); e(f"s_add_u32 s{S_AB}, s{S_AB}, s{S_T0}")
        e(f"s_add_u32 s{S_AB}, s{S_AB}, 0x700000")
        self.common_setup()
        e("s_waitcnt lgkmcnt(0)")
        self.srd(XS, 48, 4096); self.srd(GT, 68, 2048); self.srd(KB, 60, 0x4000000); self.srd(VB, 62, 0x4000000)
        self.srd(KA, 50, 0x4000000); self.srd(VA, 52, 0x4000000); self.srd_ws(); self.srd(DBG, 72, 256)
        self.srd(W1, 56, 0x800000); self.srd(W2, 66, 0x800000)
        if self.stamps: e("s_mov_b64 s[48:49], s[96:97]")
        e("s_barrier")
        self.free = list(RING)
        self.body(lambda: None)

if __name__ == "__main__":
    out = sys.argv[1]
    st = "--stamps" in sys.argv
    opts = dict(a[2:].split("=") for a in sys.argv[2:] if a.startswith("--") and "=" in a)
    open(out, "w").write(G(stamps=st, opts=opts).build())
```

```python
import sys, struct, math
KNAME = "gated_mix__sliding_block_cached__gqa_block_cached__decode_kernel"
def f2u(x): return struct.unpack("<I", struct.pack("<f", x))[0]

QG, PO, PF, STAMP = 0, 0x100000, 0x600000, 0x800000
PO_BR = 0x100000
CT = 0x50000
WS_SIZE = 0x1000000
CM, CL, OB, FR, FLG, QOP, CO = 0, 512, 1024, 1280, 1792, 2048, 6656
F_CNT, F_QC, F_NON, F_AC, F_OA, F_OC, F_LT = [FLG + 4 * i for i in range(7)]
F_LATE = FLG + 28
CO_BR, CO_W, CO_H = 33792, 4224, 528
LDS_SIZE = 74240
KB, VB, KA, VA, W1, W2, WS, XS, GT, OUT, DBG = 4, 8, 12, 16, 20, 24, 28, 32, 36, 40, 44
S_SELLO, S_SELHI, S_C, S_NONCE, S_GRP, S_IDX, S_SPLIT, S_BB, S_AB = 76, 77, 78, 79, 80, 81, 82, 83, 84
S_T0, S_T1, S_T2, S_T3, S_CNT, S_J, S_W = 85, 86, 87, 88, 89, 90, 91
S_POB, S_POA, S_POA2, S_CG = 92, 93, 94, 95
S_OK, S_QA, S_QB = 99, 100, 101
S_DX, S_DB, S_CA = 99, 100, 101
S_LATE = 73
S_BIAS = {'X': 70, 'Y': 71, 'Z': 75, 'U': 97}
V_K0, V_K1, V_L0, V_L1 = 1, 2, 3, 4
V_COW, V_MLW, V_QR, V_COR, V_MLR, V_FLG, V_QW, V_X, V_WA, V_GA, V_GB = 5, 6, 7, 8, 9, 10, 11, 12, 13, 14, 15
V_PO = V_X
HA = [None, 1, 2, 4, 11]
WSET = [16, 20]
T = list(range(24, 32))
OACC, QR, SR, PR, V_M, V_LS, V_U0, V_U1 = 32, 64, 80, 88, 92, 93, 94, 95
RING = [96 + 32 * i for i in range(5)]
SPIN_MAX = 20000
NEGMAX = "0xff7fffff"

class G:
    def __init__(self, stamps=False, opts=None):
        self.L = []; self.stamps = stamps; self.lab = 0
        self.o = opts or {}
        self.q = []
    def opt(self, k, d): return int(self.o.get(k, d))
    def e(self, s): self.L.append("    " + s)
    def label(self, s): self.L.append(s + ":")
    def newlab(self, p):
        self.lab += 1; return f"L_{p}{self.lab}"
    def srd(self, d, b, n):
        self.e(f"s_mov_b32 s{d}, s{b}"); self.e(f"s_mov_b32 s{d+1}, s{b+1}")
        self.e(f"s_mov_b32 s{d+2}, {hex(n)}"); self.e(f"s_mov_b32 s{d+3}, 0x20000")
    def srd_ws(self):
        off = self.opt("wsoff", 0)
        if off:
            self.e(f"s_add_u32 s74, s74, {hex(off << 20)}"); self.e("s_addc_u32 s75, s75, 0")
        self.srd(WS, 74, WS_SIZE)
    def stamp(self, i):
        if self.stamps: self.e(f"s_memrealtime s[{48+2*i}:{49+2*i}]")
    def stamp_flush(self):
        if not self.stamps: return
        e = self.e
        e("s_waitcnt lgkmcnt(0)")
        e("s_lshl_b32 s92, s2, 3"); e("s_add_u32 s92, s92, s3"); e("s_lshl_b32 s92, s92, 7"); e(f"s_add_u32 s92, s92, {hex(STAMP)}")
        e("s_mov_b64 exec, 1")
        for i in range(12):
            e(f"v_mov_b32 v16, s{48+2*i}"); e(f"v_mov_b32 v17, s{49+2*i}")
            e(f"buffer_store_dwordx2 v[16:17], off, s[{WS}:{WS+3}], s92 offset:{i*8}")
            e("s_nop 0")
        e("s_mov_b64 exec, -1")
    def vm(self, s, tag):
        self.e(s); self.q.append(tag)
    def wait(self, tag, keep=0):
        idx = [i for i, t in enumerate(self.q) if t == tag]
        if not idx: return
        last = idx[len(idx) - 1 - keep]
        n = len(self.q) - 1 - last
        assert n <= 63
        self.e(f"s_waitcnt vmcnt({n})")
        self.q = self.q[last + 1:]
    def lds_inc(self, off):
        e = self.e
        e(f"v_mov_b32 v{T[1]}, 1")
        e("s_mov_b64 exec, 1"); e(f"ds_add_u32 v{V_FLG}, v{T[1]} offset:{off - FLG}"); e("s_mov_b64 exec, -1")
    def issue_next(self):
        if not self.seq or not self.free: return False
        if self.seq[0] == "HOLD": return False
        u = self.seq.pop(0); r = self.free.pop(0); self.slot[u] = r
        ld = lambda j, v, srd, so, off: self.vm(f"buffer_load_dwordx4 v[{r+j*4}:{r+j*4+3}], v{v}, s[{srd}:{srd+3}], s{so} offen offset:{off} nt", u)
        if u[0] == "W":
            srd = self.WOA if u == "WA" else W2
            rng = range(8)
            if u == "WB" and getattr(self, "wb_part", None) is not None:
                rng = self.wb_part
            for ee in rng:
                off = ((ee & 3) * 8 + (ee >> 2)) * 2048
                self.e(f"s_add_u32 s{S_T0}, s{S_W}, {off & ~4095}")
                pw = self.opt("pwb", 0) if (u == "WB" or self.opt("whold", 1) == 2) else 0
                if pw: self.e(f"s_waitcnt vmcnt({pw - 1})")
                ld(ee, V_WA, srd, S_T0, off & 4095)
            return True
        n = 4 if u[1] in "Ha" else 8
        if u[1] in "Aa": srd, so = (KA if u[0] == "K" else VA), S_AB
        elif u[1] in "XYZU": srd, so = (KB if u[0] == "K" else VB), S_DX
        else:
            srd, so = (KB if u[0] == "K" else VB), S_T0
            self.e(f"s_add_u32 s{S_T0}, s{S_BB}, {hex(int(u[1]) * 0x200000)}")
        for j in range(n):
            dy = u[1] in "XYZU"
            if u[0] == "K": ld(j, (V_GA if dy else V_K1) if j >= 4 else V_K0, srd, so, (j & 3) * 64)
            else: ld(j, (V_GB if dy else V_L1) if j >= 4 else V_L0, srd, so, (j & 3) * 1024)
        return True
    def release(self, u): self.free.append(self.slot[u])
    def perm1(self, dst, src, dd, p):
        sel = S_SELHI if dd & 1 else S_SELLO
        self.e(f"v_perm_b32 v{dst+p}, v{src+(2*p+1)*4+(dd>>1)}, v{src+(2*p)*4+(dd>>1)}, s{sel}")
    def perms(self, dst, src, dd):
        for p in range(4): self.perm1(dst, src, dd, p)
    def mfma(self, d, a, b, c):
        cs = "0" if c is None else f"v[{c}:{c+3}]"
        self.e(f"v_mfma_f32_16x16x32_bf16 v[{d}:{d+3}], v[{a}:{a+3}], v[{b}:{b+3}], {cs}")
    def perm_mfma8(self, src, other, first, w_is_a, acc=OACC):
        def mm(dd):
            w = WSET[dd & 1]; d = acc + dd * 4
            if w_is_a: self.mfma(d, w, other, None if first else d)
            else: self.mfma(d, other, w, None if first else d)
        self.perms(WSET[0], src, 0)
        for dd in range(1, 8):
            self.perms(WSET[dd & 1], src, dd)
            mm(dd - 1)
        self.e("s_nop 0")
        mm(7)
    def pv_last(self, tag, src, dst, hook=None, hookpos=0):
        if hook and hookpos == 0: hook()
        self.wait(tag, keep=2)
        if hook and hookpos == 1: hook()
        for p in range(3):
            for dd in range(8): self.perm1(dst + dd * 4, src, dd, p)
        self.wait(tag)
        self.stamp(6)
        for dd in range(8):
            self.perm1(dst + dd * 4, src, dd, 3)
            if dd >= 2: self.mfma(OACC + (dd-2) * 4, dst + (dd-2) * 4, PR, OACC + (dd-2) * 4)
        self.e("s_nop 0")
        for dd in (6, 7): self.mfma(OACC + dd * 4, dst + dd * 4, PR, OACC + dd * 4)
    def qk(self, r, half=False, bias=None):
        if bias is not None:
            for i in range(4): self.e(f"v_mov_b32 v{SR+4+i}, s{bias}")
            self.e("s_nop 0")
        for jj in range(4):
            self.mfma(SR, r + jj * 4, QR + jj * 4, None if jj == 0 else SR)
            if not half: self.mfma(SR + 4, r + 16 + jj * 4, QR + jj * 4, None if (jj == 0 and bias is None) else SR + 4)
        if half:
            for i in range(4): self.e(f"v_mov_b32 v{SR+4+i}, {NEGMAX}")
    def xlane(self, op, t, u, kinds):
        for k in kinds:
            self.e(f"v_mov_b32 v{u}, v{t}"); self.e("s_nop 1")
            self.e(f"v_permlane{k}_swap_b32 v{t}, v{u}")
            self.e(f"{op} v{t}, v{t}, v{u}")
    def dp(self, op, r, ror): self.e(f"{op}_dpp v{r}, v{r}, v{r} row_ror:{ror} row_mask:0xf bank_mask:0xf")
    def dpp(self, op, t, rors):
        for r in rors:
            self.e("s_nop 1"); self.dp(op, t, r)
    def tilemax(self, first):
        e = self.e; t, u = T[0], T[1]; S = SR
        e(f"v_max3_f32 v{t}, v{S}, v{S+1}, v{S+2}"); e(f"v_max3_f32 v{t}, v{t}, v{S+3}, v{S+4}")
        e(f"v_max3_f32 v{t}, v{t}, v{S+5}, v{S+6}")
        if first: e(f"v_max_f32 v{t}, v{t}, v{S+7}")
        else: e(f"v_max3_f32 v{t}, v{t}, v{S+7}, v{V_M}")
        self.xlane("v_max_f32", t, u, (16, 32))
    def rescale(self, al):
        for i in range(16):
            self.e(f"v_pk_mul_f32 v[{OACC+2*i}:{OACC+2*i+1}], v[{OACC+2*i}:{OACC+2*i+1}], v[{al}:{al+1}] op_sel_hi:[1,0]")
    def softmax_rest(self, first, V_M=V_M, V_LS=V_LS):
        e = self.e; t, u, mc, al = T[0], T[1], T[2], T[4]; S = SR
        e(f"v_mul_f32 v{mc}, s{S_C}, v{t}")
        if not first:
            e(f"v_fma_f32 v{al}, v{V_M}, s{S_C}, -v{mc}")
            e(f"v_exp_f32 v{al}, v{al}")
        e(f"v_mov_b32 v{V_M}, v{t}")
        for i in range(8): e(f"v_fma_f32 v{S+i}, v{S+i}, s{S_C}, -v{mc}")
        for i in range(8): e(f"v_exp_f32 v{S+i}, v{S+i}")
        if not first: self.rescale(al)
        else: e("s_nop 0")
        e(f"v_add_f32 v{t}, v{S}, v{S+1}"); e(f"v_add_f32 v{u}, v{S+2}, v{S+3}")
        e(f"v_add_f32 v{t}, v{t}, v{S+4}"); e(f"v_add_f32 v{u}, v{u}, v{S+5}")
        e(f"v_add_f32 v{t}, v{t}, v{S+6}"); e(f"v_add_f32 v{u}, v{u}, v{S+7}")
        for p in range(4): e(f"v_cvt_pk_bf16_f32 v{PR+p}, v{S+2*p}, v{S+2*p+1}")
        e(f"v_add_f32 v{t}, v{t}, v{u}")
        if first: e(f"v_mov_b32 v{V_LS}, v{t}")
        else: e(f"v_fma_f32 v{V_LS}, v{V_LS}, v{al}, v{t}")
    def common_scale(self, tmp, hook, rescale_only):
        e = self.e
        e("s_mov_b64 exec, 0xff")
        e(f"ds_write_b32 v{V_MLW}, v{T[0]} offset:{CM + 256}")
        e("s_mov_b64 exec, -1")
        e("s_waitcnt lgkmcnt(0)")
        e("s_barrier")
        e(f"ds_read_b128 v[{tmp}:{tmp+3}], v{V_U0} offset:{CM + 256}")
        e(f"ds_read_b128 v[{tmp+4}:{tmp+7}], v{V_U0} offset:{CM + 256 + 16}")
        e(f"ds_read_b128 v[{tmp+8}:{tmp+11}], v{V_MLR} offset:{CM + 256}")
        e(f"ds_read_b128 v[{tmp+12}:{tmp+15}], v{V_MLR} offset:{CM + 256 + 16}")
        if hook: hook()
        e("s_waitcnt lgkmcnt(2)")
        t = T[0]
        e(f"v_max3_f32 v{t}, v{tmp}, v{tmp+1}, v{tmp+2}"); e(f"v_max3_f32 v{t}, v{t}, v{tmp+3}, v{tmp+4}")
        e(f"v_max3_f32 v{t}, v{t}, v{tmp+5}, v{tmp+6}"); e(f"v_max_f32 v{t}, v{t}, v{tmp+7}")
        if rescale_only:
            al = T[4]
            e(f"v_sub_f32 v{al}, v{V_M}, v{t}"); e(f"v_mul_f32 v{al}, s{S_C}, v{al}"); e(f"v_exp_f32 v{al}, v{al}"); e("s_nop 0")
            e(f"v_mul_f32 v{V_LS}, v{V_LS}, v{al}")
            self.rescale(al)
        else:
            self.softmax_rest(False)
            self.xlane("v_add_f32", V_LS, T[1], (16, 32))
        e("s_mov_b64 exec, 0xff")
        e(f"ds_write_b32 v{V_MLW}, v{V_LS} offset:{CL + 256}")
        e("s_mov_b64 exec, -1")
        e("s_waitcnt lgkmcnt(1)")
        m = tmp + 8
        e(f"v_max3_f32 v{tmp+18}, v{m}, v{m+1}, v{m+2}"); e(f"v_max3_f32 v{tmp+18}, v{tmp+18}, v{m+3}, v{m+4}")
        e(f"v_max3_f32 v{tmp+18}, v{tmp+18}, v{m+5}, v{m+6}"); e(f"v_max_f32 v{tmp+18}, v{tmp+18}, v{m+7}")
        e(f"v_mov_b32 v{tmp+19}, s{S_NONCE}")
        e(f"v_and_b32 v{tmp+16}, 1, v0"); e(f"v_cmp_eq_u32 vcc, 1, v{tmp+16}")
    def write_o(self, br, acc=OACC):
        e = self.e
        e("s_mov_b32 exec_lo, 0x00ff00ff"); e("s_mov_b32 exec_hi, 0x00ff00ff")
        for dd in range(8):
            e(f"ds_write_b128 v{V_COW}, v[{acc+dd*4}:{acc+dd*4+3}] offset:{br*CO_BR + dd*16}")
        e("s_mov_b64 exec, -1")
    def read_q(self, br):
        for jj in range(4):
            self.e(f"ds_read_b128 v[{QR+jj*4}:{QR+jj*4+3}], v{V_QR} offset:{br*2176 + jj*64}")
    def o_publish(self, R, R2):
        e = self.e
        l = R + 20
        e(f"ds_read_b128 v[{l}:{l+3}], v{V_MLR} offset:{CL + 256}"); e(f"ds_read_b128 v[{l+4}:{l+7}], v{V_MLR} offset:{CL + 256 + 16}")
        for w in range(8):
            e(f"ds_read_b128 v[{R2+4*w}:{R2+4*w+3}], v{V_COR} offset:{CO_BR + w*CO_W}")
        P = R + 16
        pk = lambda d, x, y: e(f"v_pk_add_f32 v[{d}:{d+1}], v[{x}:{x+1}], v[{y}:{y+1}]")
        pk4 = lambda d, y: (pk(d, d, y), pk(d + 2, d + 2, y + 2))
        e("s_waitcnt lgkmcnt(8)")
        pk(l, l, l + 2); pk(l + 4, l + 4, l + 6); pk(l, l, l + 4)
        e("s_waitcnt lgkmcnt(6)")
        pk4(R2, R2 + 4)
        e(f"v_add_f32 v{l}, v{l}, v{l+1}")
        e("s_waitcnt lgkmcnt(4)")
        pk4(R2 + 8, R2 + 12)
        e(f"v_cndmask_b32 v{R+18}, v{R+18}, v{l}, vcc")
        e("s_waitcnt lgkmcnt(2)")
        pk4(R2 + 16, R2 + 20); pk4(R2, R2 + 8)
        e("s_waitcnt lgkmcnt(0)")
        pk4(R2 + 24, R2 + 28); pk4(R2 + 16, R2 + 24); pk4(R2, R2 + 16)
        e(f"v_cvt_pk_bf16_f32 v{P}, v{R2}, v{R2+1}"); e(f"v_cvt_pk_bf16_f32 v{P+1}, v{R2+2}, v{R2+3}")
        e("s_mov_b32 exec_hi, 0")
        self.vm(f"buffer_store_dwordx4 v[{P}:{P+3}], v{V_PO}, s[{WS}:{WS+3}], s{S_POB} offen sc1", "st")
        e("s_mov_b32 exec_hi, -1")
    def combine_a(self, R, hoff, P, na):
        e = self.e
        m, l, o = SR, WSET[0], R
        M, mc, A = R + 16, T[2], R + 20
        for i in range(na // 4):
            e(f"ds_read_b128 v[{m+4*i}:{m+4*i+3}], v{V_MLR} offset:{CM + hoff*32 + 16*i}")
        for i in range(na // 4):
            e(f"ds_read_b128 v[{l+4*i}:{l+4*i+3}], v{V_MLR} offset:{CL + hoff*32 + 16*i}")
        for w in range(4): e(f"ds_read_b128 v[{o+4*w}:{o+4*w+3}], v{V_COR} offset:{w*CO_W + hoff*CO_H}")
        e(f"v_mov_b32 v{P+3}, s{S_NONCE}")
        e(f"v_and_b32 v{M+1}, 1, v0"); e(f"v_cmp_eq_u32 vcc, 1, v{M+1}")
        e(f"s_waitcnt lgkmcnt({4 + na//4})")
        e(f"v_max3_f32 v{M}, v{m}, v{m+1}, v{m+2}"); e(f"v_max_f32 v{M}, v{M}, v{m+3}")
        if na == 8:
            e(f"v_max3_f32 v{M}, v{M}, v{m+4}, v{m+5}"); e(f"v_max3_f32 v{M}, v{M}, v{m+6}, v{m+7}")
        e(f"v_mul_f32 v{mc}, s{S_C}, v{M}")
        for w in range(na): e(f"v_fma_f32 v{m+w}, v{m+w}, s{S_C}, -v{mc}")
        for w in range(na): e(f"v_exp_f32 v{m+w}, v{m+w}")
        e("s_waitcnt lgkmcnt(0)")
        for w in range(na):
            if w == 4:
                for w2 in range(4): e(f"ds_read_b128 v[{o+4*w2}:{o+4*w2+3}], v{V_COR} offset:{(4+w2)*CO_W + hoff*CO_H}")
                e("s_waitcnt lgkmcnt(0)")
            op = "v_mul_f32" if w == 0 else "v_fmac_f32"
            for i in range(4): e(f"{op} v{A+i}, v{m+w}, v{o+4*(w%4)+i}")
            e(f"{op} v{M+2}, v{m+w}, v{l+w}")
        e(f"v_cvt_pk_bf16_f32 v{P}, v{A}, v{A+1}"); e(f"v_cvt_pk_bf16_f32 v{P+1}, v{A+2}, v{A+3}")
        e(f"v_cndmask_b32 v{P+2}, v{M}, v{M+2}, vcc")
    def precombine_b(self, R, hoff):
        e = self.e
        m, l, o = SR, WSET[0], R
        M, mc, A = R + 16, T[2], R + 20
        e(f"ds_read_b128 v[{m}:{m+3}], v{V_MLR} offset:{CM + 256 + hoff*32}")
        e(f"ds_read_b128 v[{l}:{l+3}], v{V_MLR} offset:{CL + 256 + hoff*32}")
        for w in range(4): e(f"ds_read_b128 v[{o+4*w}:{o+4*w+3}], v{V_COR} offset:{CO_BR + w*CO_W + hoff*CO_H}")
        e("s_waitcnt lgkmcnt(5)")
        e(f"v_max3_f32 v{M}, v{m}, v{m+1}, v{m+2}"); e(f"v_max_f32 v{M}, v{M}, v{m+3}")
        e(f"v_mul_f32 v{mc}, s{S_C}, v{M}")
        for w in range(4): e(f"v_fma_f32 v{m+w}, v{m+w}, s{S_C}, -v{mc}")
        for w in range(4): e(f"v_exp_f32 v{m+w}, v{m+w}")
        e("s_waitcnt lgkmcnt(0)")
        for w in range(4):
            op = "v_mul_f32" if w == 0 else "v_fmac_f32"
            for i in range(4): e(f"{op} v{A+i}, v{m+w}, v{o+4*w+i}")
            e(f"{op} v{M+2}, v{m+w}, v{l+w}")
        e("s_mov_b32 exec_hi, 0")
        e(f"ds_write_b128 v{V_COR}, v[{A}:{A+3}] offset:{CO_BR + hoff*CO_H}")
        e("s_mov_b64 exec, 1")
        e(f"ds_write_b32 v{V_MLR}, v{M} offset:{CM + 256 + hoff*32}")
        e(f"ds_write_b32 v{V_MLR}, v{M+2} offset:{CL + 256 + hoff*32}")
        e("s_mov_b64 exec, -1")
    def o_publish5(self, R, R2):
        e = self.e
        m, l = R, R + 8
        e(f"ds_read_b32 v{m}, v{V_MLR} offset:{CM + 256}"); e(f"ds_read_b128 v[{m+4}:{m+7}], v{V_MLR} offset:{CM + 256 + 16}")
        for k, w in enumerate((0, 4, 5, 6, 7)):
            e(f"ds_read_b128 v[{R2+4*k}:{R2+4*k+3}], v{V_COR} offset:{CO_BR + w*CO_W}")
        e(f"ds_read_b32 v{l}, v{V_MLR} offset:{CL + 256}"); e(f"ds_read_b128 v[{l+4}:{l+7}], v{V_MLR} offset:{CL + 256 + 16}")
        P = R + 16; M = R + 18; mc = T[2]; A = R + 20; Ls = R + 1
        ms = [m, m + 4, m + 5, m + 6, m + 7]; ls = [l, l + 4, l + 5, l + 6, l + 7]
        e("s_waitcnt lgkmcnt(7)")
        e(f"v_max3_f32 v{M}, v{m}, v{m+4}, v{m+5}"); e(f"v_max3_f32 v{M}, v{M}, v{m+6}, v{m+7}")
        e(f"v_mul_f32 v{mc}, s{S_C}, v{M}")
        for r in ms: e(f"v_fma_f32 v{r}, v{r}, s{S_C}, -v{mc}")
        for r in ms: e(f"v_exp_f32 v{r}, v{r}")
        e("s_waitcnt lgkmcnt(2)")
        for k, r in enumerate(ms):
            b = r & ~1; sel = f"op_sel:[0,{r & 1}" ; hi = f"op_sel_hi:[1,{r & 1}"
            for h in range(2):
                if k == 0: e(f"v_pk_mul_f32 v[{A+2*h}:{A+2*h+1}], v[{R2+2*h}:{R2+2*h+1}], v[{b}:{b+1}] {sel}] {hi}]")
                else: e(f"v_pk_fma_f32 v[{A+2*h}:{A+2*h+1}], v[{R2+4*k+2*h}:{R2+4*k+2*h+1}], v[{b}:{b+1}], v[{A+2*h}:{A+2*h+1}] {sel},0] {hi},1]")
        e("s_waitcnt lgkmcnt(0)")
        for k in range(5): e(f"{'v_mul_f32' if k == 0 else 'v_fmac_f32'} v{Ls}, v{ms[k]}, v{ls[k]}")
        e(f"v_cvt_pk_bf16_f32 v{P}, v{A}, v{A+1}"); e(f"v_cvt_pk_bf16_f32 v{P+1}, v{A+2}, v{A+3}")
        e(f"v_cndmask_b32 v{M}, v{M}, v{Ls}, vcc")
        e("s_mov_b32 exec_hi, 0")
        self.vm(f"buffer_store_dwordx4 v[{P}:{P+3}], v{V_PO}, s[{WS}:{WS+3}], s{S_POB} offen sc1", "st")
        e("s_mov_b32 exec_hi, -1")
    def write_ml(self):
        e = self.e
        self.xlane("v_add_f32", V_LS, T[1], (16, 32))
        e("s_mov_b64 exec, 0xff")
        e(f"ds_write_b32 v{V_MLW}, v{V_M} offset:{CM + 256}")
        e(f"ds_write_b32 v{V_MLW}, v{V_LS} offset:{CL + 256}")
        e("s_mov_b64 exec, -1")
    def a_tile(self, t):
        e = self.e
        uk, uv = "K" + t, "V" + t
        half = t == "a"
        self.read_q(0)
        self.wait(uk)
        e("s_waitcnt lgkmcnt(0)")
        acc = self.slot[uk]
        self.qk(acc, half)
        self.read_q(1)
        e("s_nop 3")
        self.tilemax(True); self.softmax_rest(True, T[5], T[6])
        self.xlane("v_add_f32", T[6], T[1], (16, 32))
        e("s_mov_b64 exec, 0xff")
        e(f"ds_write_b32 v{V_MLW}, v{T[5]} offset:{CM}")
        e(f"ds_write_b32 v{V_MLW}, v{T[6]} offset:{CL}")
        e("s_mov_b64 exec, -1")
        if half:
            for i in range(16): e(f"v_mov_b32 v{self.slot[uv]+16+i}, 0")
        self.wait(uv)
        self.perm_mfma8(self.slot[uv], PR, True, True, acc); self.release(uv)
        if not self.issue_next(): e("s_nop 3")
        self.write_o(0, acc); self.release(uk)
        self.lds_inc(F_AC)
        e("s_waitcnt lgkmcnt(0)")
        self.issue_next()
    def b_tile(self, t, first):
        e = self.e
        uk, uv = f"K{t}", f"V{t}"
        half = t == "H"
        self.wait(uk)
        self.qk(self.slot[uk], half, S_BIAS.get(t)); self.release(uk)
        if not self.issue_next(): e("s_nop 7")
        self.tilemax(first); self.softmax_rest(first)
        if half:
            for i in range(16): e(f"v_mov_b32 v{self.slot[uv]+16+i}, 0")
        self.wait(uv)
        self.perm_mfma8(self.slot[uv], PR, first, True); self.release(uv)
        self.issue_next()
    def check(self, tags):
        e = self.e; acc = T[7]
        e(f"v_xor_b32 v{acc}, s{S_NONCE}, v{tags[0]}")
        for t in tags[1:]:
            e(f"v_xor_b32 v{T[6]}, s{S_NONCE}, v{t}"); e(f"v_or_b32 v{acc}, v{acc}, v{T[6]}")
        e(f"v_cmp_ne_u32 vcc, 0, v{acc}")
    def poll(self, loads, tags, sleep=1):
        e = self.e
        lp, ok = self.newlab("poll"), self.newlab("ok")
        e(f"s_mov_b32 s{S_CNT}, 0")
        self.label(lp)
        for s in loads: e(s)
        e("s_waitcnt vmcnt(0)")
        self.check(tags)
        e(f"s_add_u32 s{S_CNT}, s{S_CNT}, 1")
        e(f"s_cbranch_vccz {ok}")
        e(f"s_cmp_gt_u32 s{S_CNT}, {SPIN_MAX}")
        e(f"s_cbranch_scc1 {ok}")
        if sleep: e(f"s_sleep {sleep}")
        e(f"s_branch {lp}")
        self.label(ok)
    def poll_missing(self, loads, tags, sleep, first=True, firstwait=0, watch=False, lpl=8, thr=None):
        e = self.e
        n = len(loads)
        lp, done, chk = self.newlab("pm"), self.newlab("pmdone"), self.newlab("pmchk")
        MK = [4, 6, 8, 10]
        e(f"s_mov_b32 s{S_CNT}, 0")
        watch = watch and self.opt("watch", 1)
        S_PREV, S_N = 12, 13
        if watch: e(f"s_mov_b32 s{S_PREV}, 0")
        if watch and getattr(self, "late_full", None) and lpl == 8:
            e(f"s_cmp_ge_u32 s{S_LATE}, {self.late_full}"); e(f"s_cselect_b32 s{S_PREV}, 0x1000, 0")
        if first:
            for s_ in loads: e(s_)
        if firstwait:
            e(f"s_waitcnt vmcnt({firstwait})"); e(f"s_branch {chk}")
        self.label(lp)
        e("s_waitcnt vmcnt(0)")
        self.label(chk)
        for i in range(n):
            tg = tags[i]
            if tg[0] == "emb":
                r = tg[1]
                e(f"v_perm_b32 v{T[6]}, v{r+1}, v{r}, s{S_SELLO}"); e(f"v_perm_b32 v{T[7]}, v{r+3}, v{r+2}, s{S_SELLO}")
                e(f"v_perm_b32 v{T[6]}, v{T[7]}, v{T[6]}, s{S_SELHI}")
                e(f"v_cmp_ne_u32 s[{MK[i]}:{MK[i]+1}], s{S_NONCE}, v{T[6]}")
            elif len(tg) == 1:
                e(f"v_cmp_ne_u32 s[{MK[i]}:{MK[i]+1}], s{S_NONCE}, v{tg[0]}")
            else:
                e(f"v_xor_b32 v{T[6]}, s{S_NONCE}, v{tg[0]}"); e(f"v_xor_b32 v{T[7]}, s{S_NONCE}, v{tg[1]}"); e(f"v_or_b32 v{T[6]}, v{T[6]}, v{T[7]}")
                e(f"v_cmp_ne_u32 s[{MK[i]}:{MK[i]+1}], 0, v{T[6]}")
        e(f"s_or_b64 vcc, s[{MK[0]}:{MK[0]+1}], s[{MK[1]}:{MK[1]+1}]")
        for i in range(2, n): e(f"s_or_b64 vcc, vcc, s[{MK[i]}:{MK[i]+1}]")
        e(f"s_cbranch_scc0 {done}")
        e(f"s_add_u32 s{S_CNT}, s{S_CNT}, 1")
        e(f"s_cmp_gt_u32 s{S_CNT}, {SPIN_MAX}"); e(f"s_cbranch_scc1 {done}")
        if watch:
            full = self.newlab("pmfull")
            e(f"s_bcnt1_i32_b64 s{S_N}, s[{MK[0]}:{MK[0]+1}]")
            for i in range(1, n):
                e(f"s_bcnt1_i32_b64 s{S_T3}, s[{MK[i]}:{MK[i]+1}]"); e(f"s_add_u32 s{S_N}, s{S_N}, s{S_T3}")
            e(f"s_cmp_le_u32 s{S_N}, {lpl * (thr if thr is not None else self.opt('wthr', 8))}"); e(f"s_cbranch_scc1 {full}")
            e(f"s_cmp_lt_u32 s{S_N}, s{S_PREV}"); e(f"s_cbranch_scc1 {full}")
            e(f"s_mov_b32 s{S_PREV}, s{S_N}")
            e(f"s_sleep {self.opt('wsleep', 2)}")
            for i in (range(n) if not self.opt("wrot", 0) else list(range(n))[::-1]):
                nx = self.newlab("pmw")
                e(f"s_ff1_i32_b64 s{S_T3}, s[{MK[i]}:{MK[i]+1}]")
                e(f"s_cmp_lt_i32 s{S_T3}, 0"); e(f"s_cbranch_scc1 {nx}")
                e(f"s_and_b32 s{S_T3}, s{S_T3}, {64 - lpl}"); e(f"s_lshl_b64 exec, {hex((1 << lpl) - 1)}, s{S_T3}")
                e(loads[i])
                e("s_mov_b64 exec, -1")
                e(f"s_branch {lp}")
                self.label(nx)
            self.label(full)
            e(f"s_mov_b32 s{S_PREV}, 0")
        if sleep: e(f"s_sleep {sleep}")
        for i in range(n):
            sk = self.newlab("pms")
            e(f"s_mov_b64 exec, s[{MK[i]}:{MK[i]+1}]")
            e(f"s_cbranch_execz {sk}")
            e(loads[i])
            self.label(sk)
        e("s_mov_b64 exec, -1")
        e(f"s_branch {lp}")
        self.label(done)
    def lds_spin(self, off, target):
        if self.opt("noq", 0): return
        e = self.e
        lp, ok = self.newlab("ls"), self.newlab("lsok")
        e(f"s_mov_b32 s{S_CNT}, 0")
        self.label(lp)
        e(f"ds_read_b32 v{T[7]}, v{V_FLG} offset:{off - FLG}")
        e("s_waitcnt lgkmcnt(0)")
        e(f"v_readfirstlane_b32 s{S_T3}, v{T[7]}")
        e(f"s_add_u32 s{S_CNT}, s{S_CNT}, 1")
        e(f"s_cmp_eq_u32 s{S_T3}, {target}")
        e(f"s_cbranch_scc1 {ok}")
        e(f"s_cmp_gt_u32 s{S_CNT}, {SPIN_MAX*50}")
        e(f"s_cbranch_scc1 {ok}")
        e("s_sleep 1")
        e(f"s_branch {lp}")
        self.label(ok)
    def get_nonce(self):
        e = self.e
        lp, ok = self.newlab("nn"), self.newlab("nnok")
        e(f"s_mov_b32 s{S_CNT}, 0")
        self.label(lp)
        e(f"v_readfirstlane_b32 s{S_NONCE}, v{V_U1}")
        e(f"s_add_u32 s{S_CNT}, s{S_CNT}, 1")
        e(f"s_cmp_lg_u32 s{S_NONCE}, 0")
        e(f"s_cbranch_scc1 {ok}")
        e(f"s_cmp_gt_u32 s{S_CNT}, {SPIN_MAX}")
        e(f"s_cbranch_scc1 {ok}")
        e(f"buffer_load_dword v{V_U1}, off, s[{DBG}:{DBG+3}], 0 sc1")
        e("s_waitcnt vmcnt(0)")
        e(f"s_branch {lp}")
        self.label(ok)
    def qpoll_loads(self, OACC=OACC):
        l = [f"buffer_load_dwordx4 v[{OACC}:{OACC+3}], v{V_L0}, s[{WS}:{WS+3}], s{S_QB} offen sc1"]
        if self.isO: l.append(f"buffer_load_dwordx4 v[{OACC+4}:{OACC+7}], v{V_L0}, s[{WS}:{WS+3}], s{S_QA} offen sc1")
        return l
    def qtags(self, OACC=OACC): return [OACC + 1, OACC + 3] + ([OACC + 5, OACC + 7] if self.isO else [])
    def qcommit(self, OACC=OACC):
        e = self.e
        e(f"v_mov_b32 v{OACC+1}, v{OACC+2}")
        if self.isO: e(f"v_mov_b32 v{OACC+5}, v{OACC+6}")
        e(f"v_mov_b32 v{T[0]}, s{S_NONCE}"); e(f"v_mov_b32 v{T[1]}, 1")
        e(f"ds_write_b64 v{V_QW}, v[{OACC}:{OACC+1}] offset:2176")
        if self.isO: e(f"ds_write_b64 v{V_QW}, v[{OACC+4}:{OACC+5}]")
        e("s_mov_b64 exec, 1")
        e(f"ds_write_b32 v{V_FLG}, v{T[0]} offset:{F_NON - FLG}")
        e(f"ds_add_u32 v{V_FLG}, v{T[1]} offset:{F_QC - FLG}")
        e("s_mov_b64 exec, -1")
        e(f"s_mov_b32 s{S_OK}, 1")
        self.stamp(4)
    def young_prefetch(self):
        e = self.e
        nonce_ready = not self.isO
        e(f"s_lshl_b32 s{S_QA}, s{S_GRP}, 12"); e(f"s_and_b32 s{S_T1}, s3, 3"); e(f"s_lshl_b32 s{S_T2}, s{S_T1}, 10"); e(f"s_add_u32 s{S_QA}, s{S_QA}, s{S_T2}")
        e(f"s_add_u32 s{S_QB}, s{S_QA}, 32768")
        e(f"s_mul_i32 s{S_T1}, s{S_T1}, 544"); e(f"v_add_u32 v{V_QW}, s{S_T1}, v{V_QW}")
        e(f"s_mov_b32 s{S_OK}, 0")
        lagk = self.opt("qlag", 0)
        first = self.opt("qfirsto" if self.isO else "qfirstq", 2 if self.isO else 1)
        k = 0; pend = []
        if not nonce_ready:
            pass
        qm = self.opt("qmask", 1)
        nl = 2 if self.isO else 1
        def chk(k, mark):
            nonlocal nonce_ready
            B = OACC if qm else OACC + 8 * (k % 4)
            skip = self.newlab("qskip")
            if nonce_ready:
                e(f"s_cmp_eq_u32 s{S_OK}, 1"); e(f"s_cbranch_scc1 {skip}")
            e(f"s_waitcnt vmcnt({len(self.q) - mark})")
            if not nonce_ready:
                self.get_nonce(); nonce_ready = True
            if qm:
                for i in range(nl):
                    e(f"v_xor_b32 v{T[6]}, s{S_NONCE}, v{B+4*i+1}"); e(f"v_xor_b32 v{T[7]}, s{S_NONCE}, v{B+4*i+3}"); e(f"v_or_b32 v{T[6]}, v{T[6]}, v{T[7]}")
                    e(f"v_cmp_ne_u32 s[{72+2*i}:{73+2*i}], 0, v{T[6]}")
                e(f"s_or_b64 vcc, s[72:73], s[{72+2*(nl-1)}:{73+2*(nl-1)}]")
                e(f"s_cbranch_scc1 {skip}")
            else:
                self.check(self.qtags(B))
                e(f"s_cbranch_vccnz {skip}")
            self.qcommit(B)
            self.label(skip)
        while True:
            if k >= first:
                sk = self.newlab("qps")
                if not nonce_ready and k == first:
                    e(f"buffer_load_dword v{V_U1}, off, s[{DBG}:{DBG+3}], 0 sc1")
                if k > first: e(f"s_cmp_eq_u32 s{S_OK}, 1"); e(f"s_cbranch_scc1 {sk}")
                for i, s_ in enumerate(self.qpoll_loads(OACC if qm else OACC + 8 * (k % 4))):
                    if qm and k > first:
                        s2_ = self.newlab("qpm")
                        e(f"s_mov_b64 exec, s[{72+2*i}:{73+2*i}]"); e(f"s_cbranch_execz {s2_}"); e(s_); self.label(s2_)
                    else: e(s_)
                if qm and k > first: e("s_mov_b64 exec, -1")
                self.label(sk)
                pend.append((k, len(self.q)))
            ok = self.issue_next()
            if len(pend) > lagk: chk(*pend.pop(0))
            k += 1
            if not ok or not self.free: break
        for kk, mark in pend: chk(kk, mark)
        done = self.newlab("qd")
        e(f"s_cmp_eq_u32 s{S_OK}, 1"); e(f"s_cbranch_scc1 {done}")
        self.poll(self.qpoll_loads(), self.qtags(), sleep=1)
        self.qcommit()
        self.label(done)
    def wait_q(self):
        e = self.e
        self.lds_spin(F_QC, 4)
        if self.opt("noq", 0): return
        e(f"ds_read_b32 v{T[7]}, v{V_FLG} offset:{F_NON - FLG}")
        e("s_waitcnt lgkmcnt(0)")
        e(f"v_readfirstlane_b32 s{S_NONCE}, v{T[7]}")
    def gate_loads(self):
        e = self.e
        e(f"s_and_b32 s{S_T1}, s3, 1"); e(f"s_lshl_b32 s{S_T1}, s{S_T1}, 11")
        e(f"v_lshlrev_b32 v{V_X}, 5, v0")
        self.vm(f"buffer_load_dwordx4 v[{QR}:{QR+3}], v{V_X}, s[{XS}:{XS+3}], s{S_T1} offen", "g")
        self.vm(f"buffer_load_dwordx4 v[{QR+4}:{QR+7}], v{V_X}, s[{XS}:{XS+3}], s{S_T1} offen offset:16", "g")
        self.vm(f"buffer_load_dwordx4 v[{QR+8}:{QR+11}], v{V_X}, s[{GT}:{GT+3}], 0 offen", "g")
        self.vm(f"buffer_load_dwordx4 v[{QR+12}:{QR+15}], v{V_X}, s[{GT}:{GT+3}], 0 offen offset:16", "g")
    def gate(self):
        e = self.e
        self.wait("g")
        acc, a, b, c, d = T[0], T[1], T[2], T[3], T[4]
        e(f"v_mov_b32 v{acc}, 0")
        e(f"s_mov_b32 s{S_T0}, 0xffff0000")
        for i in range(8):
            x, g = QR + i, QR + 8 + i
            e(f"v_lshlrev_b32 v{a}, 16, v{x}"); e(f"v_lshlrev_b32 v{b}, 16, v{g}")
            e(f"v_and_b32 v{c}, s{S_T0}, v{x}"); e(f"v_and_b32 v{d}, s{S_T0}, v{g}")
            e(f"v_mul_f32 v{a}, v{a}, v{b}"); e(f"v_mul_f32 v{c}, v{c}, v{d}")
            e(f"v_cvt_pk_bf16_f32 v{a}, v{a}, v{c}")
            e(f"v_lshlrev_b32 v{b}, 16, v{a}"); e(f"v_and_b32 v{c}, s{S_T0}, v{a}")
            e(f"v_add_f32 v{acc}, v{acc}, v{b}"); e(f"v_add_f32 v{acc}, v{acc}, v{c}")
        self.dpp("v_add_f32", acc, (1, 2, 4, 8))
        self.xlane("v_add_f32", acc, a, (16, 32))
        e(f"v_cvt_pk_bf16_f32 v{acc}, v{acc}, v{acc}"); e(f"v_lshlrev_b32 v{acc}, 16, v{acc}")
        e(f"v_mul_f32 v{acc}, {hex(f2u(-math.log2(math.e)))}, v{acc}")
        e(f"v_exp_f32 v{acc}, v{acc}"); e("s_nop 0")
        e(f"v_add_f32 v{acc}, 1.0, v{acc}")
        e(f"v_rcp_f32 v{acc}, v{acc}"); e("s_nop 0")
        e(f"v_cvt_pk_bf16_f32 v{acc}, v{acc}, v{acc}"); e(f"v_lshlrev_b32 v{V_GA}, 16, v{acc}")
        e(f"v_sub_f32 v{acc}, 1.0, v{V_GA}")
        e(f"v_cvt_pk_bf16_f32 v{acc}, v{acc}, v{acc}"); e(f"v_lshlrev_b32 v{V_GB}, 16, v{acc}")

    def build(self):
        e = self.e; L = self.L
        L.append(f"; @launch grid=(256,1,1) block=(512,1,1) lds={LDS_SIZE}")
        L.append('.amdgcn_target "amdgcn-amd-amdhsa--gfx950"')
        L += [".text", f".globl {KNAME}", ".p2align 8", f".type {KNAME},@function", f"{KNAME}:"]
        e("s_cmp_ge_u32 s2, 256"); e("s_cbranch_scc1 L_end")
        e("s_load_dwordx16 s[48:63], s[0:1], 0")
        e("s_load_dwordx8 s[64:71], s[0:1], 64")
        e("s_load_dwordx4 s[72:75], s[0:1], 96")
        e("s_memrealtime s[96:97]")
        e("v_lshrrev_b32 v1, 6, v0")
        e("v_and_b32 v0, 63, v0")
        e("v_readfirstlane_b32 s3, v1")
        e(f"v_mov_b32 v{V_FLG}, {FLG}")
        e("v_mov_b32 v28, 0"); e("v_mov_b32 v29, 0"); e("v_mov_b32 v30, 0"); e("v_mov_b32 v31, 0")
        e("s_cmp_lg_u32 s3, 0"); e("s_cbranch_scc1 L_noinit")
        e(f"ds_write_b128 v{V_FLG}, v[28:31]"); e(f"ds_write_b128 v{V_FLG}, v[28:31] offset:16")
        self.label("L_noinit")
        e("v_and_b32 v24, 15, v0"); e("v_lshrrev_b32 v25, 4, v0")
        e("v_and_b32 v26, 3, v24"); e("v_lshlrev_b32 v26, 10, v26")
        e("v_lshrrev_b32 v27, 2, v24"); e("v_lshl_add_u32 v26, v27, 8, v26")
        e(f"v_lshl_add_u32 v{V_K0}, v25, 4, v26")
        e(f"v_add_u32 v{V_K1}, 4096, v{V_K0}")
        e(f"v_lshlrev_b32 v{V_L0}, 4, v0"); e(f"v_add_u32 v{V_L1}, 4096, v{V_L0}")
        e(f"s_lshr_b32 s{S_GRP}, s2, 5"); e(f"s_and_b32 s{S_IDX}, s2, 15"); e(f"s_and_b32 s{S_SPLIT}, s2, 31")
        e(f"s_lshl_b32 s{S_J}, s{S_GRP}, 4"); e(f"s_add_u32 s{S_J}, s{S_J}, s{S_IDX}")
        e(f"s_lshl_b32 s{S_T0}, s{S_GRP}, 23")
        e(f"s_lshl_b32 s{S_BB}, s{S_SPLIT}, 3"); e(f"s_add_u32 s{S_BB}, s{S_BB}, s3"); e(f"s_lshl_b32 s{S_BB}, s{S_BB}, 13"); e(f"s_add_u32 s{S_BB}, s{S_BB}, s{S_T0}")
        e("s_bitcmp1_b32 s2, 4"); e("s_cbranch_scc1 L_roleO")
        self.q = []; self.isO = False; self.WOA = GT
        self.roleQ()
        self.label("L_roleO")
        self.q = []; self.isO = True; self.WOA = W1
        self.roleO()
        self.label("L_end"); e("s_endpgm")
        L += ['.section .rodata,"a"', ".p2align 6", f".amdhsa_kernel {KNAME}"]
        for s in ["next_free_vgpr 256", "next_free_sgpr 102", "accum_offset 256", "group_segment_fixed_size 0", "kernarg_size 112",
                  "user_sgpr_count 2", "user_sgpr_kernarg_segment_ptr 1", "system_sgpr_workgroup_id_x 1"]:
            L.append("  .amdhsa_" + s)
        L.append(".end_amdhsa_kernel")
        return "\n".join(L) + "\n"

    def common_setup(self):
        e = self.e
        e(f"s_mov_b32 s{S_SELLO}, 0x05040100"); e(f"s_mov_b32 s{S_SELHI}, 0x07060302")
        e(f"s_mov_b32 s{S_C}, {hex(f2u(math.log2(math.e) / math.sqrt(128.0)))}")
        e(f"s_mul_i32 s{S_T0}, s3, {CO_W}"); e(f"s_add_u32 s{S_T0}, s{S_T0}, {CO}")
        e(f"v_mul_u32_u24 v{V_COW}, {CO_H}, v24"); e(f"v_lshl_add_u32 v{V_COW}, v25, 7, v{V_COW}"); e(f"v_add_u32 v{V_COW}, s{S_T0}, v{V_COW}")
        e(f"s_lshl_b32 s{S_T0}, s3, 2"); e(f"v_lshlrev_b32 v{V_MLW}, 5, v24"); e(f"v_add_u32 v{V_MLW}, s{S_T0}, v{V_MLW}")
        e("v_and_b32 v26, 7, v24"); e(f"v_lshlrev_b32 v{V_U0}, 5, v26")
        e(f"v_mul_u32_u24 v{V_QR}, 272, v26"); e(f"v_lshl_add_u32 v{V_QR}, v25, 4, v{V_QR}"); e(f"v_add_u32 v{V_QR}, {QOP}, v{V_QR}")
        e(f"s_mul_i32 s{S_T0}, s3, {CO_H}"); e(f"s_add_u32 s{S_T0}, s{S_T0}, {CO}"); e("v_and_b32 v26, 31, v0"); e(f"v_lshlrev_b32 v{V_COR}, 4, v26"); e(f"v_add_u32 v{V_COR}, s{S_T0}, v{V_COR}")
        e(f"s_lshl_b32 s{S_T0}, s3, 5"); e(f"v_mov_b32 v{V_MLR}, s{S_T0}")
        e("v_lshrrev_b32 v26, 5, v0"); e(f"v_mul_u32_u24 v{V_QW}, 272, v26"); e("v_and_b32 v26, 31, v0"); e(f"v_lshl_add_u32 v{V_QW}, v26, 3, v{V_QW}"); e(f"v_add_u32 v{V_QW}, {QOP}, v{V_QW}")
        e(f"s_lshl_b32 s{S_POB}, s{S_GRP}, 3"); e(f"s_add_u32 s{S_POB}, s{S_POB}, s3"); e(f"s_lshl_b32 s{S_POB}, s{S_POB}, 14"); e(f"s_add_u32 s{S_POB}, s{S_POB}, {hex(PO)}")
        e(f"s_lshl_b32 s{S_T1}, s{S_IDX}, 7"); e(f"s_add_u32 s{S_POA}, s{S_POB}, s{S_T1}"); e(f"s_add_u32 s{S_POA2}, s{S_POA}, {4*16384}")
        e(f"s_lshl_b32 s{S_T1}, s{S_SPLIT}, 7"); e(f"s_add_u32 s{S_POB}, s{S_POB}, s{S_T1}"); e(f"s_add_u32 s{S_POB}, s{S_POB}, {hex(PO_BR)}")

    def late_setup(self):
        e = self.e
        e(f"v_lshrrev_b32 v{T[0]}, 3, v0"); e(f"v_lshlrev_b32 v{V_PO}, 12, v{T[0]}"); e(f"v_and_b32 v{T[0]}, 7, v0"); e(f"v_lshl_add_u32 v{V_PO}, v{T[0]}, 4, v{V_PO}")
        if not self.old:
            e(f"v_lshrrev_b32 v{T[0]}, 4, v0"); e(f"v_lshlrev_b32 v{V_WA}, 12, v{T[0]}"); e(f"v_and_b32 v{T[0]}, 15, v0"); e(f"v_lshl_add_u32 v{V_WA}, v{T[0]}, 4, v{V_WA}")
            e(f"s_lshl_b32 s{S_W}, s{S_J}, 16"); e(f"s_and_b32 s{S_T1}, s3, 3"); e(f"s_lshl_b32 s{S_T1}, s{S_T1}, 8"); e(f"s_add_u32 s{S_W}, s{S_W}, s{S_T1}")
            if self.isO: e(f"s_add_u32 s{S_W}, s{S_W}, 1024")

    S_HO, S_PFR, S_OUT = 72, 74, 75
    def pre_tail(self):
        e = self.e
        if self.old:
            h = self.S_HO
            e(f"s_and_b32 s{S_T0}, s3, 1"); e(f"s_lshl_b32 s{S_T0}, s{S_T0}, 2"); e(f"s_lshr_b32 s{S_T1}, s{S_J}, 5"); e(f"s_add_u32 s{S_T0}, s{S_T0}, s{S_T1}")
            e(f"s_lshl_b32 s{h}, s{S_T0}, 17")
            e(f"s_and_b32 s{S_T1}, s{S_J}, 31"); e(f"s_lshl_b32 s{S_T1}, s{S_T1}, 12"); e(f"s_add_u32 s{h}, s{h}, s{S_T1}")
            e(f"s_add_u32 s{h}, s{h}, {hex(PO)}")
            e(f"s_and_b32 s{S_T0}, s3, 1"); e(f"s_lshl_b32 s{S_T0}, s{S_T0}, 6")
            e("v_and_b32 v26, 7, v0"); e(f"v_lshlrev_b32 v{HA[1]}, 3, v26"); e("v_lshrrev_b32 v26, 4, v0"); e(f"v_lshl_add_u32 v{HA[1]}, v26, 1, v{HA[1]}"); e(f"v_add_u32 v{HA[1]}, s{S_T0}, v{HA[1]}")
            if not self.isO:
                p = self.S_PFR
                e(f"s_lshr_b32 s{p}, s{S_J}, 1"); e(f"s_lshl_b32 s{p}, s{p}, 14"); e(f"s_lshl_b32 s{S_T2}, s3, 12"); e(f"s_add_u32 s{p}, s{p}, s{S_T2}")
                e(f"s_and_b32 s{S_T2}, s{S_J}, 1"); e(f"s_lshl_b32 s{S_T2}, s{S_T2}, 6"); e(f"s_add_u32 s{p}, s{p}, s{S_T2}"); e(f"s_add_u32 s{p}, s{p}, {hex(PF)}")
                e("v_lshrrev_b32 v26, 2, v0"); e(f"v_lshlrev_b32 v{HA[4]}, 7, v26"); e("v_and_b32 v26, 3, v0"); e(f"v_lshl_add_u32 v{HA[4]}, v26, 4, v{HA[4]}")
                e(f"v_lshlrev_b32 v{HA[2]}, 4, v26"); e("v_lshrrev_b32 v27, 4, v0"); e(f"v_lshl_add_u32 v{HA[2]}, v27, 2, v{HA[2]}")
                e(f"s_lshl_b32 s{S_T0}, s3, 6"); e(f"s_add_u32 s{S_T0}, s{S_T0}, {FR}"); e(f"v_add_u32 v{HA[2]}, s{S_T0}, v{HA[2]}")
                e("v_and_b32 v26, 7, v0"); e(f"v_lshlrev_b32 v{HA[3]}, 3, v26")
                e("v_lshrrev_b32 v27, 1, v26"); e(f"v_lshlrev_b32 v{V_WA}, 4, v27"); e("v_and_b32 v27, 1, v0"); e(f"v_lshl_add_u32 v{V_WA}, v27, 2, v{V_WA}")
                o = self.S_OUT
                e(f"s_lshr_b32 s{o}, s{S_J}, 3"); e(f"s_lshl_b32 s{o}, s{o}, 8")
                e(f"s_and_b32 s{S_T2}, s{S_J}, 3"); e(f"s_lshl_b32 s{S_T2}, s{S_T2}, 6"); e(f"s_add_u32 s{o}, s{o}, s{S_T2}")
                e(f"s_bfe_u32 s{S_T2}, s{S_J}, 0x10002"); e(f"s_lshl_b32 s{S_T2}, s{S_T2}, 3"); e(f"s_add_u32 s{o}, s{o}, s{S_T2}")
        else:
            e("v_bfe_u32 v26, v0, 2, 1"); e(f"v_lshlrev_b32 v{HA[2]}, 6, v26"); e("v_lshrrev_b32 v26, 4, v0"); e(f"v_lshl_add_u32 v{HA[2]}, v26, 4, v{HA[2]}")
            e("v_bfe_u32 v26, v0, 4, 1"); e(f"v_lshlrev_b32 v{HA[3]}, 19, v26"); e("v_bfe_u32 v26, v0, 3, 1"); e(f"v_lshl_add_u32 v{HA[3]}, v26, 14, v{HA[3]}")
            e("v_and_b32 v26, 7, v0"); e(f"v_lshl_add_u32 v{HA[3]}, v26, 4, v{HA[3]}")
            e("v_lshrrev_b32 v26, 5, v0"); e(f"v_lshl_add_u32 v{HA[3]}, v26, 15, v{HA[3]}")
            e(f"s_and_b32 s98, s3, 3"); e("s_lshl_b32 s98, s98, 16"); e(f"s_lshl_b32 s{S_T1}, s{S_J}, 7"); e(f"s_add_u32 s98, s98, s{S_T1}")
            e(f"s_add_u32 s98, s98, {hex(PF + (4 << 16 if self.isO else 0))}")
            e("s_mov_b32 s100, 0"); e("s_mov_b32 s101, -1")
            for i in range(4): e(f"s_mov_b32 s{4+i}, {hex(0x07060500 + i)}")

    def claim(self, tag):
        e = self.e
        e(f"v_mov_b32 v{V_U1}, 1"); e("s_mov_b64 exec, 1")
        self.vm(f"buffer_atomic_add v{V_U1}, off, s[{WS}:{WS+3}], s{S_CA} sc0", tag)
        e("s_mov_b64 exec, -1")

    def tiles(self):
        e = self.e; old = self.old
        self.read_q(1)
        self.late_setup()
        e("s_waitcnt lgkmcnt(0)")
        if old:
            for t in range(3): self.b_tile(str(t), t == 0)
            if self.isO: self.a_tile("A")
            self.last_tile("3"); return
        if self.isO: self.a_tile("A")
        e(f"s_lshl_b32 s{S_DB}, s{S_GRP}, 23"); e(f"s_lshl_b32 s{S_T0}, s3, 13"); e(f"s_add_u32 s{S_DB}, s{S_DB}, s{S_T0}"); e(f"s_add_u32 s{S_DB}, s{S_DB}, 0x600000")
        e(f"s_lshl_b32 s{S_CA}, s{S_GRP}, 2"); e(f"s_and_b32 s{S_T0}, s3, 3"); e(f"s_add_u32 s{S_CA}, s{S_CA}, s{S_T0}"); e(f"s_lshl_b32 s{S_CA}, s{S_CA}, 8"); e(f"s_add_u32 s{S_CA}, s{S_CA}, {hex(CT)}")
        names = ["X", "Y", "Z", "U"][:self.opt("maxdyn", 2)]; NF = self.opt("nf", 32)
        self.b_tile("0", True); self.claim("c0"); self.b_tile("1", False)
        prev = "2"; ends = []
        for i, nm in enumerate(names):
            lab = self.newlab("dend")
            self.wait(f"c{i}")
            e(f"v_readfirstlane_b32 s{S_DX}, v{V_U1}"); e("s_nop 0")
            e(f"s_cmp_ge_u32 s{S_DX}, {NF + 2*(32-NF)}"); e(f"s_cbranch_scc1 {lab}")
            ends.append((lab, prev, list(self.q), list(self.free), dict(self.slot)))
            e(f"s_sub_u32 s{S_T0}, s{S_DX}, {NF}"); e(f"s_lshr_b32 s{S_T1}, s{S_T0}, 1"); e(f"s_add_u32 s{S_T1}, s{S_T1}, {NF}"); e(f"s_lshl_b32 s{S_T1}, s{S_T1}, 16")
            e(f"s_and_b32 s{S_T0}, s{S_T0}, 1"); e(f"s_lshl_b32 s{S_T0}, s{S_T0}, 12"); e(f"s_add_u32 s{S_T1}, s{S_T1}, s{S_T0}")
            e(f"s_lshl_b32 s{S_T0}, s{S_DX}, 16")
            e(f"s_cmp_lt_u32 s{S_DX}, {NF}")
            e(f"s_cselect_b32 s{S_DX}, s{S_T0}, s{S_T1}"); e(f"s_cselect_b32 s{S_BIAS[nm]}, 0, 0xff7fffff"); e(f"s_cselect_b32 s{S_T0}, 0, 0x40000000")
            e(f"s_add_u32 s{S_DX}, s{S_DX}, s{S_DB}"); e(f"v_add_u32 v{V_GA}, s{S_T0}, v{V_K1}"); e(f"v_add_u32 v{V_GB}, s{S_T0}, v{V_L1}")
            assert not self.seq
            self.seq = ["K" + nm, "V" + nm]
            assert self.issue_next()
            if i + 1 < len(names): self.claim(f"c{i+1}")
            self.seq = ["HOLD"] + self.seq if False else self.seq
            self.b_tile(prev, False)
            prev = nm
        e(f"s_mov_b32 s{S_CA}, 255")
        self.last_tile(prev)
        for k_, (lab, t, q, free, slot) in enumerate(ends):
            self.label(lab)
            self.q, self.free, self.slot, self.seq = q, free, slot, []
            e(f"s_add_u32 s{S_CA}, s{S_DX}, {self.opt('lateadd', 0) * k_}")
            self.last_tile(t)

    def last_tile(self, tl):
        e = self.e; old = self.old
        uk, uv = f"K{tl}", f"V{tl}"
        assert not self.seq
        if not old:
            wh = self.opt("whold", 1)
            self.seq = {0: ["WA", "WB"], 1: ["WA", "HOLD", "WB"], 2: ["HOLD", "WA", "WB"], 3: ["WA", "HOLD", "WB"]}[wh]
            while self.issue_next(): pass
        if not old: e(f"s_mov_b32 s{S_LATE}, s{S_CA}")
        self.pre_tail()
        R = self.free[0]
        if old and self.isO:
            self.lds_spin(F_AC, 8)
            self.combine_a(R, 0, R + 24, 8); self.combine_a(R, 4, R + 28, 8)
        self.wait(uk)
        self.qk(self.slot[uk], False, S_BIAS.get(tl)); self.release(uk)
        R2 = self.free[1]
        if not old and self.opt("late", 0):
            e(f"v_mov_b32 v{T[1]}, s{S_LATE}"); e("s_mov_b64 exec, 1"); e(f"ds_max_u32 v{V_FLG}, v{T[1]} offset:{F_LATE - FLG}"); e("s_mov_b64 exec, -1")
        if self.opt("nobm", 1) and not old and self.isO:
            self.lds_inc(F_LT); e("s_nop 3")
        else: e("s_nop 7")
        def hook():
            e("s_mov_b32 exec_hi, 0")
            self.vm(f"buffer_store_dwordx4 v[{R+24}:{R+27}], v{V_PO}, s[{WS}:{WS+3}], s{S_POA} offen sc1", "st")
            self.vm(f"buffer_store_dwordx4 v[{R+28}:{R+31}], v{V_PO}, s[{WS}:{WS+3}], s{S_POA2} offen sc1", "st")
            e("s_mov_b32 exec_hi, -1")
        hk = hook if (old and self.isO) else None
        self.tilemax(False)
        if self.opt("nobm", 1):
            if not old:
                if self.opt("yprio", 1): e("s_setprio 2")
            self.softmax_rest(False)
            self.write_ml()
            e(f"v_mov_b32 v{R+19}, s{S_NONCE}")
            self.stamp(2)
            if old:
                self.wait(uv)
                self.perm_mfma8(self.slot[uv], PR, False, True); self.release(uv)
                e("s_nop 3")
                self.write_o(1)
                self.lds_inc(F_OC)
                self.lds_spin(F_OC, 4)
                self.precombine_b(R2, 0); self.precombine_b(R2, 4)
                if hk:
                    self.lds_spin(F_LT, 4)
                    hk()
                self.stamp(6)
            else:
                nh = self.opt("wbh", 0)
                def wbhook():
                    fr = self.free; assert len(fr) >= 3, fr
                    self.free = [fr[2]]; self.seq = ["WB"]; self.wb_part = range(nh)
                    assert self.issue_next()
                    self.free = fr[:2] + fr[3:]; self.seq = ["HOLD", "WB2"]; self.wb_part = None
                self.pv_last(uv, self.slot[uv], R2, wbhook if nh else None, self.opt("wbpos", 1)); self.release(uv)
                self.write_o(1)
                if self.opt("whold", 1) == 3:
                    self.seq.pop(0); fr = self.free; self.free = [fr[-1]]; assert self.issue_next(); self.free = fr[:-1]
            e(f"v_and_b32 v{R+16}, 1, v0"); e(f"v_cmp_eq_u32 vcc, 1, v{R+16}")
            if not old and self.opt("ylow", 1): e("s_setprio 0")
            e("s_waitcnt lgkmcnt(0)")
            e("s_barrier")
            self.stamp(7)
            self.o_publish5(R, R2)
        else:
            if old:
                self.softmax_rest(False)
                self.wait(uv)
                self.perm_mfma8(self.slot[uv], PR, False, True); self.release(uv)
                self.xlane("v_add_f32", V_LS, T[1], (16, 32))
                e(f"v_mov_b32 v{T[0]}, v{V_M}")
                self.common_scale(R, hk, True)
                self.stamp(2); self.stamp(6)
            else:
                if self.opt("yprio", 1): e("s_setprio 2")
                self.common_scale(R, None, False)
                self.stamp(2)
                self.pv_last(uv, self.slot[uv], R2); self.release(uv)
            self.write_o(1)
            if not old and self.opt("ylow", 1): e("s_setprio 0")
            e("s_waitcnt lgkmcnt(0)")
            e("s_barrier")
            self.stamp(7)
            self.o_publish(R, R2)
        self.stamp(8)
        if self.opt("notail", 0):
            if not old:
                if self.seq and self.seq[0] == "HOLD": self.seq.pop(0)
                while self.issue_next(): pass
            e("s_waitcnt vmcnt(0)"); self.stamp(9); self.stamp(11); self.stamp(10); self.stamp_flush(); e("s_endpgm")
        elif old: self.tail_old()
        else: self.tail_young()

    def gather_reduce(self, D, n, gv, off):
        e = self.e; dp = self.dp
        M, u, mc, Ls = T[0], T[1], T[2], T[3]
        X = WSET[0]; E = RING[1]
        e(f"s_mov_b32 s{S_T0}, 0xffff0000")
        for i in range(n): e(f"v_mov_b32_dpp v{E+4*i}, v{D+4*i+2} quad_perm:[0,0,2,2] row_mask:0xf bank_mask:0xf")
        if n == 4: e(f"v_max3_f32 v{M}, v{E}, v{E+4}, v{E+8}"); e(f"v_max_f32 v{M}, v{M}, v{E+12}")
        else: e(f"v_max_f32 v{M}, v{E}, v{E+4}")
        up = [E + 16, E + 20, E + 24, E + 28]
        fill = []
        for i in range(n):
            r = up[i]
            fill += [f"v_lshlrev_b32 v{r}, 16, v{D+4*i}", f"v_and_b32 v{r+1}, s{S_T0}, v{D+4*i}", f"v_lshlrev_b32 v{r+2}, 16, v{D+4*i+1}", f"v_and_b32 v{r+3}, s{S_T0}, v{D+4*i+1}"]
        fill += [f"v_mov_b32_dpp v{E+4*i+2}, v{D+4*i+2} quad_perm:[1,1,3,3] row_mask:0xf bank_mask:0xf" for i in range(n)]
        def fl(k):
            for _ in range(k): e(fill.pop(0))
        fl(2)
        dp("v_max_f32", M, 8)
        e(f"v_mov_b32 v{u}, v{M}"); fl(2)
        e(f"v_permlane16_swap_b32 v{M}, v{u}"); e(f"v_max_f32 v{M}, v{M}, v{u}")
        e(f"v_mov_b32 v{u}, v{M}"); fl(2)
        e(f"v_permlane32_swap_b32 v{M}, v{u}"); e(f"v_max_f32 v{M}, v{M}, v{u}")
        e(f"v_mul_f32 v{mc}, s{S_C}, v{M}")
        for i in range(n): e(f"v_fma_f32 v{E+4*i}, v{E+4*i}, s{S_C}, -v{mc}")
        for i in range(n): e(f"v_exp_f32 v{E+4*i}, v{E+4*i}")
        fl(len(fill))
        for i in range(n):
            ee = E + 4 * i
            for h in range(2):
                if i == 0: e(f"v_pk_mul_f32 v[{X+2*h}:{X+2*h+1}], v[{up[i]+2*h}:{up[i]+2*h+1}], v[{ee}:{ee+1}] op_sel_hi:[1,0]")
                else: e(f"v_pk_fma_f32 v[{X+2*h}:{X+2*h+1}], v[{up[i]+2*h}:{up[i]+2*h+1}], v[{ee}:{ee+1}], v[{X+2*h}:{X+2*h+1}] op_sel_hi:[1,0,1]")
            e(f"{'v_mul_f32' if i == 0 else 'v_fmac_f32'} v{Ls}, v{E+4*i+2}, v{ee}")
        for r in (X, X + 1, X + 2, X + 3, Ls): dp("v_add_f32", r, 8)
        e(f"v_mov_b32 v{u}, v{Ls}")
        e(f"v_permlane16_swap_b32 v{X}, v{X+1}"); e(f"v_permlane16_swap_b32 v{X+2}, v{X+3}"); e(f"v_permlane16_swap_b32 v{Ls}, v{u}")
        e(f"v_add_f32 v{Ls}, v{Ls}, v{u}"); e(f"v_add_f32 v{X}, v{X}, v{X+1}"); e(f"v_add_f32 v{X+2}, v{X+2}, v{X+3}")
        e(f"v_mov_b32 v{u}, v{Ls}"); e("s_nop 0")
        e(f"v_permlane32_swap_b32 v{X}, v{X+2}"); e(f"v_permlane32_swap_b32 v{Ls}, v{u}")
        e(f"v_add_f32 v{Ls}, v{Ls}, v{u}"); e(f"v_add_f32 v{X}, v{X}, v{X+2}")
        e(f"v_rcp_f32 v{Ls}, v{Ls}")
        e(f"v_mul_f32 v{X}, v{X}, v{gv}")
        e(f"v_mul_f32 v{X}, v{X}, v{Ls}")
        e(f"v_cvt_pk_bf16_f32 v{X}, v{X}, v{X}")
        e("s_mov_b32 exec_lo, 0x00ff00ff"); e("s_mov_b32 exec_hi, 0x00ff00ff")
        e(f"ds_write_b16 v{HA[1]}, v{X} offset:{off}")
        e("s_mov_b64 exec, -1")

    def tail_old(self):
        e = self.e
        D = OACC
        mk = lambda D, v, sa, n, st: [f"buffer_load_dwordx4 v[{D+4*i}:{D+4*i+3}], v{v}, s[{WS}:{WS+3}], s{sa} offen offset:{st*i} sc1" for i in range(n)]
        la_, jn = self.newlab("ga"), self.newlab("gj")
        ps = self.opt("posleep", 0)
        aw = self.opt("aw", 0)
        if aw:
            for i in range(4): e(f"v_mov_b32 v{D+4*i+3}, 0")
        self.late_full = None
        if aw and self.opt("late", 0):
            e(f"ds_read_b32 v{T[7]}, v{V_FLG} offset:{F_LATE - FLG}"); e("s_waitcnt lgkmcnt(0)")
            e(f"v_readfirstlane_b32 s{S_LATE}, v{T[7]}")
            self.late_full = self.opt("late", 0)
        e("s_cmp_ge_u32 s3, 2"); e(f"s_cbranch_scc1 {la_}")
        e(f"s_add_u32 s{self.S_HO}, s{self.S_HO}, {hex(PO_BR)}")
        self.poll_missing(mk(D, V_L0, self.S_HO, 4, 1024), [[D + 4 * i + 3] for i in range(4)], ps, first=not aw, watch=True)
        self.stamp(9)
        self.gather_reduce(D, 4, V_GB, OB + 128)
        e(f"s_branch {jn}")
        self.label(la_)
        self.poll_missing(mk(D, V_L0, self.S_HO, 2, 1024), [[D + 4 * i + 3] for i in range(2)], ps, first=not aw, watch=True)
        self.stamp(9)
        self.gather_reduce(D, 2, V_GA, OB)
        self.lds_inc(F_OA)
        self.label(jn)
        e("s_waitcnt lgkmcnt(0)")
        e("s_barrier")
        if self.isO:
            self.stamp(10); self.stamp_flush(); e("s_endpgm"); return
        R = RING[0]
        e(f"s_mov_b32 s{S_SELLO}, 0x0c0c0400"); e(f"s_mov_b32 s{S_SELHI}, 0x05040100")
        self.stamp(1)
        lf = mk(R, HA[4], self.S_PFR, 2, 2048)
        if self.opt("fsleep0", 0): e(f"s_sleep {self.opt('fsleep0', 0)}")
        if self.opt("fw", 0) == 2:
            gl, gd, gs = self.newlab("gl"), self.newlab("gd"), self.newlab("gs")
            e(f"s_lshr_b32 s{S_T0}, s{S_J}, 1"); e(f"s_and_b32 s{S_T0}, s{S_T0}, 15"); e(f"s_lshl_b32 s{S_T0}, s{S_T0}, 2"); e(f"s_lshl_b64 s[12:13], 0xf, s{S_T0}")
            e(f"s_mov_b32 s{S_CNT}, 0")
            self.label(gl)
            e("s_mov_b64 exec, s[12:13]")
            e(lf[0])
            e(f"ds_read_b32 v{T[5]}, v{V_FLG} offset:{F_CNT - FLG}")
            e("s_waitcnt vmcnt(0) lgkmcnt(0)")
            e(f"v_perm_b32 v{T[6]}, v{R+1}, v{R}, s{S_SELLO}"); e(f"v_perm_b32 v{T[7]}, v{R+3}, v{R+2}, s{S_SELLO}")
            e(f"v_perm_b32 v{T[6]}, v{T[7]}, v{T[6]}, s{S_SELHI}")
            e(f"v_readfirstlane_b32 s{S_T2}, v{T[5]}"); e(f"v_readfirstlane_b32 s{S_T1}, v{T[6]}")
            e("s_mov_b64 exec, -1")
            e(f"s_add_u32 s{S_CNT}, s{S_CNT}, 1")
            e(f"s_cmp_lg_u32 s{S_T2}, 8"); e(f"s_cbranch_scc1 {gd}")
            e(f"s_cmp_eq_u32 s{S_T1}, s{S_NONCE}"); e(f"s_cbranch_scc1 {gs}")
            e(f"s_cmp_gt_u32 s{S_CNT}, {SPIN_MAX}"); e(f"s_cbranch_scc1 {gd}")
            if self.opt("gsleep", 2): e(f"s_sleep {self.opt('gsleep', 2)}")
            e(f"s_branch {gl}")
            self.label(gs)
            self.lds_inc(F_CNT)
            self.label(gd)
        if self.opt("fw", 0) == 1:
            e(f"v_mov_b32 v{R}, 0"); e(f"v_mov_b32 v{R+4}, 0")
        self.poll_missing(lf, [["emb", R], ["emb", R + 4]], self.opt("pfsleep", 0), first=self.opt("fw", 0) != 1, watch=True, lpl=4, thr=self.opt("fthr", self.opt("wthr", 8)))
        self.stamp(11)
        for i in range(8): e(f"v_and_b32 v{R+i}, 0xffffff00, v{R+i}")
        e(f"v_pk_add_f32 v[{R}:{R+1}], v[{R}:{R+1}], v[{R+4}:{R+5}]"); e(f"v_pk_add_f32 v[{R+2}:{R+3}], v[{R+2}:{R+3}], v[{R+6}:{R+7}]")
        e("s_nop 0")
        for ror in (4, 8):
            for i in range(4): self.dp("v_add_f32", R + i, ror)
        e("s_nop 0")
        e(f"v_permlane16_swap_b32 v{R}, v{R+1}"); e(f"v_permlane16_swap_b32 v{R+2}, v{R+3}")
        e(f"v_add_f32 v{R}, v{R}, v{R+1}"); e(f"v_add_f32 v{R+2}, v{R+2}, v{R+3}")
        e("s_nop 1")
        e(f"v_permlane32_swap_b32 v{R}, v{R+2}")
        e(f"v_add_f32 v{R}, v{R}, v{R+2}")
        e("s_mov_b32 exec_lo, 0x000f000f"); e("s_mov_b32 exec_hi, 0x000f000f")
        e(f"ds_write_b32 v{HA[2]}, v{R}")
        e("s_mov_b64 exec, -1")
        e("s_waitcnt lgkmcnt(0)")
        e("s_barrier")
        done = self.newlab("qdone")
        e("s_cmp_lg_u32 s3, 0"); e(f"s_cbranch_scc1 {done}")
        for w in range(4): e(f"ds_read_b64 v[{R+2*w}:{R+2*w+1}], v{HA[3]} offset:{FR + w*64}")
        e("s_waitcnt lgkmcnt(0)")
        e(f"v_pk_add_f32 v[{R}:{R+1}], v[{R}:{R+1}], v[{R+2}:{R+3}]"); e(f"v_pk_add_f32 v[{R+4}:{R+5}], v[{R+4}:{R+5}], v[{R+6}:{R+7}]")
        e(f"v_pk_add_f32 v[{R}:{R+1}], v[{R}:{R+1}], v[{R+4}:{R+5}]")
        e(f"v_cvt_pk_bf16_f32 v{R}, v{R}, v{R+1}")
        e("s_mov_b64 exec, 0xff")
        e(f"buffer_store_dword v{R}, v{V_WA}, s[{OUT}:{OUT+3}], s{self.S_OUT} offen")
        if self.opt("clean", 1):
            e(f"s_cmp_lg_u32 s{S_J}, 0"); e(f"s_cbranch_scc1 {done}")
            e(f"v_mov_b32 v{R+2}, 0")
            e("s_mov_b64 exec, 1")
            e(f"buffer_store_dword v{R+2}, off, s[{DBG}:{DBG+3}], 0 sc1")
        e("s_mov_b64 exec, -1")
        self.label(done)
        e("s_mov_b64 exec, -1")
        self.stamp(10); self.stamp_flush(); e("s_endpgm")

    def tail_young(self):
        e = self.e
        if self.seq and self.seq[0] == "HOLD": self.seq.pop(0)
        self.free = self.free[1:] + self.free[:1]
        if self.seq == ["WB2"]:
            fr = self.free
            self.free = [self.slot["WB"]]; self.seq = ["WB"]; self.wb_part = range(self.opt("wbh", 0), 8)
            assert self.issue_next()
            self.free = fr; self.wb_part = None
        while self.issue_next(): pass
        assert not self.seq
        if self.opt("ylow", 1): e("s_setprio 2")
        F0, F1 = self.free[:2]
        PK = SR
        OPR = QR + 8
        e(f"v_mov_b32 v{PK+4}, s{S_NONCE}")
        self.wait("WA")
        for dd in range(8): self.perms(F0 + dd * 4, self.slot["WA"], dd)
        self.stamp(11)
        self.wait("WB")
        for dd in range(8): self.perms(F1 + dd * 4, self.slot["WB"], dd)
        self.stamp(9)
        self.lds_spin(F_OA, 2)
        e(f"ds_read_b128 v[{OPR}:{OPR+3}], v{HA[2]} offset:{OB}")
        e("s_waitcnt lgkmcnt(0)")
        for dd in range(8): self.mfma(OACC + dd * 4, OPR, F0 + dd * 4, None)
        e("s_barrier")
        self.stamp(1)
        e(f"ds_read_b128 v[{OPR+4}:{OPR+7}], v{HA[2]} offset:{OB+128}")
        e("s_waitcnt lgkmcnt(0)")
        for dd in (0, 4, 1, 5, 2, 6, 3, 7): self.mfma(OACC + dd * 4, OPR + 4, F1 + dd * 4, OACC + dd * 4)
        e("s_nop 4")
        for i in range(4): e(f"v_cndmask_b32 v{PK+i}, v{OACC+4*i}, v{OACC+16+4*i}, s[100:101]")
        for i in range(4): e(f"v_perm_b32 v{PK+i}, v{PK+i}, v{PK+4}, s{4+i}")
        e(f"buffer_store_dwordx4 v[{PK}:{PK+3}], v{HA[3]}, s[{WS}:{WS+3}], s98 offen sc1")
        self.stamp(10); self.stamp_flush(); e("s_endpgm")

    def body(self, young_first):
        e = self.e; isO = self.isO
        p = "o" if isO else "q"
        base_q, base_free = list(self.q), list(self.free)
        e("s_cmp_ge_u32 s3, 4"); e(f"s_cbranch_scc1 L_{p}_y")
        for old in (True, False):
            self.q, self.free, self.slot = list(base_q), list(base_free), {}
            self.old = old
            if old: order = ["0", "1", "2"] + (["A"] if isO else []) + ["3"]
            else: order = (["A"] if isO else []) + ["0", "1", "2"]
            self.seq = [x for t in order for x in (f"K{t}", f"V{t}")]
            if not old: self.label(f"L_{p}_y")
            if old:
                self.gate_loads()
                if isO and self.opt("gatefirst", 1):
                    self.nonce_duty(0); self.gate()
                while self.issue_next(): pass
                if not (isO and self.opt("gatefirst", 1)): self.gate()
            elif self.opt("noq", 0):
                while self.issue_next(): pass
            else:
                if isO and not self.opt("gatefirst", 1): self.nonce_duty(4)
                young_first()
                self.young_prefetch()
            self.wait_q()
            self.stamp(5)
            self.tiles()

    def nonce_duty(self, wave):
        e = self.e
        lab = self.newlab("non")
        e("s_xor_b32 s98, s2, 16"); e(f"s_xor_b32 s{S_T2}, s3, {wave}"); e(f"s_or_b32 s98, s98, s{S_T2}"); e("s_cmp_lg_u32 s98, 0"); e(f"s_cbranch_scc1 {lab}")
        e("s_setprio 3")
        e("v_lshlrev_b32 v26, 8, v0"); e("v_mov_b32 v27, 0"); e(f"s_mov_b32 s98, {hex(CT)}")
        e("s_mov_b32 exec_hi, 0")
        e(f"buffer_store_dword v27, v26, s[{WS}:{WS+3}], s98 offen sc1")
        e("s_waitcnt vmcnt(0)")
        e("s_or_b32 s98, s96, 1"); e("v_mov_b32 v26, s98")
        e("s_mov_b64 exec, 1")
        e(f"buffer_store_dword v26, off, s[{DBG}:{DBG+3}], 0 sc1")
        e("s_mov_b64 exec, -1")
        e("s_setprio 0")
        self.label(lab)

    def roleQ(self):
        e = self.e
        e("v_and_b32 v26, 1, v24"); e(f"v_lshlrev_b32 v{V_X}, 11, v26"); e(f"v_lshl_add_u32 v{V_X}, v25, 5, v{V_X}")
        e("v_bfe_u32 v26, v24, 2, 1"); e(f"v_lshl_add_u32 v{V_X}, v26, 4, v{V_X}")
        e("v_lshrrev_b32 v26, 3, v0"); e(f"v_lshlrev_b32 v{V_WA}, 16, v26"); e("v_and_b32 v26, 7, v0"); e(f"v_lshl_add_u32 v{V_WA}, v26, 4, v{V_WA}")
        e(f"s_and_b32 s{S_CG}, s{S_J}, 63"); e(f"s_lshl_b32 s{S_W}, s{S_CG}, 7"); e(f"s_lshl_b32 s{S_T1}, s3, 20"); e(f"s_add_u32 s{S_W}, s{S_W}, s{S_T1}")
        e(f"s_lshl_b32 s{S_T1}, s3, 8")
        e("s_waitcnt lgkmcnt(0)")
        e("s_cmp_ge_u32 s2, 128")
        e(f"s_cselect_b32 s{W1}, s64, s54"); e(f"s_cselect_b32 s{W1+1}, s65, s55"); e(f"s_mov_b32 s{W1+2}, 0x800000"); e(f"s_mov_b32 s{W1+3}, 0x20000")
        self.srd(XS, 48, 4096); self.srd(DBG, 72, 256)

        self.vm(f"buffer_load_dwordx4 v[{QR}:{QR+3}], v{V_X}, s[{XS}:{XS+3}], s{S_T1} offen", "x")
        self.vm(f"buffer_load_dwordx4 v[{QR+4}:{QR+7}], v{V_X}, s[{XS}:{XS+3}], s{S_T1} offen offset:128", "x")
        for u in range(2):
            for ee in range(8):
                r = RING[u] + ee * 4
                e(f"s_add_u32 s{S_T0}, s{S_W}, {(u*64+ee)*8192}")
                self.vm(f"buffer_load_dwordx4 v[{r}:{r+3}], v{V_WA}, s[{W1}:{W1+3}], s{S_T0} offen nt", u)
        self.vm(f"buffer_load_dword v{V_U1}, off, s[{DBG}:{DBG+3}], 0 sc1", "nn")
        self.srd(KB, 60, 0x4000000); self.srd(VB, 62, 0x4000000); self.srd_ws(); self.srd(OUT, 70, 4096)
        self.srd(KA, 50, 0x4000000); self.srd(VA, 52, 0x4000000); self.srd(W2, 66, 0x800000)
        e("s_cmp_ge_u32 s3, 4")
        e(f"s_cselect_b32 s{GT}, s56, s68"); e(f"s_cselect_b32 s{GT+1}, s57, s69"); e(f"s_movk_i32 s{GT+2}, 2048"); e(f"s_cselect_b32 s{GT+2}, 0x800000, s{GT+2}"); e(f"s_mov_b32 s{GT+3}, 0x20000")
        e(f"s_lshl_b32 s{S_AB}, s{S_IDX}, 4"); e(f"s_add_u32 s{S_AB}, s{S_AB}, s3"); e(f"s_add_u32 s{S_AB}, s{S_AB}, 12"); e(f"s_lshl_b32 s{S_AB}, s{S_AB}, 12")
        e(f"s_lshl_b32 s{S_T0}, s{S_GRP}, 23"); e(f"s_add_u32 s{S_AB}, s{S_AB}, s{S_T0}"); e(f"s_add_u32 s{S_AB}, s{S_AB}, 0x700000")
        self.common_setup()
        if self.stamps: e("s_mov_b64 s[48:49], s[96:97]")
        e("s_barrier")
        self.wait(0)
        self.perm_mfma8(RING[0], QR, True, False)
        e("v_bfe_u32 v26, v0, 3, 1"); e("v_lshlrev_b32 v27, 9, v26"); e("v_and_b32 v26, 7, v0"); e("v_lshl_add_u32 v27, v26, 6, v27")
        e(f"s_lshl_b32 s{S_T0}, s3, 10"); e(f"s_add_u32 s{S_T0}, s{S_T0}, {CO}"); e(f"v_add_u32 v27, s{S_T0}, v27")
        e("v_mov_b32 v28, 1")
        self.wait(1)
        self.perm_mfma8(RING[1], QR + 4, False, False)
        e("s_mov_b32 exec_lo, 0xff0000ff"); e("s_mov_b32 exec_hi, 0")
        e("s_nop 1")
        for dd in range(8):
            e(f"ds_write_b64 v27, v[{OACC+dd*4}:{OACC+dd*4+1}] offset:{dd*8}")
        e("s_mov_b64 exec, 1")
        e(f"ds_add_u32 v{V_FLG}, v28 offset:{F_CNT - FLG}")
        e("s_mov_b64 exec, -1")
        def young_first():
            e("s_setprio 3")
            e("v_lshrrev_b32 v26, 5, v0"); e("v_lshlrev_b32 v27, 12, v26"); e("v_lshlrev_b32 v28, 14, v26")
            e("v_and_b32 v26, 31, v0"); e("v_lshl_add_u32 v27, v26, 4, v27"); e(f"v_add_u32 v27, {CO}, v27"); e("v_lshl_add_u32 v28, v26, 3, v28")
            e(f"s_lshr_b32 s{S_T0}, s{S_J}, 6"); e(f"s_lshl_b32 s{S_T0}, s{S_T0}, 15"); e(f"s_lshl_b32 s{S_T1}, s{S_CG}, 8")
            e(f"s_add_u32 s{S_T2}, s{S_T0}, s{S_T1}")
            self.wait("nn")
            self.get_nonce()
            self.lds_spin(F_CNT, 8)
            for p in range(8):
                e(f"ds_read_b128 v[{OACC+p*4}:{OACC+p*4+3}], v27 offset:{p*512}")
            e("s_waitcnt lgkmcnt(0)")
            for p in (4, 2, 1):
                for q in range(p):
                    for i in (0, 2):
                        e(f"v_pk_add_f32 v[{OACC+q*4+i}:{OACC+q*4+i+1}], v[{OACC+q*4+i}:{OACC+q*4+i+1}], v[{OACC+(q+p)*4+i}:{OACC+(q+p)*4+i+1}]")
            e(f"v_mov_b32 v{OACC+5}, s{S_NONCE}")
            e("s_nop 0")
            e(f"v_permlane32_swap_b32 v{OACC}, v{OACC+1}"); e(f"v_permlane32_swap_b32 v{OACC+2}, v{OACC+3}")
            e(f"v_add_f32 v{OACC}, v{OACC}, v{OACC+1}"); e(f"v_add_f32 v{OACC+2}, v{OACC+2}, v{OACC+3}")
            e(f"v_cvt_pk_bf16_f32 v{OACC+4}, v{OACC}, v{OACC+2}")
            e(f"s_and_b32 s{S_T0}, s3, 3"); e(f"s_lshl_b32 s{S_T0}, s{S_T0}, 4"); e(f"s_lshl_b64 exec, 0xffff, s{S_T0}")
            self.vm(f"buffer_store_dwordx2 v[{OACC+4}:{OACC+5}], v28, s[{WS}:{WS+3}], s{S_T2} offen sc1", "st")
            e("s_mov_b64 exec, -1")
            e("s_setprio 0")
            self.stamp(3)
        self.free = [RING[2], RING[3], RING[4], RING[0], RING[1]]
        self.body(young_first)

    def roleO(self):
        e = self.e
        e(f"s_lshl_b32 s{S_AB}, s{S_IDX}, 3"); e(f"s_add_u32 s{S_AB}, s{S_AB}, s3"); e(f"s_lshl_b32 s{S_AB}, s{S_AB}, 13"); e(f"s_add_u32 s{S_AB}, s{S_AB}, s{S_T0}")
        e(f"s_add_u32 s{S_AB}, s{S_AB}, 0x700000")
        self.common_setup()
        e("s_waitcnt lgkmcnt(0)")
        self.srd(XS, 48, 4096); self.srd(GT, 68, 2048); self.srd(KB, 60, 0x4000000); self.srd(VB, 62, 0x4000000)
        self.srd(KA, 50, 0x4000000); self.srd(VA, 52, 0x4000000); self.srd_ws(); self.srd(DBG, 72, 256)
        self.srd(W1, 56, 0x800000); self.srd(W2, 66, 0x800000)
        if self.stamps: e("s_mov_b64 s[48:49], s[96:97]")
        e("s_barrier")
        self.free = list(RING)
        self.body(lambda: None)

if __name__ == "__main__":
    out = sys.argv[1]
    st = "--stamps" in sys.argv
    opts = dict(a[2:].split("=") for a in sys.argv[2:] if a.startswith("--") and "=" in a)
    open(out, "w").write(G(stamps=st, opts=opts).build())
```

```python
import sys, struct, math
KNAME = "gated_mix__sliding_block_cached__gqa_block_cached__decode_kernel"
def f2u(x): return struct.unpack("<I", struct.pack("<f", x))[0]

QG, PO, PF, STAMP = 0, 0x100000, 0x600000, 0x800000
PO_BR = 0x100000
CT = 0x50000
WS_SIZE = 0x1000000
CM, CL, OB, FR, FLG, QOP, CO = 0, 512, 1024, 1280, 1792, 2048, 6656
F_CNT, F_QC, F_NON, F_AC, F_OA, F_OC, F_LT = [FLG + 4 * i for i in range(7)]
F_LATE = FLG + 28
CO_BR, CO_W, CO_H = 33792, 4224, 528
LDS_SIZE = 74240
KB, VB, KA, VA, W1, W2, WS, XS, GT, OUT, DBG = 4, 8, 12, 16, 20, 24, 28, 32, 36, 40, 44
S_SELLO, S_SELHI, S_C, S_NONCE, S_GRP, S_IDX, S_SPLIT, S_BB, S_AB = 76, 77, 78, 79, 80, 81, 82, 83, 84
S_T0, S_T1, S_T2, S_T3, S_CNT, S_J, S_W = 85, 86, 87, 88, 89, 90, 91
S_POB, S_POA, S_POA2, S_CG = 92, 93, 94, 95
S_OK, S_QA, S_QB = 99, 100, 101
S_DX, S_DB, S_CA = 99, 100, 101
S_LATE = 73
S_BIAS = {'X': 70, 'Y': 71, 'Z': 75, 'U': 97}
V_K0, V_K1, V_L0, V_L1 = 1, 2, 3, 4
V_COW, V_MLW, V_QR, V_COR, V_MLR, V_FLG, V_QW, V_X, V_WA, V_GA, V_GB = 5, 6, 7, 8, 9, 10, 11, 12, 13, 14, 15
V_PO = V_X
HA = [None, 1, 2, 4, 11]
WSET = [16, 20]
T = list(range(24, 32))
OACC, QR, SR, PR, V_M, V_LS, V_U0, V_U1 = 32, 64, 80, 88, 92, 93, 94, 95
RING = [96 + 32 * i for i in range(5)]
SPIN_MAX = 20000
NEGMAX = "0xff7fffff"

class G:
    def __init__(self, stamps=False, opts=None):
        self.L = []; self.stamps = stamps; self.lab = 0
        self.o = opts or {}
        self.q = []
    def opt(self, k, d): return int(self.o.get(k, d))
    def e(self, s): self.L.append("    " + s)
    def label(self, s): self.L.append(s + ":")
    def newlab(self, p):
        self.lab += 1; return f"L_{p}{self.lab}"
    def srd(self, d, b, n):
        self.e(f"s_mov_b32 s{d}, s{b}"); self.e(f"s_mov_b32 s{d+1}, s{b+1}")
        self.e(f"s_mov_b32 s{d+2}, {hex(n)}"); self.e(f"s_mov_b32 s{d+3}, 0x20000")
    def srd_ws(self):
        off = self.opt("wsoff", 0)
        if off:
            self.e(f"s_add_u32 s74, s74, {hex(off << 20)}"); self.e("s_addc_u32 s75, s75, 0")
        self.srd(WS, 74, WS_SIZE)
    def stamp(self, i):
        if self.stamps: self.e(f"s_memrealtime s[{48+2*i}:{49+2*i}]")
    def stamp_flush(self):
        if not self.stamps: return
        e = self.e
        e("s_waitcnt lgkmcnt(0)")
        e("s_lshl_b32 s92, s2, 3"); e("s_add_u32 s92, s92, s3"); e("s_lshl_b32 s92, s92, 7"); e(f"s_add_u32 s92, s92, {hex(STAMP)}")
        e("s_mov_b64 exec, 1")
        for i in range(12):
            e(f"v_mov_b32 v16, s{48+2*i}"); e(f"v_mov_b32 v17, s{49+2*i}")
            e(f"buffer_store_dwordx2 v[16:17], off, s[{WS}:{WS+3}], s92 offset:{i*8}")
            e("s_nop 0")
        e("s_mov_b64 exec, -1")
    def vm(self, s, tag):
        self.e(s); self.q.append(tag)
    def wait(self, tag, keep=0):
        idx = [i for i, t in enumerate(self.q) if t == tag]
        if not idx: return
        last = idx[len(idx) - 1 - keep]
        n = len(self.q) - 1 - last
        assert n <= 63
        self.e(f"s_waitcnt vmcnt({n})")
        self.q = self.q[last + 1:]
    def lds_inc(self, off):
        e = self.e
        e(f"v_mov_b32 v{T[1]}, 1")
        e("s_mov_b64 exec, 1"); e(f"ds_add_u32 v{V_FLG}, v{T[1]} offset:{off - FLG}"); e("s_mov_b64 exec, -1")
    def issue_next(self):
        if not self.seq or not self.free: return False
        if self.seq[0] == "HOLD": return False
        u = self.seq.pop(0); r = self.free.pop(0); self.slot[u] = r
        ld = lambda j, v, srd, so, off: self.vm(f"buffer_load_dwordx4 v[{r+j*4}:{r+j*4+3}], v{v}, s[{srd}:{srd+3}], s{so} offen offset:{off} nt", u)
        if u[0] == "W":
            srd = self.WOA if u == "WA" else W2
            rng = range(8)
            if u == "WB" and getattr(self, "wb_part", None) is not None:
                rng = self.wb_part
            for ee in rng:
                off = ((ee & 3) * 8 + (ee >> 2)) * 2048
                self.e(f"s_add_u32 s{S_T0}, s{S_W}, {off & ~4095}")
                pw = self.opt("pwb", 0) if (u == "WB" or self.opt("whold", 1) == 2) else 0
                if pw: self.e(f"s_waitcnt vmcnt({pw - 1})")
                ld(ee, V_WA, srd, S_T0, off & 4095)
            return True
        n = 4 if u[1] in "Ha" else 8
        if u[1] in "Aa": srd, so = (KA if u[0] == "K" else VA), S_AB
        elif u[1] in "XYZU": srd, so = (KB if u[0] == "K" else VB), S_DX
        else:
            srd, so = (KB if u[0] == "K" else VB), S_T0
            self.e(f"s_add_u32 s{S_T0}, s{S_BB}, {hex(int(u[1]) * 0x200000)}")
        for j in range(n):
            dy = u[1] in "XYZU"
            if u[0] == "K": ld(j, (V_GA if dy else V_K1) if j >= 4 else V_K0, srd, so, (j & 3) * 64)
            else: ld(j, (V_GB if dy else V_L1) if j >= 4 else V_L0, srd, so, (j & 3) * 1024)
        return True
    def release(self, u): self.free.append(self.slot[u])
    def perm1(self, dst, src, dd, p):
        sel = S_SELHI if dd & 1 else S_SELLO
        self.e(f"v_perm_b32 v{dst+p}, v{src+(2*p+1)*4+(dd>>1)}, v{src+(2*p)*4+(dd>>1)}, s{sel}")
    def perms(self, dst, src, dd):
        for p in range(4): self.perm1(dst, src, dd, p)
    def mfma(self, d, a, b, c):
        cs = "0" if c is None else f"v[{c}:{c+3}]"
        self.e(f"v_mfma_f32_16x16x32_bf16 v[{d}:{d+3}], v[{a}:{a+3}], v[{b}:{b+3}], {cs}")
    def perm_mfma8(self, src, other, first, w_is_a, acc=OACC):
        def mm(dd):
            w = WSET[dd & 1]; d = acc + dd * 4
            if w_is_a: self.mfma(d, w, other, None if first else d)
            else: self.mfma(d, other, w, None if first else d)
        self.perms(WSET[0], src, 0)
        for dd in range(1, 8):
            self.perms(WSET[dd & 1], src, dd)
            mm(dd - 1)
        self.e("s_nop 0")
        mm(7)
    def pv_last(self, tag, src, dst, hook=None, hookpos=0):
        if hook and hookpos == 0: hook()
        self.wait(tag, keep=2)
        if hook and hookpos == 1: hook()
        for p in range(3):
            for dd in range(8): self.perm1(dst + dd * 4, src, dd, p)
        self.wait(tag)
        self.stamp(6)
        for dd in range(8):
            self.perm1(dst + dd * 4, src, dd, 3)
            if dd >= 2: self.mfma(OACC + (dd-2) * 4, dst + (dd-2) * 4, PR, OACC + (dd-2) * 4)
        self.e("s_nop 0")
        for dd in (6, 7): self.mfma(OACC + dd * 4, dst + dd * 4, PR, OACC + dd * 4)
    def qk(self, r, half=False, bias=None):
        if bias is not None:
            for i in range(4): self.e(f"v_mov_b32 v{SR+4+i}, s{bias}")
            self.e("s_nop 0")
        for jj in range(4):
            self.mfma(SR, r + jj * 4, QR + jj * 4, None if jj == 0 else SR)
            if not half: self.mfma(SR + 4, r + 16 + jj * 4, QR + jj * 4, None if (jj == 0 and bias is None) else SR + 4)
        if half:
            for i in range(4): self.e(f"v_mov_b32 v{SR+4+i}, {NEGMAX}")
    def xlane(self, op, t, u, kinds):
        for k in kinds:
            self.e(f"v_mov_b32 v{u}, v{t}"); self.e("s_nop 1")
            self.e(f"v_permlane{k}_swap_b32 v{t}, v{u}")
            self.e(f"{op} v{t}, v{t}, v{u}")
    def dp(self, op, r, ror): self.e(f"{op}_dpp v{r}, v{r}, v{r} row_ror:{ror} row_mask:0xf bank_mask:0xf")
    def dpp(self, op, t, rors):
        for r in rors:
            self.e("s_nop 1"); self.dp(op, t, r)
    def tilemax(self, first):
        e = self.e; t, u = T[0], T[1]; S = SR
        e(f"v_max3_f32 v{t}, v{S}, v{S+1}, v{S+2}"); e(f"v_max3_f32 v{t}, v{t}, v{S+3}, v{S+4}")
        e(f"v_max3_f32 v{t}, v{t}, v{S+5}, v{S+6}")
        if first: e(f"v_max_f32 v{t}, v{t}, v{S+7}")
        else: e(f"v_max3_f32 v{t}, v{t}, v{S+7}, v{V_M}")
        self.xlane("v_max_f32", t, u, (16, 32))
    def rescale(self, al):
        for i in range(16):
            self.e(f"v_pk_mul_f32 v[{OACC+2*i}:{OACC+2*i+1}], v[{OACC+2*i}:{OACC+2*i+1}], v[{al}:{al+1}] op_sel_hi:[1,0]")
    def softmax_rest(self, first, V_M=V_M, V_LS=V_LS):
        e = self.e; t, u, mc, al = T[0], T[1], T[2], T[4]; S = SR
        e(f"v_mul_f32 v{mc}, s{S_C}, v{t}")
        if not first:
            e(f"v_fma_f32 v{al}, v{V_M}, s{S_C}, -v{mc}")
            e(f"v_exp_f32 v{al}, v{al}")
        e(f"v_mov_b32 v{V_M}, v{t}")
        for i in range(8): e(f"v_fma_f32 v{S+i}, v{S+i}, s{S_C}, -v{mc}")
        for i in range(8): e(f"v_exp_f32 v{S+i}, v{S+i}")
        if not first: self.rescale(al)
        else: e("s_nop 0")
        e(f"v_add_f32 v{t}, v{S}, v{S+1}"); e(f"v_add_f32 v{u}, v{S+2}, v{S+3}")
        e(f"v_add_f32 v{t}, v{t}, v{S+4}"); e(f"v_add_f32 v{u}, v{u}, v{S+5}")
        e(f"v_add_f32 v{t}, v{t}, v{S+6}"); e(f"v_add_f32 v{u}, v{u}, v{S+7}")
        for p in range(4): e(f"v_cvt_pk_bf16_f32 v{PR+p}, v{S+2*p}, v{S+2*p+1}")
        e(f"v_add_f32 v{t}, v{t}, v{u}")
        if first: e(f"v_mov_b32 v{V_LS}, v{t}")
        else: e(f"v_fma_f32 v{V_LS}, v{V_LS}, v{al}, v{t}")
    def common_scale(self, tmp, hook, rescale_only):
        e = self.e
        e("s_mov_b64 exec, 0xff")
        e(f"ds_write_b32 v{V_MLW}, v{T[0]} offset:{CM + 256}")
        e("s_mov_b64 exec, -1")
        e("s_waitcnt lgkmcnt(0)")
        e("s_barrier")
        e(f"ds_read_b128 v[{tmp}:{tmp+3}], v{V_U0} offset:{CM + 256}")
        e(f"ds_read_b128 v[{tmp+4}:{tmp+7}], v{V_U0} offset:{CM + 256 + 16}")
        e(f"ds_read_b128 v[{tmp+8}:{tmp+11}], v{V_MLR} offset:{CM + 256}")
        e(f"ds_read_b128 v[{tmp+12}:{tmp+15}], v{V_MLR} offset:{CM + 256 + 16}")
        if hook: hook()
        e("s_waitcnt lgkmcnt(2)")
        t = T[0]
        e(f"v_max3_f32 v{t}, v{tmp}, v{tmp+1}, v{tmp+2}"); e(f"v_max3_f32 v{t}, v{t}, v{tmp+3}, v{tmp+4}")
        e(f"v_max3_f32 v{t}, v{t}, v{tmp+5}, v{tmp+6}"); e(f"v_max_f32 v{t}, v{t}, v{tmp+7}")
        if rescale_only:
            al = T[4]
            e(f"v_sub_f32 v{al}, v{V_M}, v{t}"); e(f"v_mul_f32 v{al}, s{S_C}, v{al}"); e(f"v_exp_f32 v{al}, v{al}"); e("s_nop 0")
            e(f"v_mul_f32 v{V_LS}, v{V_LS}, v{al}")
            self.rescale(al)
        else:
            self.softmax_rest(False)
            self.xlane("v_add_f32", V_LS, T[1], (16, 32))
        e("s_mov_b64 exec, 0xff")
        e(f"ds_write_b32 v{V_MLW}, v{V_LS} offset:{CL + 256}")
        e("s_mov_b64 exec, -1")
        e("s_waitcnt lgkmcnt(1)")
        m = tmp + 8
        e(f"v_max3_f32 v{tmp+18}, v{m}, v{m+1}, v{m+2}"); e(f"v_max3_f32 v{tmp+18}, v{tmp+18}, v{m+3}, v{m+4}")
        e(f"v_max3_f32 v{tmp+18}, v{tmp+18}, v{m+5}, v{m+6}"); e(f"v_max_f32 v{tmp+18}, v{tmp+18}, v{m+7}")
        e(f"v_mov_b32 v{tmp+19}, s{S_NONCE}")
        e(f"v_and_b32 v{tmp+16}, 1, v0"); e(f"v_cmp_eq_u32 vcc, 1, v{tmp+16}")
    def write_o(self, br, acc=OACC):
        e = self.e
        e("s_mov_b32 exec_lo, 0x00ff00ff"); e("s_mov_b32 exec_hi, 0x00ff00ff")
        for dd in range(8):
            e(f"ds_write_b128 v{V_COW}, v[{acc+dd*4}:{acc+dd*4+3}] offset:{br*CO_BR + dd*16}")
        e("s_mov_b64 exec, -1")
    def read_q(self, br):
        for jj in range(4):
            self.e(f"ds_read_b128 v[{QR+jj*4}:{QR+jj*4+3}], v{V_QR} offset:{br*2176 + jj*64}")
    def o_publish(self, R, R2):
        e = self.e
        l = R + 20
        e(f"ds_read_b128 v[{l}:{l+3}], v{V_MLR} offset:{CL + 256}"); e(f"ds_read_b128 v[{l+4}:{l+7}], v{V_MLR} offset:{CL + 256 + 16}")
        for w in range(8):
            e(f"ds_read_b128 v[{R2+4*w}:{R2+4*w+3}], v{V_COR} offset:{CO_BR + w*CO_W}")
        P = R + 16
        pk = lambda d, x, y: e(f"v_pk_add_f32 v[{d}:{d+1}], v[{x}:{x+1}], v[{y}:{y+1}]")
        pk4 = lambda d, y: (pk(d, d, y), pk(d + 2, d + 2, y + 2))
        e("s_waitcnt lgkmcnt(8)")
        pk(l, l, l + 2); pk(l + 4, l + 4, l + 6); pk(l, l, l + 4)
        e("s_waitcnt lgkmcnt(6)")
        pk4(R2, R2 + 4)
        e(f"v_add_f32 v{l}, v{l}, v{l+1}")
        e("s_waitcnt lgkmcnt(4)")
        pk4(R2 + 8, R2 + 12)
        e(f"v_cndmask_b32 v{R+18}, v{R+18}, v{l}, vcc")
        e("s_waitcnt lgkmcnt(2)")
        pk4(R2 + 16, R2 + 20); pk4(R2, R2 + 8)
        e("s_waitcnt lgkmcnt(0)")
        pk4(R2 + 24, R2 + 28); pk4(R2 + 16, R2 + 24); pk4(R2, R2 + 16)
        e(f"v_cvt_pk_bf16_f32 v{P}, v{R2}, v{R2+1}"); e(f"v_cvt_pk_bf16_f32 v{P+1}, v{R2+2}, v{R2+3}")
        e("s_mov_b32 exec_hi, 0")
        self.vm(f"buffer_store_dwordx4 v[{P}:{P+3}], v{V_PO}, s[{WS}:{WS+3}], s{S_POB} offen sc1", "st")
        e("s_mov_b32 exec_hi, -1")
    def combine_a(self, R, hoff, P, na):
        e = self.e
        m, l, o = SR, WSET[0], R
        M, mc, A = R + 16, T[2], R + 20
        for i in range(na // 4):
            e(f"ds_read_b128 v[{m+4*i}:{m+4*i+3}], v{V_MLR} offset:{CM + hoff*32 + 16*i}")
        for i in range(na // 4):
            e(f"ds_read_b128 v[{l+4*i}:{l+4*i+3}], v{V_MLR} offset:{CL + hoff*32 + 16*i}")
        for w in range(4): e(f"ds_read_b128 v[{o+4*w}:{o+4*w+3}], v{V_COR} offset:{w*CO_W + hoff*CO_H}")
        e(f"v_mov_b32 v{P+3}, s{S_NONCE}")
        e(f"v_and_b32 v{M+1}, 1, v0"); e(f"v_cmp_eq_u32 vcc, 1, v{M+1}")
        e(f"s_waitcnt lgkmcnt({4 + na//4})")
        e(f"v_max3_f32 v{M}, v{m}, v{m+1}, v{m+2}"); e(f"v_max_f32 v{M}, v{M}, v{m+3}")
        if na == 8:
            e(f"v_max3_f32 v{M}, v{M}, v{m+4}, v{m+5}"); e(f"v_max3_f32 v{M}, v{M}, v{m+6}, v{m+7}")
        e(f"v_mul_f32 v{mc}, s{S_C}, v{M}")
        for w in range(na): e(f"v_fma_f32 v{m+w}, v{m+w}, s{S_C}, -v{mc}")
        for w in range(na): e(f"v_exp_f32 v{m+w}, v{m+w}")
        e("s_waitcnt lgkmcnt(0)")
        for w in range(na):
            if w == 4:
                for w2 in range(4): e(f"ds_read_b128 v[{o+4*w2}:{o+4*w2+3}], v{V_COR} offset:{(4+w2)*CO_W + hoff*CO_H}")
                e("s_waitcnt lgkmcnt(0)")
            op = "v_mul_f32" if w == 0 else "v_fmac_f32"
            for i in range(4): e(f"{op} v{A+i}, v{m+w}, v{o+4*(w%4)+i}")
            e(f"{op} v{M+2}, v{m+w}, v{l+w}")
        e(f"v_cvt_pk_bf16_f32 v{P}, v{A}, v{A+1}"); e(f"v_cvt_pk_bf16_f32 v{P+1}, v{A+2}, v{A+3}")
        e(f"v_cndmask_b32 v{P+2}, v{M}, v{M+2}, vcc")
    def precombine_b(self, R, hoff):
        e = self.e
        m, l, o = SR, WSET[0], R
        M, mc, A = R + 16, T[2], R + 20
        e(f"ds_read_b128 v[{m}:{m+3}], v{V_MLR} offset:{CM + 256 + hoff*32}")
        e(f"ds_read_b128 v[{l}:{l+3}], v{V_MLR} offset:{CL + 256 + hoff*32}")
        for w in range(4): e(f"ds_read_b128 v[{o+4*w}:{o+4*w+3}], v{V_COR} offset:{CO_BR + w*CO_W + hoff*CO_H}")
        e("s_waitcnt lgkmcnt(5)")
        e(f"v_max3_f32 v{M}, v{m}, v{m+1}, v{m+2}"); e(f"v_max_f32 v{M}, v{M}, v{m+3}")
        e(f"v_mul_f32 v{mc}, s{S_C}, v{M}")
        for w in range(4): e(f"v_fma_f32 v{m+w}, v{m+w}, s{S_C}, -v{mc}")
        for w in range(4): e(f"v_exp_f32 v{m+w}, v{m+w}")
        e("s_waitcnt lgkmcnt(0)")
        for w in range(4):
            op = "v_mul_f32" if w == 0 else "v_fmac_f32"
            for i in range(4): e(f"{op} v{A+i}, v{m+w}, v{o+4*w+i}")
            e(f"{op} v{M+2}, v{m+w}, v{l+w}")
        e("s_mov_b32 exec_hi, 0")
        e(f"ds_write_b128 v{V_COR}, v[{A}:{A+3}] offset:{CO_BR + hoff*CO_H}")
        e("s_mov_b64 exec, 1")
        e(f"ds_write_b32 v{V_MLR}, v{M} offset:{CM + 256 + hoff*32}")
        e(f"ds_write_b32 v{V_MLR}, v{M+2} offset:{CL + 256 + hoff*32}")
        e("s_mov_b64 exec, -1")
    def o_publish5(self, R, R2):
        e = self.e
        m, l = R, R + 8
        e(f"ds_read_b32 v{m}, v{V_MLR} offset:{CM + 256}"); e(f"ds_read_b128 v[{m+4}:{m+7}], v{V_MLR} offset:{CM + 256 + 16}")
        for k, w in enumerate((0, 4, 5, 6, 7)):
            e(f"ds_read_b128 v[{R2+4*k}:{R2+4*k+3}], v{V_COR} offset:{CO_BR + w*CO_W}")
        e(f"ds_read_b32 v{l}, v{V_MLR} offset:{CL + 256}"); e(f"ds_read_b128 v[{l+4}:{l+7}], v{V_MLR} offset:{CL + 256 + 16}")
        P = R + 16; M = R + 18; mc = T[2]; A = R + 20; Ls = R + 1
        ms = [m, m + 4, m + 5, m + 6, m + 7]; ls = [l, l + 4, l + 5, l + 6, l + 7]
        e("s_waitcnt lgkmcnt(7)")
        e(f"v_max3_f32 v{M}, v{m}, v{m+4}, v{m+5}"); e(f"v_max3_f32 v{M}, v{M}, v{m+6}, v{m+7}")
        e(f"v_mul_f32 v{mc}, s{S_C}, v{M}")
        for r in ms: e(f"v_fma_f32 v{r}, v{r}, s{S_C}, -v{mc}")
        for r in ms: e(f"v_exp_f32 v{r}, v{r}")
        e("s_waitcnt lgkmcnt(2)")
        for k, r in enumerate(ms):
            b = r & ~1; sel = f"op_sel:[0,{r & 1}" ; hi = f"op_sel_hi:[1,{r & 1}"
            for h in range(2):
                if k == 0: e(f"v_pk_mul_f32 v[{A+2*h}:{A+2*h+1}], v[{R2+2*h}:{R2+2*h+1}], v[{b}:{b+1}] {sel}] {hi}]")
                else: e(f"v_pk_fma_f32 v[{A+2*h}:{A+2*h+1}], v[{R2+4*k+2*h}:{R2+4*k+2*h+1}], v[{b}:{b+1}], v[{A+2*h}:{A+2*h+1}] {sel},0] {hi},1]")
        e("s_waitcnt lgkmcnt(0)")
        for k in range(5): e(f"{'v_mul_f32' if k == 0 else 'v_fmac_f32'} v{Ls}, v{ms[k]}, v{ls[k]}")
        e(f"v_cvt_pk_bf16_f32 v{P}, v{A}, v{A+1}"); e(f"v_cvt_pk_bf16_f32 v{P+1}, v{A+2}, v{A+3}")
        e(f"v_cndmask_b32 v{M}, v{M}, v{Ls}, vcc")
        e("s_mov_b32 exec_hi, 0")
        self.vm(f"buffer_store_dwordx4 v[{P}:{P+3}], v{V_PO}, s[{WS}:{WS+3}], s{S_POB} offen sc1", "st")
        e("s_mov_b32 exec_hi, -1")
    def write_ml(self):
        e = self.e
        self.xlane("v_add_f32", V_LS, T[1], (16, 32))
        e("s_mov_b64 exec, 0xff")
        e(f"ds_write_b32 v{V_MLW}, v{V_M} offset:{CM + 256}")
        e(f"ds_write_b32 v{V_MLW}, v{V_LS} offset:{CL + 256}")
        e("s_mov_b64 exec, -1")
    def a_tile(self, t):
        e = self.e
        uk, uv = "K" + t, "V" + t
        half = t == "a"
        self.read_q(0)
        self.wait(uk)
        e("s_waitcnt lgkmcnt(0)")
        acc = self.slot[uk]
        self.qk(acc, half)
        self.read_q(1)
        e("s_nop 3")
        self.tilemax(True); self.softmax_rest(True, T[5], T[6])
        self.xlane("v_add_f32", T[6], T[1], (16, 32))
        e("s_mov_b64 exec, 0xff")
        e(f"ds_write_b32 v{V_MLW}, v{T[5]} offset:{CM}")
        e(f"ds_write_b32 v{V_MLW}, v{T[6]} offset:{CL}")
        e("s_mov_b64 exec, -1")
        if half:
            for i in range(16): e(f"v_mov_b32 v{self.slot[uv]+16+i}, 0")
        self.wait(uv)
        self.perm_mfma8(self.slot[uv], PR, True, True, acc); self.release(uv)
        if not self.issue_next(): e("s_nop 3")
        self.write_o(0, acc); self.release(uk)
        self.lds_inc(F_AC)
        e("s_waitcnt lgkmcnt(0)")
        self.issue_next()
    def b_tile(self, t, first):
        e = self.e
        uk, uv = f"K{t}", f"V{t}"
        half = t == "H"
        self.wait(uk)
        self.qk(self.slot[uk], half, S_BIAS.get(t)); self.release(uk)
        if not self.issue_next(): e("s_nop 7")
        self.tilemax(first); self.softmax_rest(first)
        if half:
            for i in range(16): e(f"v_mov_b32 v{self.slot[uv]+16+i}, 0")
        self.wait(uv)
        self.perm_mfma8(self.slot[uv], PR, first, True); self.release(uv)
        self.issue_next()
    def check(self, tags):
        e = self.e; acc = T[7]
        e(f"v_xor_b32 v{acc}, s{S_NONCE}, v{tags[0]}")
        for t in tags[1:]:
            e(f"v_xor_b32 v{T[6]}, s{S_NONCE}, v{t}"); e(f"v_or_b32 v{acc}, v{acc}, v{T[6]}")
        e(f"v_cmp_ne_u32 vcc, 0, v{acc}")
    def poll(self, loads, tags, sleep=1):
        e = self.e
        lp, ok = self.newlab("poll"), self.newlab("ok")
        e(f"s_mov_b32 s{S_CNT}, 0")
        self.label(lp)
        for s in loads: e(s)
        e("s_waitcnt vmcnt(0)")
        self.check(tags)
        e(f"s_add_u32 s{S_CNT}, s{S_CNT}, 1")
        e(f"s_cbranch_vccz {ok}")
        e(f"s_cmp_gt_u32 s{S_CNT}, {SPIN_MAX}")
        e(f"s_cbranch_scc1 {ok}")
        if sleep: e(f"s_sleep {sleep}")
        e(f"s_branch {lp}")
        self.label(ok)
    def poll_missing(self, loads, tags, sleep, first=True, firstwait=0, watch=False, lpl=8, thr=None):
        e = self.e
        n = len(loads)
        lp, done, chk = self.newlab("pm"), self.newlab("pmdone"), self.newlab("pmchk")
        MK = [4, 6, 8, 10]
        e(f"s_mov_b32 s{S_CNT}, 0")
        watch = watch and self.opt("watch", 1)
        S_PREV, S_N = 12, 13
        if watch: e(f"s_mov_b32 s{S_PREV}, 0")
        if watch and getattr(self, "late_full", None) and lpl == 8:
            e(f"s_cmp_ge_u32 s{S_LATE}, {self.late_full}"); e(f"s_cselect_b32 s{S_PREV}, 0x1000, 0")
        if getattr(self, "bp_now", False):
            self.bp_now = False
            wl, bl = self.newlab("bpw"), self.newlab("bpb")
            e(f"s_cmp_eq_u32 s{S_PREV}, 0"); e(f"s_cbranch_scc1 {wl}")
            e(f"s_mov_b32 s{S_PREV}, 0")
            for s_ in loads: e(s_)
            e(f"s_branch {bl}")
            self.label(wl)
            e(f"s_mov_b32 s{S_PREV}, {64 * n}")
            e("s_mov_b64 exec, 0xff"); e(loads[0]); e("s_mov_b64 exec, -1")
            self.label(bl)
            e("s_barrier")
        if first:
            for s_ in loads: e(s_)
        if firstwait:
            e(f"s_waitcnt vmcnt({firstwait})"); e(f"s_branch {chk}")
        self.label(lp)
        e("s_waitcnt vmcnt(0)")
        self.label(chk)
        for i in range(n):
            tg = tags[i]
            if tg[0] == "emb":
                r = tg[1]
                e(f"v_perm_b32 v{T[6]}, v{r+1}, v{r}, s{S_SELLO}"); e(f"v_perm_b32 v{T[7]}, v{r+3}, v{r+2}, s{S_SELLO}")
                e(f"v_perm_b32 v{T[6]}, v{T[7]}, v{T[6]}, s{S_SELHI}")
                e(f"v_cmp_ne_u32 s[{MK[i]}:{MK[i]+1}], s{S_NONCE}, v{T[6]}")
            elif len(tg) == 1:
                e(f"v_cmp_ne_u32 s[{MK[i]}:{MK[i]+1}], s{S_NONCE}, v{tg[0]}")
            else:
                e(f"v_xor_b32 v{T[6]}, s{S_NONCE}, v{tg[0]}"); e(f"v_xor_b32 v{T[7]}, s{S_NONCE}, v{tg[1]}"); e(f"v_or_b32 v{T[6]}, v{T[6]}, v{T[7]}")
                e(f"v_cmp_ne_u32 s[{MK[i]}:{MK[i]+1}], 0, v{T[6]}")
        e(f"s_or_b64 vcc, s[{MK[0]}:{MK[0]+1}], s[{MK[1]}:{MK[1]+1}]")
        for i in range(2, n): e(f"s_or_b64 vcc, vcc, s[{MK[i]}:{MK[i]+1}]")
        e(f"s_cbranch_scc0 {done}")
        e(f"s_add_u32 s{S_CNT}, s{S_CNT}, 1")
        e(f"s_cmp_gt_u32 s{S_CNT}, {SPIN_MAX}"); e(f"s_cbranch_scc1 {done}")
        if watch:
            full = self.newlab("pmfull")
            e(f"s_bcnt1_i32_b64 s{S_N}, s[{MK[0]}:{MK[0]+1}]")
            for i in range(1, n):
                e(f"s_bcnt1_i32_b64 s{S_T3}, s[{MK[i]}:{MK[i]+1}]"); e(f"s_add_u32 s{S_N}, s{S_N}, s{S_T3}")
            e(f"s_cmp_le_u32 s{S_N}, {lpl * (thr if thr is not None else self.opt('wthr', 8))}"); e(f"s_cbranch_scc1 {full}")
            e(f"s_cmp_lt_u32 s{S_N}, s{S_PREV}"); e(f"s_cbranch_scc1 {full}")
            e(f"s_mov_b32 s{S_PREV}, s{S_N}")
            ws_ = self.opt('wsleep', 2) if lpl == 8 else self.opt('fwsleep', self.opt('wsleep', 2))
            if ws_: e(f"s_sleep {ws_}")
            for i in (range(n) if not self.opt("wrot", 0) else list(range(n))[::-1]):
                nx = self.newlab("pmw")
                e(f"s_ff1_i32_b64 s{S_T3}, s[{MK[i]}:{MK[i]+1}]")
                e(f"s_cmp_lt_i32 s{S_T3}, 0"); e(f"s_cbranch_scc1 {nx}")
                e(f"s_and_b32 s{S_T3}, s{S_T3}, {64 - lpl}"); e(f"s_lshl_b64 exec, {hex((1 << lpl) - 1)}, s{S_T3}")
                e(loads[i])
                e("s_mov_b64 exec, -1")
                e(f"s_branch {lp}")
                self.label(nx)
            self.label(full)
            e(f"s_mov_b32 s{S_PREV}, 0")
        if sleep: e(f"s_sleep {sleep}")
        for i in range(n):
            sk = self.newlab("pms")
            e(f"s_mov_b64 exec, s[{MK[i]}:{MK[i]+1}]")
            e(f"s_cbranch_execz {sk}")
            e(loads[i])
            self.label(sk)
        e("s_mov_b64 exec, -1")
        e(f"s_branch {lp}")
        self.label(done)
    def lds_spin(self, off, target):
        if self.opt("noq", 0): return
        e = self.e
        lp, ok = self.newlab("ls"), self.newlab("lsok")
        e(f"s_mov_b32 s{S_CNT}, 0")
        self.label(lp)
        e(f"ds_read_b32 v{T[7]}, v{V_FLG} offset:{off - FLG}")
        e("s_waitcnt lgkmcnt(0)")
        e(f"v_readfirstlane_b32 s{S_T3}, v{T[7]}")
        e(f"s_add_u32 s{S_CNT}, s{S_CNT}, 1")
        e(f"s_cmp_eq_u32 s{S_T3}, {target}")
        e(f"s_cbranch_scc1 {ok}")
        e(f"s_cmp_gt_u32 s{S_CNT}, {SPIN_MAX*50}")
        e(f"s_cbranch_scc1 {ok}")
        e("s_sleep 1")
        e(f"s_branch {lp}")
        self.label(ok)
    def get_nonce(self):
        e = self.e
        lp, ok = self.newlab("nn"), self.newlab("nnok")
        e(f"s_mov_b32 s{S_CNT}, 0")
        self.label(lp)
        e(f"v_readfirstlane_b32 s{S_NONCE}, v{V_U1}")
        e(f"s_add_u32 s{S_CNT}, s{S_CNT}, 1")
        e(f"s_cmp_lg_u32 s{S_NONCE}, 0")
        e(f"s_cbranch_scc1 {ok}")
        e(f"s_cmp_gt_u32 s{S_CNT}, {SPIN_MAX}")
        e(f"s_cbranch_scc1 {ok}")
        e(f"buffer_load_dword v{V_U1}, off, s[{DBG}:{DBG+3}], 0 sc1")
        e("s_waitcnt vmcnt(0)")
        e(f"s_branch {lp}")
        self.label(ok)
    def qpoll_loads(self, OACC=OACC):
        l = [f"buffer_load_dwordx4 v[{OACC}:{OACC+3}], v{V_L0}, s[{WS}:{WS+3}], s{S_QB} offen sc1"]
        if self.isO: l.append(f"buffer_load_dwordx4 v[{OACC+4}:{OACC+7}], v{V_L0}, s[{WS}:{WS+3}], s{S_QA} offen sc1")
        return l
    def qtags(self, OACC=OACC): return [OACC + 1, OACC + 3] + ([OACC + 5, OACC + 7] if self.isO else [])
    def qcommit(self, OACC=OACC):
        e = self.e
        e(f"v_mov_b32 v{OACC+1}, v{OACC+2}")
        if self.isO: e(f"v_mov_b32 v{OACC+5}, v{OACC+6}")
        e(f"v_mov_b32 v{T[0]}, s{S_NONCE}"); e(f"v_mov_b32 v{T[1]}, 1")
        e(f"ds_write_b64 v{V_QW}, v[{OACC}:{OACC+1}] offset:2176")
        if self.isO: e(f"ds_write_b64 v{V_QW}, v[{OACC+4}:{OACC+5}]")
        e("s_mov_b64 exec, 1")
        e(f"ds_write_b32 v{V_FLG}, v{T[0]} offset:{F_NON - FLG}")
        e(f"ds_add_u32 v{V_FLG}, v{T[1]} offset:{F_QC - FLG}")
        e("s_mov_b64 exec, -1")
        e(f"s_mov_b32 s{S_OK}, 1")
        self.stamp(4)
    def young_prefetch(self):
        e = self.e
        nonce_ready = not self.isO
        e(f"s_lshl_b32 s{S_QA}, s{S_GRP}, 12"); e(f"s_and_b32 s{S_T1}, s3, 3"); e(f"s_lshl_b32 s{S_T2}, s{S_T1}, 10"); e(f"s_add_u32 s{S_QA}, s{S_QA}, s{S_T2}")
        e(f"s_add_u32 s{S_QB}, s{S_QA}, 32768")
        e(f"s_mul_i32 s{S_T1}, s{S_T1}, 544"); e(f"v_add_u32 v{V_QW}, s{S_T1}, v{V_QW}")
        e(f"s_mov_b32 s{S_OK}, 0")
        lagk = self.opt("qlag", 0)
        first = self.opt("qfirsto" if self.isO else "qfirstq", 2 if self.isO else 1)
        k = 0; pend = []
        if not nonce_ready:
            pass
        qm = self.opt("qmask", 1)
        nl = 2 if self.isO else 1
        def chk(k, mark):
            nonlocal nonce_ready
            B = OACC if qm else OACC + 8 * (k % 4)
            skip = self.newlab("qskip")
            if nonce_ready:
                e(f"s_cmp_eq_u32 s{S_OK}, 1"); e(f"s_cbranch_scc1 {skip}")
            e(f"s_waitcnt vmcnt({len(self.q) - mark})")
            if not nonce_ready:
                self.get_nonce(); nonce_ready = True
            if qm:
                for i in range(nl):
                    e(f"v_xor_b32 v{T[6]}, s{S_NONCE}, v{B+4*i+1}"); e(f"v_xor_b32 v{T[7]}, s{S_NONCE}, v{B+4*i+3}"); e(f"v_or_b32 v{T[6]}, v{T[6]}, v{T[7]}")
                    e(f"v_cmp_ne_u32 s[{72+2*i}:{73+2*i}], 0, v{T[6]}")
                e(f"s_or_b64 vcc, s[72:73], s[{72+2*(nl-1)}:{73+2*(nl-1)}]")
                e(f"s_cbranch_scc1 {skip}")
            else:
                self.check(self.qtags(B))
                e(f"s_cbranch_vccnz {skip}")
            self.qcommit(B)
            self.label(skip)
        while True:
            if k >= first:
                sk = self.newlab("qps")
                if not nonce_ready and k == first:
                    e(f"buffer_load_dword v{V_U1}, off, s[{DBG}:{DBG+3}], 0 sc1")
                if k > first: e(f"s_cmp_eq_u32 s{S_OK}, 1"); e(f"s_cbranch_scc1 {sk}")
                for i, s_ in enumerate(self.qpoll_loads(OACC if qm else OACC + 8 * (k % 4))):
                    if qm and k > first:
                        s2_ = self.newlab("qpm")
                        e(f"s_mov_b64 exec, s[{72+2*i}:{73+2*i}]"); e(f"s_cbranch_execz {s2_}"); e(s_); self.label(s2_)
                    else: e(s_)
                if qm and k > first: e("s_mov_b64 exec, -1")
                self.label(sk)
                pend.append((k, len(self.q)))
            ok = self.issue_next()
            if len(pend) > lagk: chk(*pend.pop(0))
            k += 1
            if not ok or not self.free: break
        for kk, mark in pend: chk(kk, mark)
        done = self.newlab("qd")
        e(f"s_cmp_eq_u32 s{S_OK}, 1"); e(f"s_cbranch_scc1 {done}")
        self.poll(self.qpoll_loads(), self.qtags(), sleep=1)
        self.qcommit()
        self.label(done)
    def wait_q(self):
        e = self.e
        self.lds_spin(F_QC, 4)
        if self.opt("noq", 0): return
        e(f"ds_read_b32 v{T[7]}, v{V_FLG} offset:{F_NON - FLG}")
        e("s_waitcnt lgkmcnt(0)")
        e(f"v_readfirstlane_b32 s{S_NONCE}, v{T[7]}")
    def gate_loads(self):
        e = self.e
        e(f"s_and_b32 s{S_T1}, s3, 1"); e(f"s_lshl_b32 s{S_T1}, s{S_T1}, 11")
        e(f"v_lshlrev_b32 v{V_X}, 5, v0")
        self.vm(f"buffer_load_dwordx4 v[{QR}:{QR+3}], v{V_X}, s[{XS}:{XS+3}], s{S_T1} offen", "g")
        self.vm(f"buffer_load_dwordx4 v[{QR+4}:{QR+7}], v{V_X}, s[{XS}:{XS+3}], s{S_T1} offen offset:16", "g")
        self.vm(f"buffer_load_dwordx4 v[{QR+8}:{QR+11}], v{V_X}, s[{GT}:{GT+3}], 0 offen", "g")
        self.vm(f"buffer_load_dwordx4 v[{QR+12}:{QR+15}], v{V_X}, s[{GT}:{GT+3}], 0 offen offset:16", "g")
    def gate(self):
        e = self.e
        self.wait("g")
        acc, a, b, c, d = T[0], T[1], T[2], T[3], T[4]
        e(f"v_mov_b32 v{acc}, 0")
        e(f"s_mov_b32 s{S_T0}, 0xffff0000")
        for i in range(8):
            x, g = QR + i, QR + 8 + i
            e(f"v_lshlrev_b32 v{a}, 16, v{x}"); e(f"v_lshlrev_b32 v{b}, 16, v{g}")
            e(f"v_and_b32 v{c}, s{S_T0}, v{x}"); e(f"v_and_b32 v{d}, s{S_T0}, v{g}")
            e(f"v_mul_f32 v{a}, v{a}, v{b}"); e(f"v_mul_f32 v{c}, v{c}, v{d}")
            e(f"v_cvt_pk_bf16_f32 v{a}, v{a}, v{c}")
            e(f"v_lshlrev_b32 v{b}, 16, v{a}"); e(f"v_and_b32 v{c}, s{S_T0}, v{a}")
            e(f"v_add_f32 v{acc}, v{acc}, v{b}"); e(f"v_add_f32 v{acc}, v{acc}, v{c}")
        self.dpp("v_add_f32", acc, (1, 2, 4, 8))
        self.xlane("v_add_f32", acc, a, (16, 32))
        e(f"v_cvt_pk_bf16_f32 v{acc}, v{acc}, v{acc}"); e(f"v_lshlrev_b32 v{acc}, 16, v{acc}")
        e(f"v_mul_f32 v{acc}, {hex(f2u(-math.log2(math.e)))}, v{acc}")
        e(f"v_exp_f32 v{acc}, v{acc}"); e("s_nop 0")
        e(f"v_add_f32 v{acc}, 1.0, v{acc}")
        e(f"v_rcp_f32 v{acc}, v{acc}"); e("s_nop 0")
        e(f"v_cvt_pk_bf16_f32 v{acc}, v{acc}, v{acc}"); e(f"v_lshlrev_b32 v{V_GA}, 16, v{acc}")
        e(f"v_sub_f32 v{acc}, 1.0, v{V_GA}")
        e(f"v_cvt_pk_bf16_f32 v{acc}, v{acc}, v{acc}"); e(f"v_lshlrev_b32 v{V_GB}, 16, v{acc}")

    def build(self):
        e = self.e; L = self.L
        L.append(f"; @launch grid=(256,1,1) block=(512,1,1) lds={LDS_SIZE}")
        L.append('.amdgcn_target "amdgcn-amd-amdhsa--gfx950"')
        L += [".text", f".globl {KNAME}", ".p2align 8", f".type {KNAME},@function", f"{KNAME}:"]
        e("s_cmp_ge_u32 s2, 256"); e("s_cbranch_scc1 L_end")
        e("s_load_dwordx16 s[48:63], s[0:1], 0")
        e("s_load_dwordx8 s[64:71], s[0:1], 64")
        e("s_load_dwordx4 s[72:75], s[0:1], 96")
        e("s_memrealtime s[96:97]")
        e("v_lshrrev_b32 v1, 6, v0")
        e("v_and_b32 v0, 63, v0")
        e("v_readfirstlane_b32 s3, v1")
        e(f"v_mov_b32 v{V_FLG}, {FLG}")
        e("v_mov_b32 v28, 0"); e("v_mov_b32 v29, 0"); e("v_mov_b32 v30, 0"); e("v_mov_b32 v31, 0")
        e("s_cmp_lg_u32 s3, 0"); e("s_cbranch_scc1 L_noinit")
        e(f"ds_write_b128 v{V_FLG}, v[28:31]"); e(f"ds_write_b128 v{V_FLG}, v[28:31] offset:16")
        self.label("L_noinit")
        e("v_and_b32 v24, 15, v0"); e("v_lshrrev_b32 v25, 4, v0")
        e("v_and_b32 v26, 3, v24"); e("v_lshlrev_b32 v26, 10, v26")
        e("v_lshrrev_b32 v27, 2, v24"); e("v_lshl_add_u32 v26, v27, 8, v26")
        e(f"v_lshl_add_u32 v{V_K0}, v25, 4, v26")
        e(f"v_add_u32 v{V_K1}, 4096, v{V_K0}")
        e(f"v_lshlrev_b32 v{V_L0}, 4, v0"); e(f"v_add_u32 v{V_L1}, 4096, v{V_L0}")
        e(f"s_lshr_b32 s{S_GRP}, s2, 5"); e(f"s_and_b32 s{S_IDX}, s2, 15"); e(f"s_and_b32 s{S_SPLIT}, s2, 31")
        e(f"s_lshl_b32 s{S_J}, s{S_GRP}, 4"); e(f"s_add_u32 s{S_J}, s{S_J}, s{S_IDX}")
        e(f"s_lshl_b32 s{S_T0}, s{S_GRP}, 23")
        e(f"s_lshl_b32 s{S_BB}, s{S_SPLIT}, 3"); e(f"s_add_u32 s{S_BB}, s{S_BB}, s3"); e(f"s_lshl_b32 s{S_BB}, s{S_BB}, 13"); e(f"s_add_u32 s{S_BB}, s{S_BB}, s{S_T0}")
        e("s_bitcmp1_b32 s2, 4"); e("s_cbranch_scc1 L_roleO")
        self.q = []; self.isO = False; self.WOA = GT
        self.roleQ()
        self.label("L_roleO")
        self.q = []; self.isO = True; self.WOA = W1
        self.roleO()
        self.label("L_end"); e("s_endpgm")
        L += ['.section .rodata,"a"', ".p2align 6", f".amdhsa_kernel {KNAME}"]
        for s in ["next_free_vgpr 256", "next_free_sgpr 102", "accum_offset 256", "group_segment_fixed_size 0", "kernarg_size 112",
                  "user_sgpr_count 2", "user_sgpr_kernarg_segment_ptr 1", "system_sgpr_workgroup_id_x 1"]:
            L.append("  .amdhsa_" + s)
        L.append(".end_amdhsa_kernel")
        return "\n".join(L) + "\n"

    def common_setup(self):
        e = self.e
        e(f"s_mov_b32 s{S_SELLO}, 0x05040100"); e(f"s_mov_b32 s{S_SELHI}, 0x07060302")
        e(f"s_mov_b32 s{S_C}, {hex(f2u(math.log2(math.e) / math.sqrt(128.0)))}")
        e(f"s_mul_i32 s{S_T0}, s3, {CO_W}"); e(f"s_add_u32 s{S_T0}, s{S_T0}, {CO}")
        e(f"v_mul_u32_u24 v{V_COW}, {CO_H}, v24"); e(f"v_lshl_add_u32 v{V_COW}, v25, 7, v{V_COW}"); e(f"v_add_u32 v{V_COW}, s{S_T0}, v{V_COW}")
        e(f"s_lshl_b32 s{S_T0}, s3, 2"); e(f"v_lshlrev_b32 v{V_MLW}, 5, v24"); e(f"v_add_u32 v{V_MLW}, s{S_T0}, v{V_MLW}")
        e("v_and_b32 v26, 7, v24"); e(f"v_lshlrev_b32 v{V_U0}, 5, v26")
        e(f"v_mul_u32_u24 v{V_QR}, 272, v26"); e(f"v_lshl_add_u32 v{V_QR}, v25, 4, v{V_QR}"); e(f"v_add_u32 v{V_QR}, {QOP}, v{V_QR}")
        e(f"s_mul_i32 s{S_T0}, s3, {CO_H}"); e(f"s_add_u32 s{S_T0}, s{S_T0}, {CO}"); e("v_and_b32 v26, 31, v0"); e(f"v_lshlrev_b32 v{V_COR}, 4, v26"); e(f"v_add_u32 v{V_COR}, s{S_T0}, v{V_COR}")
        e(f"s_lshl_b32 s{S_T0}, s3, 5"); e(f"v_mov_b32 v{V_MLR}, s{S_T0}")
        e("v_lshrrev_b32 v26, 5, v0"); e(f"v_mul_u32_u24 v{V_QW}, 272, v26"); e("v_and_b32 v26, 31, v0"); e(f"v_lshl_add_u32 v{V_QW}, v26, 3, v{V_QW}"); e(f"v_add_u32 v{V_QW}, {QOP}, v{V_QW}")
        e(f"s_lshl_b32 s{S_POB}, s{S_GRP}, 3"); e(f"s_add_u32 s{S_POB}, s{S_POB}, s3"); e(f"s_lshl_b32 s{S_POB}, s{S_POB}, 14"); e(f"s_add_u32 s{S_POB}, s{S_POB}, {hex(PO)}")
        e(f"s_lshl_b32 s{S_T1}, s{S_IDX}, 7"); e(f"s_add_u32 s{S_POA}, s{S_POB}, s{S_T1}"); e(f"s_add_u32 s{S_POA2}, s{S_POA}, {4*16384}")
        e(f"s_lshl_b32 s{S_T1}, s{S_SPLIT}, 7"); e(f"s_add_u32 s{S_POB}, s{S_POB}, s{S_T1}"); e(f"s_add_u32 s{S_POB}, s{S_POB}, {hex(PO_BR)}")

    def late_setup(self):
        e = self.e
        e(f"v_lshrrev_b32 v{T[0]}, 3, v0"); e(f"v_lshlrev_b32 v{V_PO}, 12, v{T[0]}"); e(f"v_and_b32 v{T[0]}, 7, v0"); e(f"v_lshl_add_u32 v{V_PO}, v{T[0]}, 4, v{V_PO}")
        if not self.old:
            e(f"v_lshrrev_b32 v{T[0]}, 4, v0"); e(f"v_lshlrev_b32 v{V_WA}, 12, v{T[0]}"); e(f"v_and_b32 v{T[0]}, 15, v0"); e(f"v_lshl_add_u32 v{V_WA}, v{T[0]}, 4, v{V_WA}")
            e(f"s_lshl_b32 s{S_W}, s{S_J}, 16"); e(f"s_and_b32 s{S_T1}, s3, 3"); e(f"s_lshl_b32 s{S_T1}, s{S_T1}, 8"); e(f"s_add_u32 s{S_W}, s{S_W}, s{S_T1}")
            if self.isO: e(f"s_add_u32 s{S_W}, s{S_W}, 1024")

    S_HO, S_PFR, S_OUT = 72, 74, 75
    def pre_tail(self):
        e = self.e
        if self.old:
            h = self.S_HO
            e(f"s_and_b32 s{S_T0}, s3, 1"); e(f"s_lshl_b32 s{S_T0}, s{S_T0}, 2"); e(f"s_lshr_b32 s{S_T1}, s{S_J}, 5"); e(f"s_add_u32 s{S_T0}, s{S_T0}, s{S_T1}")
            e(f"s_lshl_b32 s{h}, s{S_T0}, 17")
            e(f"s_and_b32 s{S_T1}, s{S_J}, 31"); e(f"s_lshl_b32 s{S_T1}, s{S_T1}, 12"); e(f"s_add_u32 s{h}, s{h}, s{S_T1}")
            e(f"s_add_u32 s{h}, s{h}, {hex(PO)}")
            e(f"s_and_b32 s{S_T0}, s3, 1"); e(f"s_lshl_b32 s{S_T0}, s{S_T0}, 6")
            e("v_and_b32 v26, 7, v0"); e(f"v_lshlrev_b32 v{HA[1]}, 3, v26"); e("v_lshrrev_b32 v26, 4, v0"); e(f"v_lshl_add_u32 v{HA[1]}, v26, 1, v{HA[1]}"); e(f"v_add_u32 v{HA[1]}, s{S_T0}, v{HA[1]}")
            if not self.isO:
                p = self.S_PFR
                e(f"s_lshr_b32 s{p}, s{S_J}, 1"); e(f"s_lshl_b32 s{p}, s{p}, 14"); e(f"s_lshl_b32 s{S_T2}, s3, 12"); e(f"s_add_u32 s{p}, s{p}, s{S_T2}")
                e(f"s_and_b32 s{S_T2}, s{S_J}, 1"); e(f"s_lshl_b32 s{S_T2}, s{S_T2}, 6"); e(f"s_add_u32 s{p}, s{p}, s{S_T2}"); e(f"s_add_u32 s{p}, s{p}, {hex(PF)}")
                e("v_lshrrev_b32 v26, 2, v0"); e(f"v_lshlrev_b32 v{HA[4]}, 7, v26"); e("v_and_b32 v26, 3, v0"); e(f"v_lshl_add_u32 v{HA[4]}, v26, 4, v{HA[4]}")
                e(f"v_lshlrev_b32 v{HA[2]}, 4, v26"); e("v_lshrrev_b32 v27, 4, v0"); e(f"v_lshl_add_u32 v{HA[2]}, v27, 2, v{HA[2]}")
                e(f"s_lshl_b32 s{S_T0}, s3, 6"); e(f"s_add_u32 s{S_T0}, s{S_T0}, {FR}"); e(f"v_add_u32 v{HA[2]}, s{S_T0}, v{HA[2]}")
                e("v_and_b32 v26, 7, v0"); e(f"v_lshlrev_b32 v{HA[3]}, 3, v26")
                e("v_lshrrev_b32 v27, 1, v26"); e(f"v_lshlrev_b32 v{V_WA}, 4, v27"); e("v_and_b32 v27, 1, v0"); e(f"v_lshl_add_u32 v{V_WA}, v27, 2, v{V_WA}")
                o = self.S_OUT
                e(f"s_lshr_b32 s{o}, s{S_J}, 3"); e(f"s_lshl_b32 s{o}, s{o}, 8")
                e(f"s_and_b32 s{S_T2}, s{S_J}, 3"); e(f"s_lshl_b32 s{S_T2}, s{S_T2}, 6"); e(f"s_add_u32 s{o}, s{o}, s{S_T2}")
                e(f"s_bfe_u32 s{S_T2}, s{S_J}, 0x10002"); e(f"s_lshl_b32 s{S_T2}, s{S_T2}, 3"); e(f"s_add_u32 s{o}, s{o}, s{S_T2}")
        else:
            e("v_bfe_u32 v26, v0, 2, 1"); e(f"v_lshlrev_b32 v{HA[2]}, 6, v26"); e("v_lshrrev_b32 v26, 4, v0"); e(f"v_lshl_add_u32 v{HA[2]}, v26, 4, v{HA[2]}")
            e("v_bfe_u32 v26, v0, 4, 1"); e(f"v_lshlrev_b32 v{HA[3]}, 19, v26"); e("v_bfe_u32 v26, v0, 3, 1"); e(f"v_lshl_add_u32 v{HA[3]}, v26, 14, v{HA[3]}")
            e("v_and_b32 v26, 7, v0"); e(f"v_lshl_add_u32 v{HA[3]}, v26, 4, v{HA[3]}")
            e("v_lshrrev_b32 v26, 5, v0"); e(f"v_lshl_add_u32 v{HA[3]}, v26, 15, v{HA[3]}")
            e(f"s_and_b32 s98, s3, 3"); e("s_lshl_b32 s98, s98, 16"); e(f"s_lshl_b32 s{S_T1}, s{S_J}, 7"); e(f"s_add_u32 s98, s98, s{S_T1}")
            e(f"s_add_u32 s98, s98, {hex(PF + (4 << 16 if self.isO else 0))}")
            e("s_mov_b32 s100, 0"); e("s_mov_b32 s101, -1")
            for i in range(4): e(f"s_mov_b32 s{4+i}, {hex(0x07060500 + i)}")

    def claim(self, tag):
        e = self.e
        e(f"v_mov_b32 v{V_U1}, 1"); e("s_mov_b64 exec, 1")
        self.vm(f"buffer_atomic_add v{V_U1}, off, s[{WS}:{WS+3}], s{S_CA} sc0", tag)
        e("s_mov_b64 exec, -1")

    def tiles(self):
        e = self.e; old = self.old
        self.read_q(1)
        self.late_setup()
        e("s_waitcnt lgkmcnt(0)")
        if old:
            for t in range(3): self.b_tile(str(t), t == 0)
            if self.isO: self.a_tile("A")
            self.last_tile("3"); return
        if self.isO: self.a_tile("A")
        e(f"s_lshl_b32 s{S_DB}, s{S_GRP}, 23"); e(f"s_lshl_b32 s{S_T0}, s3, 13"); e(f"s_add_u32 s{S_DB}, s{S_DB}, s{S_T0}"); e(f"s_add_u32 s{S_DB}, s{S_DB}, 0x600000")
        e(f"s_lshl_b32 s{S_CA}, s{S_GRP}, 2"); e(f"s_and_b32 s{S_T0}, s3, 3"); e(f"s_add_u32 s{S_CA}, s{S_CA}, s{S_T0}"); e(f"s_lshl_b32 s{S_CA}, s{S_CA}, 8"); e(f"s_add_u32 s{S_CA}, s{S_CA}, {hex(CT)}")
        names = ["X", "Y", "Z", "U"][:self.opt("maxdyn", 2)]; NF = self.opt("nf", 32)
        self.b_tile("0", True); self.claim("c0"); self.b_tile("1", False)
        prev = "2"; ends = []
        for i, nm in enumerate(names):
            lab = self.newlab("dend")
            self.wait(f"c{i}")
            e(f"v_readfirstlane_b32 s{S_DX}, v{V_U1}"); e("s_nop 0")
            e(f"s_cmp_ge_u32 s{S_DX}, {NF + 2*(32-NF)}"); e(f"s_cbranch_scc1 {lab}")
            ends.append((lab, prev, list(self.q), list(self.free), dict(self.slot)))
            e(f"s_sub_u32 s{S_T0}, s{S_DX}, {NF}"); e(f"s_lshr_b32 s{S_T1}, s{S_T0}, 1"); e(f"s_add_u32 s{S_T1}, s{S_T1}, {NF}"); e(f"s_lshl_b32 s{S_T1}, s{S_T1}, 16")
            e(f"s_and_b32 s{S_T0}, s{S_T0}, 1"); e(f"s_lshl_b32 s{S_T0}, s{S_T0}, 12"); e(f"s_add_u32 s{S_T1}, s{S_T1}, s{S_T0}")
            e(f"s_lshl_b32 s{S_T0}, s{S_DX}, 16")
            e(f"s_cmp_lt_u32 s{S_DX}, {NF}")
            e(f"s_cselect_b32 s{S_DX}, s{S_T0}, s{S_T1}"); e(f"s_cselect_b32 s{S_BIAS[nm]}, 0, 0xff7fffff"); e(f"s_cselect_b32 s{S_T0}, 0, 0x40000000")
            e(f"s_add_u32 s{S_DX}, s{S_DX}, s{S_DB}"); e(f"v_add_u32 v{V_GA}, s{S_T0}, v{V_K1}"); e(f"v_add_u32 v{V_GB}, s{S_T0}, v{V_L1}")
            assert not self.seq
            self.seq = ["K" + nm, "V" + nm]
            assert self.issue_next()
            if i + 1 < len(names): self.claim(f"c{i+1}")
            self.seq = ["HOLD"] + self.seq if False else self.seq
            self.b_tile(prev, False)
            prev = nm
        e(f"s_mov_b32 s{S_CA}, 255")
        self.last_tile(prev)
        for k_, (lab, t, q, free, slot) in enumerate(ends):
            self.label(lab)
            self.q, self.free, self.slot, self.seq = q, free, slot, []
            e(f"s_add_u32 s{S_CA}, s{S_DX}, {self.opt('lateadd', 0) * k_}")
            self.last_tile(t)

    def last_tile(self, tl):
        e = self.e; old = self.old
        uk, uv = f"K{tl}", f"V{tl}"
        assert not self.seq
        if not old:
            wh = self.opt("whold", 1)
            self.seq = {0: ["WA", "WB"], 1: ["WA", "HOLD", "WB"], 2: ["HOLD", "WA", "WB"], 3: ["WA", "HOLD", "WB"]}[wh]
            if self.opt("wae", 0) == 1: self.seq = ["WB"]
            if self.opt("wae", 0) == 2: self.seq = ["HOLD", "WB"]
            while self.issue_next(): pass
        if not old: e(f"s_mov_b32 s{S_LATE}, s{S_CA}")
        self.pre_tail()
        R = self.free[0]
        if old and self.isO:
            self.lds_spin(F_AC, 8)
            self.combine_a(R, 0, R + 24, 8); self.combine_a(R, 4, R + 28, 8)
        self.wait(uk)
        self.qk(self.slot[uk], False, S_BIAS.get(tl)); self.release(uk)
        R2 = self.free[1]
        if not old and self.opt("late", 0):
            e(f"v_mov_b32 v{T[1]}, s{S_LATE}"); e("s_mov_b64 exec, 1"); e(f"ds_max_u32 v{V_FLG}, v{T[1]} offset:{F_LATE - FLG}"); e("s_mov_b64 exec, -1")
        if self.opt("nobm", 1) and not old and self.isO:
            self.lds_inc(F_LT); e("s_nop 3")
        else: e("s_nop 7")
        def hook():
            e("s_mov_b32 exec_hi, 0")
            self.vm(f"buffer_store_dwordx4 v[{R+24}:{R+27}], v{V_PO}, s[{WS}:{WS+3}], s{S_POA} offen sc1", "st")
            self.vm(f"buffer_store_dwordx4 v[{R+28}:{R+31}], v{V_PO}, s[{WS}:{WS+3}], s{S_POA2} offen sc1", "st")
            e("s_mov_b32 exec_hi, -1")
        hk = hook if (old and self.isO) else None
        self.tilemax(False)
        if self.opt("nobm", 1):
            if not old:
                if self.opt("yprio", 1): e("s_setprio 2")
            self.softmax_rest(False)
            self.write_ml()
            e(f"v_mov_b32 v{R+19}, s{S_NONCE}")
            self.stamp(2)
            if old:
                self.wait(uv)
                self.perm_mfma8(self.slot[uv], PR, False, True); self.release(uv)
                e("s_nop 3")
                self.write_o(1)
                self.lds_inc(F_OC)
                self.lds_spin(F_OC, 4)
                self.precombine_b(R2, 0); self.precombine_b(R2, 4)
                if hk:
                    self.lds_spin(F_LT, 4)
                    hk()
                self.stamp(6)
            else:
                nh = self.opt("wbh", 0) if self.opt("wae", 0) != 1 else 0
                def wbhook():
                    fr = self.free; assert len(fr) >= 3, fr
                    self.free = [fr[2]]; self.seq = ["WB"]; self.wb_part = range(nh)
                    assert self.issue_next()
                    self.free = fr[:2] + fr[3:]; self.seq = ["HOLD", "WB2"]; self.wb_part = None
                self.pv_last(uv, self.slot[uv], R2, wbhook if nh else None, self.opt("wbpos", 1)); self.release(uv)
                self.write_o(1)
                if self.opt("whold", 1) == 3:
                    self.seq.pop(0); fr = self.free; self.free = [fr[-1]]; assert self.issue_next(); self.free = fr[:-1]
            e(f"v_and_b32 v{R+16}, 1, v0"); e(f"v_cmp_eq_u32 vcc, 1, v{R+16}")
            if not old and self.opt("ylow", 1): e("s_setprio 0")
            e("s_waitcnt lgkmcnt(0)")
            e("s_barrier")
            self.stamp(7)
            if old and self.opt("late", 0): e(f"ds_read_b32 v{T[7]}, v{V_FLG} offset:{F_LATE - FLG}")
            self.o_publish5(R, R2)
        else:
            if old:
                self.softmax_rest(False)
                self.wait(uv)
                self.perm_mfma8(self.slot[uv], PR, False, True); self.release(uv)
                self.xlane("v_add_f32", V_LS, T[1], (16, 32))
                e(f"v_mov_b32 v{T[0]}, v{V_M}")
                self.common_scale(R, hk, True)
                self.stamp(2); self.stamp(6)
            else:
                if self.opt("yprio", 1): e("s_setprio 2")
                self.common_scale(R, None, False)
                self.stamp(2)
                self.pv_last(uv, self.slot[uv], R2); self.release(uv)
            self.write_o(1)
            if not old and self.opt("ylow", 1): e("s_setprio 0")
            e("s_waitcnt lgkmcnt(0)")
            e("s_barrier")
            self.stamp(7)
            self.o_publish(R, R2)
        self.stamp(8)
        if self.opt("notail", 0):
            if not old:
                if self.seq and self.seq[0] == "HOLD": self.seq.pop(0)
                while self.issue_next(): pass
            e("s_waitcnt vmcnt(0)"); self.stamp(9); self.stamp(11); self.stamp(10); self.stamp_flush(); e("s_endpgm")
        elif old: self.tail_old()
        else: self.tail_young()

    def gather_reduce(self, D, n, gv, off):
        e = self.e; dp = self.dp
        M, u, mc, Ls = T[0], T[1], T[2], T[3]
        X = WSET[0]; E = RING[1]
        e(f"s_mov_b32 s{S_T0}, 0xffff0000")
        for i in range(n): e(f"v_mov_b32_dpp v{E+4*i}, v{D+4*i+2} quad_perm:[0,0,2,2] row_mask:0xf bank_mask:0xf")
        if n == 4: e(f"v_max3_f32 v{M}, v{E}, v{E+4}, v{E+8}"); e(f"v_max_f32 v{M}, v{M}, v{E+12}")
        else: e(f"v_max_f32 v{M}, v{E}, v{E+4}")
        up = [E + 16, E + 20, E + 24, E + 28]
        fill = []
        for i in range(n):
            r = up[i]
            fill += [f"v_lshlrev_b32 v{r}, 16, v{D+4*i}", f"v_and_b32 v{r+1}, s{S_T0}, v{D+4*i}", f"v_lshlrev_b32 v{r+2}, 16, v{D+4*i+1}", f"v_and_b32 v{r+3}, s{S_T0}, v{D+4*i+1}"]
        fill += [f"v_mov_b32_dpp v{E+4*i+2}, v{D+4*i+2} quad_perm:[1,1,3,3] row_mask:0xf bank_mask:0xf" for i in range(n)]
        def fl(k):
            for _ in range(k): e(fill.pop(0))
        fl(2)
        dp("v_max_f32", M, 8)
        e(f"v_mov_b32 v{u}, v{M}"); fl(2)
        e(f"v_permlane16_swap_b32 v{M}, v{u}"); e(f"v_max_f32 v{M}, v{M}, v{u}")
        e(f"v_mov_b32 v{u}, v{M}"); fl(2)
        e(f"v_permlane32_swap_b32 v{M}, v{u}"); e(f"v_max_f32 v{M}, v{M}, v{u}")
        e(f"v_mul_f32 v{mc}, s{S_C}, v{M}")
        for i in range(n): e(f"v_fma_f32 v{E+4*i}, v{E+4*i}, s{S_C}, -v{mc}")
        for i in range(n): e(f"v_exp_f32 v{E+4*i}, v{E+4*i}")
        fl(len(fill))
        for i in range(n):
            ee = E + 4 * i
            for h in range(2):
                if i == 0: e(f"v_pk_mul_f32 v[{X+2*h}:{X+2*h+1}], v[{up[i]+2*h}:{up[i]+2*h+1}], v[{ee}:{ee+1}] op_sel_hi:[1,0]")
                else: e(f"v_pk_fma_f32 v[{X+2*h}:{X+2*h+1}], v[{up[i]+2*h}:{up[i]+2*h+1}], v[{ee}:{ee+1}], v[{X+2*h}:{X+2*h+1}] op_sel_hi:[1,0,1]")
            e(f"{'v_mul_f32' if i == 0 else 'v_fmac_f32'} v{Ls}, v{E+4*i+2}, v{ee}")
        for r in (X, X + 1, X + 2, X + 3, Ls): dp("v_add_f32", r, 8)
        e(f"v_mov_b32 v{u}, v{Ls}")
        e(f"v_permlane16_swap_b32 v{X}, v{X+1}"); e(f"v_permlane16_swap_b32 v{X+2}, v{X+3}"); e(f"v_permlane16_swap_b32 v{Ls}, v{u}")
        e(f"v_add_f32 v{Ls}, v{Ls}, v{u}"); e(f"v_add_f32 v{X}, v{X}, v{X+1}"); e(f"v_add_f32 v{X+2}, v{X+2}, v{X+3}")
        e(f"v_mov_b32 v{u}, v{Ls}"); e("s_nop 0")
        e(f"v_permlane32_swap_b32 v{X}, v{X+2}"); e(f"v_permlane32_swap_b32 v{Ls}, v{u}")
        e(f"v_add_f32 v{Ls}, v{Ls}, v{u}"); e(f"v_add_f32 v{X}, v{X}, v{X+2}")
        e(f"v_rcp_f32 v{Ls}, v{Ls}")
        e(f"v_mul_f32 v{X}, v{X}, v{gv}")
        e(f"v_mul_f32 v{X}, v{X}, v{Ls}")
        e(f"v_cvt_pk_bf16_f32 v{X}, v{X}, v{X}")
        e("s_mov_b32 exec_lo, 0x00ff00ff"); e("s_mov_b32 exec_hi, 0x00ff00ff")
        e(f"ds_write_b16 v{HA[1]}, v{X} offset:{off}")
        e("s_mov_b64 exec, -1")

    def tail_old(self):
        e = self.e
        D = OACC
        mk = lambda D, v, sa, n, st: [f"buffer_load_dwordx4 v[{D+4*i}:{D+4*i+3}], v{v}, s[{WS}:{WS+3}], s{sa} offen offset:{st*i} sc1" for i in range(n)]
        la_, jn = self.newlab("ga"), self.newlab("gj")
        ps = self.opt("posleep", 0)
        aw = self.opt("aw", 0)
        if aw:
            for i in range(4): e(f"v_mov_b32 v{D+4*i+3}, 0")
        self.late_full = None
        if aw and self.opt("late", 0):
            e(f"v_readfirstlane_b32 s{S_LATE}, v{T[7]}")
            self.late_full = self.opt("late", 0)
        e("s_cmp_ge_u32 s3, 2"); e(f"s_cbranch_scc1 {la_}")
        e(f"s_add_u32 s{self.S_HO}, s{self.S_HO}, {hex(PO_BR)}")
        self.bp_now = bool(self.opt("bp", 0))
        self.poll_missing(mk(D, V_L0, self.S_HO, 4, 1024), [[D + 4 * i + 3] for i in range(4)], ps, first=not aw, watch=True)
        self.stamp(9)
        self.gather_reduce(D, 4, V_GB, OB + 128)
        e(f"s_branch {jn}")
        self.label(la_)
        self.bp_now = bool(self.opt("bp", 0))
        self.poll_missing(mk(D, V_L0, self.S_HO, 2, 1024), [[D + 4 * i + 3] for i in range(2)], ps, first=not aw, watch=True)
        self.stamp(9)
        self.gather_reduce(D, 2, V_GA, OB)
        self.lds_inc(F_OA)
        self.label(jn)
        e("s_waitcnt lgkmcnt(0)")
        e("s_barrier")
        if self.isO:
            self.stamp(10); self.stamp_flush(); e("s_endpgm"); return
        R = RING[0]
        e(f"s_mov_b32 s{S_SELLO}, 0x0c0c0400"); e(f"s_mov_b32 s{S_SELHI}, 0x05040100")
        self.stamp(1)
        lf = mk(R, HA[4], self.S_PFR, 2, 2048)
        if self.opt("fsleep0", 0): e(f"s_sleep {self.opt('fsleep0', 0)}")
        if self.opt("fw", 0) == 2:
            gl, gd, gs = self.newlab("gl"), self.newlab("gd"), self.newlab("gs")
            e(f"s_lshr_b32 s{S_T0}, s{S_J}, 1"); e(f"s_and_b32 s{S_T0}, s{S_T0}, 15"); e(f"s_lshl_b32 s{S_T0}, s{S_T0}, 2"); e(f"s_lshl_b64 s[12:13], 0xf, s{S_T0}")
            e(f"s_mov_b32 s{S_CNT}, 0")
            self.label(gl)
            e("s_mov_b64 exec, s[12:13]")
            e(lf[0])
            e(f"ds_read_b32 v{T[5]}, v{V_FLG} offset:{F_CNT - FLG}")
            e("s_waitcnt vmcnt(0) lgkmcnt(0)")
            e(f"v_perm_b32 v{T[6]}, v{R+1}, v{R}, s{S_SELLO}"); e(f"v_perm_b32 v{T[7]}, v{R+3}, v{R+2}, s{S_SELLO}")
            e(f"v_perm_b32 v{T[6]}, v{T[7]}, v{T[6]}, s{S_SELHI}")
            e(f"v_readfirstlane_b32 s{S_T2}, v{T[5]}"); e(f"v_readfirstlane_b32 s{S_T1}, v{T[6]}")
            e("s_mov_b64 exec, -1")
            e(f"s_add_u32 s{S_CNT}, s{S_CNT}, 1")
            e(f"s_cmp_lg_u32 s{S_T2}, 8"); e(f"s_cbranch_scc1 {gd}")
            e(f"s_cmp_eq_u32 s{S_T1}, s{S_NONCE}"); e(f"s_cbranch_scc1 {gs}")
            e(f"s_cmp_gt_u32 s{S_CNT}, {SPIN_MAX}"); e(f"s_cbranch_scc1 {gd}")
            if self.opt("gsleep", 2): e(f"s_sleep {self.opt('gsleep', 2)}")
            e(f"s_branch {gl}")
            self.label(gs)
            self.lds_inc(F_CNT)
            self.label(gd)
        if self.opt("fw", 0) == 1:
            e(f"v_mov_b32 v{R}, 0"); e(f"v_mov_b32 v{R+4}, 0")
        self.poll_missing(lf, [["emb", R], ["emb", R + 4]], self.opt("pfsleep", 0), first=self.opt("fw", 0) != 1, watch=True, lpl=4, thr=self.opt("fthr", self.opt("wthr", 8)))
        self.stamp(11)
        for i in range(8): e(f"v_and_b32 v{R+i}, 0xffffff00, v{R+i}")
        e(f"v_pk_add_f32 v[{R}:{R+1}], v[{R}:{R+1}], v[{R+4}:{R+5}]"); e(f"v_pk_add_f32 v[{R+2}:{R+3}], v[{R+2}:{R+3}], v[{R+6}:{R+7}]")
        e("s_nop 0")
        for ror in (4, 8):
            for i in range(4): self.dp("v_add_f32", R + i, ror)
        e("s_nop 0")
        e(f"v_permlane16_swap_b32 v{R}, v{R+1}"); e(f"v_permlane16_swap_b32 v{R+2}, v{R+3}")
        e(f"v_add_f32 v{R}, v{R}, v{R+1}"); e(f"v_add_f32 v{R+2}, v{R+2}, v{R+3}")
        e("s_nop 1")
        e(f"v_permlane32_swap_b32 v{R}, v{R+2}")
        e(f"v_add_f32 v{R}, v{R}, v{R+2}")
        e("s_mov_b32 exec_lo, 0x000f000f"); e("s_mov_b32 exec_hi, 0x000f000f")
        e(f"ds_write_b32 v{HA[2]}, v{R}")
        e("s_mov_b64 exec, -1")
        e("s_waitcnt lgkmcnt(0)")
        e("s_barrier")
        done = self.newlab("qdone")
        e("s_cmp_lg_u32 s3, 0"); e(f"s_cbranch_scc1 {done}")
        for w in range(4): e(f"ds_read_b64 v[{R+2*w}:{R+2*w+1}], v{HA[3]} offset:{FR + w*64}")
        e("s_waitcnt lgkmcnt(0)")
        e(f"v_pk_add_f32 v[{R}:{R+1}], v[{R}:{R+1}], v[{R+2}:{R+3}]"); e(f"v_pk_add_f32 v[{R+4}:{R+5}], v[{R+4}:{R+5}], v[{R+6}:{R+7}]")
        e(f"v_pk_add_f32 v[{R}:{R+1}], v[{R}:{R+1}], v[{R+4}:{R+5}]")
        e(f"v_cvt_pk_bf16_f32 v{R}, v{R}, v{R+1}")
        e("s_mov_b64 exec, 0xff")
        e(f"buffer_store_dword v{R}, v{V_WA}, s[{OUT}:{OUT+3}], s{self.S_OUT} offen")
        if self.opt("clean", 1):
            e(f"s_cmp_lg_u32 s{S_J}, 0"); e(f"s_cbranch_scc1 {done}")
            e(f"v_mov_b32 v{R+2}, 0")
            e("s_mov_b64 exec, 1")
            e(f"buffer_store_dword v{R+2}, off, s[{DBG}:{DBG+3}], 0 sc1")
        e("s_mov_b64 exec, -1")
        self.label(done)
        e("s_mov_b64 exec, -1")
        self.stamp(10); self.stamp_flush(); e("s_endpgm")

    def tail_young(self):
        e = self.e
        if self.opt("bp", 0): e("s_barrier")
        if self.seq and self.seq[0] == "HOLD": self.seq.pop(0)
        self.free = self.free[1:] + self.free[:1]
        if self.seq == ["WB2"]:
            fr = self.free
            self.free = [self.slot["WB"]]; self.seq = ["WB"]; self.wb_part = range(self.opt("wbh", 0), 8)
            assert self.issue_next()
            self.free = fr; self.wb_part = None
        while self.issue_next(): pass
        assert not self.seq
        if self.opt("ylow", 1): e("s_setprio 2")
        F0, F1 = self.free[:2]
        PK = SR
        OPR = QR + 8
        e(f"v_mov_b32 v{PK+4}, s{S_NONCE}")
        self.wait("WA")
        for dd in range(8): self.perms(F0 + dd * 4, self.slot["WA"], dd)
        self.stamp(11)
        self.wait("WB")
        for dd in range(8): self.perms(F1 + dd * 4, self.slot["WB"], dd)
        self.stamp(9)
        self.lds_spin(F_OA, 2)
        e(f"ds_read_b128 v[{OPR}:{OPR+3}], v{HA[2]} offset:{OB}")
        e("s_waitcnt lgkmcnt(0)")
        for dd in range(8): self.mfma(OACC + dd * 4, OPR, F0 + dd * 4, None)
        e("s_barrier")
        self.stamp(1)
        e(f"ds_read_b128 v[{OPR+4}:{OPR+7}], v{HA[2]} offset:{OB+128}")
        e("s_waitcnt lgkmcnt(0)")
        for dd in (0, 4, 1, 5, 2, 6, 3, 7): self.mfma(OACC + dd * 4, OPR + 4, F1 + dd * 4, OACC + dd * 4)
        e("s_nop 4")
        for i in range(4): e(f"v_cndmask_b32 v{PK+i}, v{OACC+4*i}, v{OACC+16+4*i}, s[100:101]")
        for i in range(4): e(f"v_perm_b32 v{PK+i}, v{PK+i}, v{PK+4}, s{4+i}")
        e(f"buffer_store_dwordx4 v[{PK}:{PK+3}], v{HA[3]}, s[{WS}:{WS+3}], s98 offen sc1")
        self.stamp(10); self.stamp_flush(); e("s_endpgm")

    def body(self, young_first):
        e = self.e; isO = self.isO
        p = "o" if isO else "q"
        base_q, base_free = list(self.q), list(self.free)
        e("s_cmp_ge_u32 s3, 4"); e(f"s_cbranch_scc1 L_{p}_y")
        for old in (True, False):
            self.q, self.free, self.slot = list(base_q), list(base_free), {}
            self.old = old
            if old: order = ["0", "1", "2"] + (["A"] if isO else []) + ["3"]
            else: order = (["A"] if isO else []) + ["0", "1", "2"]
            self.seq = [x for t in order for x in (f"K{t}", f"V{t}")]
            if not old and self.opt("wae", 0): self.seq.append("WA")
            if not old: self.label(f"L_{p}_y")
            if old:
                self.gate_loads()
                if isO and self.opt("gatefirst", 1):
                    gp = self.opt("gpre", 0)
                    if not gp: self.nonce_duty(0)
                    for _ in range(gp): self.issue_next()
                    self.gate()
                while self.issue_next(): pass
                if not (isO and self.opt("gatefirst", 1)): self.gate()
            elif self.opt("noq", 0):
                while self.issue_next(): pass
            else:
                if isO and (not self.opt("gatefirst", 1) or self.opt("gpre", 0)): self.nonce_duty(4)
                if self.opt("tlb", 0) and (isO or self.opt("tlb", 0) > 1):
                    e("s_setprio 3")
                    e(f"v_lshlrev_b32 v{T[0]}, 21, v0"); e(f"s_lshl_b32 s{S_T0}, s{S_GRP}, 23"); e(f"s_lshl_b32 s{S_T1}, s2, 7"); e(f"s_add_u32 s{S_T0}, s{S_T0}, s{S_T1}")
                    e("s_mov_b64 exec, 0xf")
                    e("s_cmp_eq_u32 s3, 4"); lab = self.newlab("tl"); e(f"s_cbranch_scc0 {lab}")
                    e(f"buffer_load_dword v{OACC+24}, v{T[0]}, s[{KB}:{KB+3}], s{S_T0} offen nt")
                    e(f"buffer_load_dword v{OACC+25}, v{T[0]}, s[{VB}:{VB+3}], s{S_T0} offen nt")
                    e(f"s_lshl_b32 s{S_T0}, s{S_J}, 16")
                    e("s_mov_b64 exec, 1")
                    e(f"buffer_load_dword v{OACC+26}, off, s[{self.WOA}:{self.WOA+3}], s{S_T0} nt")
                    e(f"buffer_load_dword v{OACC+27}, off, s[{W2}:{W2+3}], s{S_T0} nt")
                    e(f"buffer_load_dword v{OACC+28}, off, s[{WS}:{WS+3}], s{S_POB} nt")
                    self.label(lab)
                    e("s_mov_b64 exec, -1"); e("s_setprio 0")
                young_first()
                self.young_prefetch()
            self.wait_q()
            self.stamp(5)
            self.tiles()

    def nonce_duty(self, wave):
        e = self.e
        lab = self.newlab("non")
        e("s_xor_b32 s98, s2, 16"); e(f"s_xor_b32 s{S_T2}, s3, {wave}"); e(f"s_or_b32 s98, s98, s{S_T2}"); e("s_cmp_lg_u32 s98, 0"); e(f"s_cbranch_scc1 {lab}")
        e("s_setprio 3")
        e("v_lshlrev_b32 v26, 8, v0"); e("v_mov_b32 v27, 0"); e(f"s_mov_b32 s98, {hex(CT)}")
        e("s_mov_b32 exec_hi, 0")
        e(f"buffer_store_dword v27, v26, s[{WS}:{WS+3}], s98 offen sc1")
        e("s_waitcnt vmcnt(0)")
        e("s_or_b32 s98, s96, 1"); e("v_mov_b32 v26, s98")
        e("s_mov_b64 exec, 1")
        e(f"buffer_store_dword v26, off, s[{DBG}:{DBG+3}], 0 sc1")
        e("s_mov_b64 exec, -1")
        e("s_setprio 0")
        self.label(lab)

    def roleQ(self):
        e = self.e
        e("v_and_b32 v26, 1, v24"); e(f"v_lshlrev_b32 v{V_X}, 11, v26"); e(f"v_lshl_add_u32 v{V_X}, v25, 5, v{V_X}")
        e("v_bfe_u32 v26, v24, 2, 1"); e(f"v_lshl_add_u32 v{V_X}, v26, 4, v{V_X}")
        e("v_lshrrev_b32 v26, 3, v0"); e(f"v_lshlrev_b32 v{V_WA}, 16, v26"); e("v_and_b32 v26, 7, v0"); e(f"v_lshl_add_u32 v{V_WA}, v26, 4, v{V_WA}")
        e(f"s_and_b32 s{S_CG}, s{S_J}, 63"); e(f"s_lshl_b32 s{S_W}, s{S_CG}, 7"); e(f"s_lshl_b32 s{S_T1}, s3, 20"); e(f"s_add_u32 s{S_W}, s{S_W}, s{S_T1}")
        e(f"s_lshl_b32 s{S_T1}, s3, 8")
        e("s_waitcnt lgkmcnt(0)")
        e("s_cmp_ge_u32 s2, 128")
        e(f"s_cselect_b32 s{W1}, s64, s54"); e(f"s_cselect_b32 s{W1+1}, s65, s55"); e(f"s_mov_b32 s{W1+2}, 0x800000"); e(f"s_mov_b32 s{W1+3}, 0x20000")
        self.srd(XS, 48, 4096); self.srd(DBG, 72, 256)

        self.vm(f"buffer_load_dwordx4 v[{QR}:{QR+3}], v{V_X}, s[{XS}:{XS+3}], s{S_T1} offen", "x")
        self.vm(f"buffer_load_dwordx4 v[{QR+4}:{QR+7}], v{V_X}, s[{XS}:{XS+3}], s{S_T1} offen offset:128", "x")
        for u in range(2):
            for ee in range(8):
                r = RING[u] + ee * 4
                e(f"s_add_u32 s{S_T0}, s{S_W}, {(u*64+ee)*8192}")
                self.vm(f"buffer_load_dwordx4 v[{r}:{r+3}], v{V_WA}, s[{W1}:{W1+3}], s{S_T0} offen nt", u)
        self.vm(f"buffer_load_dword v{V_U1}, off, s[{DBG}:{DBG+3}], 0 sc1", "nn")
        self.srd(KB, 60, 0x4000000); self.srd(VB, 62, 0x4000000); self.srd_ws(); self.srd(OUT, 70, 4096)
        self.srd(KA, 50, 0x4000000); self.srd(VA, 52, 0x4000000); self.srd(W2, 66, 0x800000)
        e("s_cmp_ge_u32 s3, 4")
        e(f"s_cselect_b32 s{GT}, s56, s68"); e(f"s_cselect_b32 s{GT+1}, s57, s69"); e(f"s_movk_i32 s{GT+2}, 2048"); e(f"s_cselect_b32 s{GT+2}, 0x800000, s{GT+2}"); e(f"s_mov_b32 s{GT+3}, 0x20000")
        e(f"s_lshl_b32 s{S_AB}, s{S_IDX}, 4"); e(f"s_add_u32 s{S_AB}, s{S_AB}, s3"); e(f"s_add_u32 s{S_AB}, s{S_AB}, 12"); e(f"s_lshl_b32 s{S_AB}, s{S_AB}, 12")
        e(f"s_lshl_b32 s{S_T0}, s{S_GRP}, 23"); e(f"s_add_u32 s{S_AB}, s{S_AB}, s{S_T0}"); e(f"s_add_u32 s{S_AB}, s{S_AB}, 0x700000")
        self.common_setup()
        if self.stamps: e("s_mov_b64 s[48:49], s[96:97]")
        e("s_barrier")
        self.wait(0)
        self.perm_mfma8(RING[0], QR, True, False)
        e("v_bfe_u32 v26, v0, 3, 1"); e("v_lshlrev_b32 v27, 9, v26"); e("v_and_b32 v26, 7, v0"); e("v_lshl_add_u32 v27, v26, 6, v27")
        e(f"s_lshl_b32 s{S_T0}, s3, 10"); e(f"s_add_u32 s{S_T0}, s{S_T0}, {CO}"); e(f"v_add_u32 v27, s{S_T0}, v27")
        e("v_mov_b32 v28, 1")
        self.wait(1)
        self.perm_mfma8(RING[1], QR + 4, False, False)
        e("s_mov_b32 exec_lo, 0xff0000ff"); e("s_mov_b32 exec_hi, 0")
        e("s_nop 1")
        for dd in range(8):
            e(f"ds_write_b64 v27, v[{OACC+dd*4}:{OACC+dd*4+1}] offset:{dd*8}")
        e("s_mov_b64 exec, 1")
        e(f"ds_add_u32 v{V_FLG}, v28 offset:{F_CNT - FLG}")
        e("s_mov_b64 exec, -1")
        def young_first():
            e("s_setprio 3")
            e("v_lshrrev_b32 v26, 5, v0"); e("v_lshlrev_b32 v27, 12, v26"); e("v_lshlrev_b32 v28, 14, v26")
            e("v_and_b32 v26, 31, v0"); e("v_lshl_add_u32 v27, v26, 4, v27"); e(f"v_add_u32 v27, {CO}, v27"); e("v_lshl_add_u32 v28, v26, 3, v28")
            e(f"s_lshr_b32 s{S_T0}, s{S_J}, 6"); e(f"s_lshl_b32 s{S_T0}, s{S_T0}, 15"); e(f"s_lshl_b32 s{S_T1}, s{S_CG}, 8")
            e(f"s_add_u32 s{S_T2}, s{S_T0}, s{S_T1}")
            self.wait("nn")
            self.get_nonce()
            self.lds_spin(F_CNT, 8)
            for p in range(8):
                e(f"ds_read_b128 v[{OACC+p*4}:{OACC+p*4+3}], v27 offset:{p*512}")
            e("s_waitcnt lgkmcnt(0)")
            for p in (4, 2, 1):
                for q in range(p):
                    for i in (0, 2):
                        e(f"v_pk_add_f32 v[{OACC+q*4+i}:{OACC+q*4+i+1}], v[{OACC+q*4+i}:{OACC+q*4+i+1}], v[{OACC+(q+p)*4+i}:{OACC+(q+p)*4+i+1}]")
            e(f"v_mov_b32 v{OACC+5}, s{S_NONCE}")
            e("s_nop 0")
            e(f"v_permlane32_swap_b32 v{OACC}, v{OACC+1}"); e(f"v_permlane32_swap_b32 v{OACC+2}, v{OACC+3}")
            e(f"v_add_f32 v{OACC}, v{OACC}, v{OACC+1}"); e(f"v_add_f32 v{OACC+2}, v{OACC+2}, v{OACC+3}")
            e(f"v_cvt_pk_bf16_f32 v{OACC+4}, v{OACC}, v{OACC+2}")
            e(f"s_and_b32 s{S_T0}, s3, 3"); e(f"s_lshl_b32 s{S_T0}, s{S_T0}, 4"); e(f"s_lshl_b64 exec, 0xffff, s{S_T0}")
            self.vm(f"buffer_store_dwordx2 v[{OACC+4}:{OACC+5}], v28, s[{WS}:{WS+3}], s{S_T2} offen sc1", "st")
            e("s_mov_b64 exec, -1")
            e("s_setprio 0")
            self.stamp(3)
        self.free = [RING[2], RING[3], RING[4], RING[0], RING[1]]
        self.body(young_first)

    def roleO(self):
        e = self.e
        e(f"s_lshl_b32 s{S_AB}, s{S_IDX}, 3"); e(f"s_add_u32 s{S_AB}, s{S_AB}, s3"); e(f"s_lshl_b32 s{S_AB}, s{S_AB}, 13"); e(f"s_add_u32 s{S_AB}, s{S_AB}, s{S_T0}")
        e(f"s_add_u32 s{S_AB}, s{S_AB}, 0x700000")
        self.common_setup()
        e("s_waitcnt lgkmcnt(0)")
        self.srd(XS, 48, 4096); self.srd(GT, 68, 2048); self.srd(KB, 60, 0x4000000); self.srd(VB, 62, 0x4000000)
        self.srd(KA, 50, 0x4000000); self.srd(VA, 52, 0x4000000); self.srd_ws(); self.srd(DBG, 72, 256)
        self.srd(W1, 56, 0x800000); self.srd(W2, 66, 0x800000)
        if self.stamps: e("s_mov_b64 s[48:49], s[96:97]")
        e("s_barrier")
        self.free = list(RING)
        self.body(lambda: None)

if __name__ == "__main__":
    out = sys.argv[1]
    st = "--stamps" in sys.argv
    opts = dict(a[2:].split("=") for a in sys.argv[2:] if a.startswith("--") and "=" in a)
    open(out, "w").write(G(stamps=st, opts=opts).build())
```
